```python
import torch

def _softmax(x, axis=-1):
    return torch.softmax(x, dim=axis)

def _gelu(x):
    return torch.nn.functional.gelu(x, approximate='tanh')

def _silu(x):
    return torch.nn.functional.silu(x)

def _sigmoid(x):
    return torch.sigmoid(x)

def _layernorm(x, axis=-1, eps=1e-05):
    m = x.mean(dim=axis, keepdim=True)
    v = x.var(dim=axis, keepdim=True, unbiased=False)
    return (x - m) / torch.sqrt(v + eps)

def _scatter_add(tgt, idx, src, axis=0):
    return tgt.clone().index_add_(axis, idx, src)

def _segment_sum(src, seg, n):
    out = torch.zeros((n,) + src.shape[1:], dtype=src.dtype)
    return out.index_add_(0, seg, src)

def _pad(x, pw):
    flat = tuple((v for pair in reversed(pw) for v in pair))
    return torch.nn.functional.pad(x, flat)
kernel_name = 'gather_scatter__tensor_product_equiv_equiformer__graph'

def setup_inputs():

    _w = lambda a: (lambda t: t.to(torch.bfloat16) if t.is_floating_point() else t)(torch.as_tensor(a))
    N, deg, C, De = (10000, 64, 64, max(0, 1))
    E = N * deg
    src = (lambda lo, hi, *s: torch.randint(lo, hi, s))(0, N, E).to(torch.int64)
    dst = (lambda lo, hi, *s: torch.randint(lo, hi, s))(0, N, E).to(torch.int64)
    rvec = (lambda *s: torch.randn(*s, dtype=torch.bfloat16) * 0.05)(E, 3).to(float)
    rn = (torch.linalg.norm(rvec, dim=-1, keepdim=True) + 1e-06).to(float)
    rhat = (rvec / rn).to(float)
    eps = torch.zeros((3, 3, 3), dtype=float)
    eps[0, 1, 2] = eps[1, 2, 0] = eps[2, 0, 1] = 1.0
    eps[0, 2, 1] = eps[2, 1, 0] = eps[1, 0, 2] = -1.0
    return {'x': _w((lambda *s: torch.randn(*s, dtype=torch.bfloat16) * 0.4)(N, 4 * C).to(float)), 'rhat': _w(rhat), 'e_attr': _w((lambda *s: torch.randn(*s, dtype=torch.bfloat16) * 0.4)(E, De).to(float)), 'src': _w(src), 'dst': _w(dst), 'w_rad': _w((lambda *s: torch.randn(*s, dtype=torch.bfloat16) * 0.4)(De, 5 * C).to(float)), 'w_si0': _w((lambda *s: torch.randn(*s, dtype=torch.bfloat16) * 0.4)(2 * C, C).to(float)), 'w_si1': _w((lambda *s: torch.randn(*s, dtype=torch.bfloat16) * 0.05)(3 * C, C).to(float)), 'cg_eps': _w(eps)}

def reference(x, rhat, e_attr, src, dst, w_rad, w_si0, w_si1, cg_eps):
    N = x.shape[0]
    C = w_si0.shape[1]
    E = rhat.shape[0]
    x0 = x[:, :C].clone()
    x1 = x[:, C:].reshape(N, 3, C)
    R = (e_attr @ w_rad).reshape(E, 5, C)
    f0 = x0[src]
    f1 = x1[src]
    Y1 = rhat
    p00_0 = f0 * R[:, 0, :]
    p11_0 = torch.einsum('ejc,ej->ec', f1, Y1) * R[:, 1, :]
    p01_1 = torch.einsum('ec,ej->ejc', f0, Y1) * R[:, 2, :][:, None, :]
    p10_1 = f1 * R[:, 3, :][:, None, :]
    p11_1 = torch.einsum('ijk,ekc,ej->eic', cg_eps, f1, Y1) * R[:, 4, :][:, None, :]
    m0 = torch.concatenate([p00_0, p11_0], axis=-1) @ w_si0
    m1 = torch.einsum('ejp,pc->ejc', torch.concatenate([p01_1, p10_1, p11_1], axis=-1), w_si1)
    agg0 = _segment_sum(m0, dst, N)
    agg1 = _segment_sum(m1.reshape(E, 3 * C), dst, N).reshape(N, 3, C)
    gate = _sigmoid(agg0)
    out1 = agg1 * gate[:, None, :]
    return torch.concatenate([agg0, out1.reshape(N, 3 * C)], axis=-1)
```

```python
import sys

HDR = """; gather_scatter tensor product (equiformer) -- two launches
"""

NCH = 250
CH = 2560
RECB = CH * 12
WS_TAB = 0x800000
WS_W = 0x880000

L_CNT = 0
L_FLAG = 512
L_BASE = 576
L_W = 1088 + 960
L_KEY = L_W + 40960
CAP = 8320
L_COEF = L_KEY + CAP * 4
L_END = L_COEF + CAP * 8


class Asm:
    def __init__(self):
        self.L = []
    def __call__(self, s):
        for line in s.strip('\n').split('\n'):
            self.L.append(line)
    def text(self):
        return '\n'.join(self.L) + '\n'


def kd(A, name, nv, ns):
    A(f""".p2align 6
.amdhsa_kernel {name}
  .amdhsa_next_free_vgpr {nv}
  .amdhsa_next_free_sgpr {ns}
  .amdhsa_accum_offset {(nv + 3) // 4 * 4}
  .amdhsa_group_segment_fixed_size 0
  .amdhsa_kernarg_size 96
  .amdhsa_user_sgpr_count 2
  .amdhsa_user_sgpr_kernarg_segment_ptr 1
  .amdhsa_system_sgpr_workgroup_id_x 1
.end_amdhsa_kernel""")


def gen_k1(A, o):
    PF = o.get('pf', 0)
    ST = o.get('k1st', '')
    A(f"""
.globl k1_kernel
.p2align 8
.type k1_kernel,@function
k1_kernel:
    s_cmp_ge_u32 s2, {NCH}
    s_cbranch_scc1 K1_w
    s_load_dwordx4 s[4:7], s[0:1], 8
    s_load_dwordx4 s[8:11], s[0:1], 24
    s_load_dwordx2 s[12:13], s[0:1], 88       ; ws
    s_load_dwordx2 s[24:25], s[0:1], 0        ; x
    v_lshlrev_b32 v1, 4, v0
    v_lshlrev_b32 v2, 3, v0
    v_mul_u32_u24 v3, 24, v0
    v_mov_b32 v44, 0
    v_lshlrev_b32 v45, 2, v0
    ds_write_b32 v45, v44
    s_mul_i32 s14, s2, {CH*4}
    s_mul_i32 s15, s2, {CH*2}
    s_mul_i32 s16, s2, {CH*6}
    s_mul_i32 s17, s2, {RECB}
    s_lshl_b32 s18, s2, 10
    s_add_u32 s18, s18, {WS_TAB}
    s_waitcnt lgkmcnt(0)
    s_add_u32 s10, s10, s14
    s_addc_u32 s11, s11, 0
    global_load_dwordx4 v[4:7], v1, s[10:11]  ; dst
    s_add_u32 s8, s8, s14
    s_addc_u32 s9, s9, 0
    global_load_dwordx4 v[8:11], v1, s[8:9]   ; src
    s_add_u32 s6, s6, s15
    s_addc_u32 s7, s7, 0
    global_load_dwordx2 v[12:13], v2, s[6:7]  ; e_attr
    s_add_u32 s4, s4, s16
    s_addc_u32 s5, s5, 0
    global_load_dwordx4 v[14:17], v3, s[4:5]  ; rhat
    global_load_dwordx2 v[18:19], v3, s[4:5] offset:16
    s_add_u32 s20, s12, s17
    s_addc_u32 s21, s13, 0
    s_add_u32 s22, s12, s18
    s_addc_u32 s23, s13, 0
    s_mov_b32 s14, 52429
    s_mov_b32 s15, 6711
    s_mov_b32 s16, 0xffff0000
    v_mov_b32 v46, 1
    v_and_b32 v47, 63, v0
    v_lshlrev_b32 v47, 4, v47                 ; lane*16
    s_barrier
    s_waitcnt vmcnt(4)""")
    for i in range(4):
        A(f"""    v_mul_u32_u24 v{20+i}, s14, v{4+i}
    v_lshrrev_b32 v{20+i}, 21, v{20+i}          ; bucket""")
    for i in range(4):
        A(f"""    v_mul_u32_u24 v{48+i}, 40, v{20+i}
    v_lshlrev_b32 v{20+i}, 2, v{20+i}
    ds_add_rtn_u32 v{24+i}, v{20+i}, v46""")
    for i in range(4):
        A(f"    v_sub_u32 v{4+i}, v{4+i}, v{48+i}")
    A("    s_waitcnt vmcnt(3)")
    for i in range(4):
        k = 30 + 4*i
        A(f"""    v_mul_u32_u24 v48, s15, v{8+i}
    v_lshrrev_b32 v48, 23, v48
    v_lshrrev_b32 v49, 2, v{4+i}
    v_lshl_add_u32 v48, v49, 3, v48
    v_lshlrev_b32 v{k}, 9, v{8+i}
    v_lshl_or_b32 v{k}, v48, 2, v{k}
    v_lshl_or_b32 v{k}, v{4+i}, 30, v{k}""")
    A("    s_waitcnt vmcnt(0)")
    for i in range(4):
        src = 12 + i // 2
        if i % 2 == 0:
            A(f"    v_lshlrev_b32 v{48+i}, 16, v{src}")
        else:
            A(f"    v_and_b32 v{48+i}, s16, v{src}")
    for j in range(12):
        src = 14 + j // 2
        if j % 2 == 0:
            A(f"    v_lshlrev_b32 v{52+j}, 16, v{src}")
        else:
            A(f"    v_and_b32 v{52+j}, s16, v{src}")
    for j in range(12):
        A(f"    v_mul_f32 v{52+j}, v{48 + j//3}, v{52+j}")
    for i in range(4):
        r = 28 + 4*i
        A(f"""    v_cvt_pk_bf16_f32 v{r}, v{48+i}, v{52+3*i}
    v_cvt_pk_bf16_f32 v{r+1}, v{53+3*i}, v{54+3*i}""")
    A(f"""    s_waitcnt lgkmcnt(0)
    s_barrier
    ds_read_b128 v[48:51], v47
    v_add_u32 v2, {CH*4}, v1
    v_add_u32 v3, {CH*8}, v1
    s_waitcnt lgkmcnt(0)
    v_add_u32 v52, v48, v49
    v_add_u32 v53, v52, v50
    v_add_u32 v54, v53, v51
    v_mov_b32 v55, v54
    s_nop 1
    v_add_u32_dpp v55, v55, v55 row_shr:1 row_mask:0xf bank_mask:0xf
    s_nop 1
    v_add_u32_dpp v55, v55, v55 row_shr:2 row_mask:0xf bank_mask:0xf
    s_nop 1
    v_add_u32_dpp v55, v55, v55 row_shr:4 row_mask:0xf bank_mask:0xf
    s_nop 1
    v_add_u32_dpp v55, v55, v55 row_shr:8 row_mask:0xf bank_mask:0xf
    s_nop 1
    v_add_u32_dpp v55, v55, v55 row_bcast:15 row_mask:0xa bank_mask:0xf
    s_nop 1
    v_add_u32_dpp v55, v55, v55 row_bcast:31 row_mask:0xc bank_mask:0xf
    v_sub_u32 v56, v55, v54
    v_add_u32 v57, v56, v48
    v_add_u32 v58, v56, v52
    v_add_u32 v59, v56, v53
    ds_write_b128 v47, v[56:59] offset:1024
    v_cmp_gt_u32 vcc, 64, v0
    s_and_saveexec_b64 s[26:27], vcc
    s_cbranch_execz K1_notab
    v_lshl_or_b32 v60, v48, 16, v56
    v_lshl_or_b32 v61, v49, 16, v57
    v_lshl_or_b32 v62, v50, 16, v58
    v_lshl_or_b32 v63, v51, 16, v59
    global_store_dwordx4 v47, v[60:63], s[22:23] {ST}
K1_notab:
    s_mov_b64 exec, s[26:27]
    s_waitcnt lgkmcnt(0)""")
    for i in range(4):
        A(f"    ds_read_b32 v{48+i}, v{20+i} offset:1024")
    for i in range(4):
        A(f"""    s_waitcnt lgkmcnt({3-i})
    v_add_u32 v{48+i}, v{48+i}, v{24+i}
    v_mul_u32_u24 v{48+i}, 12, v{48+i}""")
    for i in range(4):
        A(f"    ds_write_b96 v{48+i}, v[{28+4*i}:{30+4*i}] offset:2048")
    if PF:
        lines = PF * 4
        per = (lines + 30) // 31
        rest = (10000 - PF) * 4
        per2 = (rest + NCH - 1) // NCH
        A(f"""    s_mov_b32 s28, s24
    s_mov_b32 s29, s25
    s_mov_b32 s30, {PF*512}
    s_mov_b32 s31, 0x20000
    s_lshr_b32 s3, s2, 3
    s_mul_i32 s3, s3, {per*128}
    v_lshlrev_b32 v4, 7, v0""")
        n = (per + 639) // 640
        for i in range(n):
            if (i + 1) * 640 > per:
                A(f"""    v_cmp_gt_u32 vcc, {per - i*640}, v0
    v_mov_b32 v5, 0x40000000
    s_nop 0
    v_cndmask_b32 v5, v5, v4, vcc
    buffer_load_dword v{6+i}, v5, s[28:31], s3 offen""")
            else:
                A(f"    buffer_load_dword v{6+i}, v4, s[28:31], s3 offen")
            A(f"    s_add_u32 s3, s3, {640*128}")
        if rest:
            assert per2 <= 640
            A(f"""    s_mov_b32 s30, 5120000
    s_mul_i32 s3, s2, {per2*128}
    s_add_u32 s3, s3, {PF*512}
    v_cmp_gt_u32 vcc, {per2}, v0
    v_mov_b32 v5, 0x40000000
    s_nop 0
    v_cndmask_b32 v5, v5, v4, vcc
    buffer_load_dword v{6+n}, v5, s[28:31], s3 offen""")
    A(f"""    s_waitcnt lgkmcnt(0)
    s_barrier
    ds_read_b128 v[28:31], v1 offset:2048
    ds_read_b128 v[32:35], v1 offset:{2048+CH*4}
    ds_read_b128 v[36:39], v1 offset:{2048+CH*8}
    s_waitcnt lgkmcnt(2)
    global_store_dwordx4 v1, v[28:31], s[20:21] {ST}
    s_waitcnt lgkmcnt(1)
    global_store_dwordx4 v2, v[32:35], s[20:21] {ST}
    s_waitcnt lgkmcnt(0)
    global_store_dwordx4 v3, v[36:39], s[20:21] {ST}
    s_endpgm
K1_w:                                         ; folded weight fragments, one per wave
    s_cmp_ge_u32 s2, {NCH+4}
    s_cbranch_scc1 K1_end
    s_load_dwordx4 s[4:7], s[0:1], 40
    s_load_dwordx2 s[8:9], s[0:1], 56         ; w_si1
    s_load_dwordx2 s[12:13], s[0:1], 88       ; ws
    v_lshrrev_b32 v1, 6, v0
    v_and_b32 v0, 63, v0
    v_readfirstlane_b32 s3, v1
    s_sub_u32 s14, s2, {NCH}
    s_mul_i32 s14, s14, 10
    s_add_u32 s14, s14, s3                    ; fragment f = p*8 + u*4 + t
    s_lshr_b32 s15, s14, 3                    ; p
    s_bfe_u32 s16, s14, 0x10002               ; u
    s_and_b32 s17, s14, 3                     ; t
    v_lshrrev_b32 v1, 4, v0                   ; g
    v_and_b32 v2, 1, v1
    v_lshlrev_b32 v2, 5, v2
    v_lshrrev_b32 v1, 1, v1
    v_lshl_add_u32 v2, v1, 2, v2
    s_lshl_b32 s16, s16, 4
    v_add_u32 v2, s16, v2                     ; ch0 = 32*(g&1) + 4*(g>>1) + 16*u
    v_and_b32 v3, 15, v0
    v_lshlrev_b32 v3, 2, v3
    v_add_u32 v3, s17, v3                     ; c_out = 4n + t
    s_lshl_b32 s18, s15, 6
    v_add_u32 v4, s18, v2
    v_lshlrev_b32 v4, 1, v4
    s_cmp_lt_u32 s15, 2
    s_cselect_b32 s19, 0, 128
    s_sub_u32 s18, s18, s19
    v_add_u32 v5, s18, v2
    v_lshlrev_b32 v5, 7, v5
    v_lshl_add_u32 v5, v3, 1, v5
    s_lshl_b32 s14, s14, 10
    s_add_u32 s14, s14, {WS_W}
    v_lshlrev_b32 v6, 4, v0
    s_waitcnt lgkmcnt(0)
    s_cmp_lt_u32 s15, 2
    s_cselect_b32 s6, s6, s8
    s_cselect_b32 s7, s7, s9
    s_add_u32 s12, s12, s14
    s_addc_u32 s13, s13, 0
    global_load_dwordx2 v[8:9], v4, s[4:5]
    global_load_dwordx2 v[10:11], v4, s[4:5] offset:16""")
    for e in range(8):
        row = (e // 4) * 8 + e % 4
        A(f"    global_load_ushort v{12+e}, v5, s[6:7] offset:{row*128}")
    A("    s_mov_b32 s16, 0xffff0000\n    s_waitcnt vmcnt(0)")
    for e in range(8):
        src = 8 + e // 2
        if e % 2 == 0:
            A(f"    v_lshlrev_b32 v{20+e}, 16, v{src}")
        else:
            A(f"    v_and_b32 v{20+e}, s16, v{src}")
        A(f"    v_lshlrev_b32 v{12+e}, 16, v{12+e}")
        A(f"    v_mul_f32 v{12+e}, v{12+e}, v{20+e}")
    for q in range(4):
        A(f"    v_cvt_pk_bf16_f32 v{28+q}, v{12+2*q}, v{13+2*q}")
    A("""    global_store_dwordx4 v6, v[28:31], s[12:13]
K1_end:
    s_endpgm""")


def gen_k2(A, o):
    NP = 7
    ACC = 96
    RA = lambda p: 8 + 4*p
    RB = lambda p: 36 + 4*p
    TB = lambda p: 64 + p
    MA = lambda p: 40 + 2*p
    MB = lambda p: 54 + 2*p
    A(f"""
.globl k2_kernel
.p2align 8
.type k2_kernel,@function
k2_kernel:
    s_cmp_ge_u32 s2, {NCH}
    s_cbranch_scc1 K2_end
    s_load_dwordx2 s[4:5], s[0:1], 0          ; x
    s_load_dwordx2 s[6:7], s[0:1], 88         ; ws
    s_load_dwordx2 s[8:9], s[0:1], 72         ; out
    v_lshrrev_b32 v1, 6, v0
    v_lshrrev_b32 v2, 4, v0
    v_readfirstlane_b32 s3, v1                ; wave
    v_lshlrev_b32 v3, 10, v2
    s_lshl_b32 s10, s2, 2
    v_add_u32 v3, s10, v3
    s_mov_b32 s10, {RECB}
    v_mul_lo_u32 v4, v2, s10
    v_and_b32 v5, 15, v0
    v_mad_u32_u24 v4, v5, 12, v4
    v_and_b32 v0, 63, v0
    s_mov_b32 s33, 0
    s_waitcnt lgkmcnt(0)
    s_mov_b32 s12, s4                         ; x descriptor
    s_mov_b32 s13, s5
    s_mov_b32 s14, 5120000
    s_mov_b32 s15, 0x20000
    s_add_u32 s16, s6, {WS_TAB}
    s_addc_u32 s17, s7, 0
    s_mov_b32 s18, {NCH*1024}
    s_mov_b32 s19, 0x20000
    s_mov_b32 s20, s6
    s_mov_b32 s21, s7
    s_mov_b32 s22, {NCH*RECB}
    s_mov_b32 s23, 0x20000
    s_add_u32 s24, s6, {WS_W}
    s_addc_u32 s25, s7, 0
    s_mov_b32 s26, 40960
    s_mov_b32 s27, 0x20000""")
    for i in range(64):
        A(f"    v_mov_b32 v{ACC+i}, 0")
    A("K2_round:")
    for p in range(NP):
        A(f"""    s_mov_b32 s10, {p*40*1024}
    buffer_load_dword v{TB(p)}, v3, s[16:19], s10 offen""")
    A(f"""    v_mov_b32 v6, 0
    v_lshlrev_b32 v7, 2, v0
    ds_write_b32 v7, v6                       ; counters
    ds_write_b32 v7, v6 offset:256
    ds_write_b32 v7, v6 offset:320
    v_mov_b32 v72, 0x40000000
    v_add_u32 v73, 16, v5
    v_mov_b32 v74, 0
    s_add_u32 s34, s33, 32
    s_waitcnt lgkmcnt(0)
    s_barrier""")
    for p in range(NP):
        A(f"""    s_waitcnt vmcnt({NP-1})
    v_lshrrev_b32 v75, 16, v{TB(p)}
    v_and_b32 v76, 0xffff, v{TB(p)}
    v_cmp_lt_u32 s[{MA(p)}:{MA(p)+1}], v5, v75
    v_cmp_lt_u32 s[{MB(p)}:{MB(p)+1}], v73, v75
    v_mad_u32_u24 v{TB(p)}, v76, 12, v4
    v_max_u32 v74, v74, v75
    v_cndmask_b32 v76, v72, v{TB(p)}, s[{MA(p)}:{MA(p)+1}]
    s_mov_b32 s10, {p*40*RECB}
    buffer_load_dwordx3 v[{RA(p)}:{RA(p)+2}], v76, s[20:23], s10 offen""")
    for p in range(NP):
        A(f"""    s_cmp_eq_u64 s[{MB(p)}:{MB(p)+1}], 0
    s_cbranch_scc1 K2_nb{p}
    v_cndmask_b32 v76, v72, v{TB(p)}, s[{MB(p)}:{MB(p)+1}]
    s_mov_b32 s10, {p*40*RECB}
    buffer_load_dwordx3 v[{RB(p)}:{RB(p)+2}], v76, s[20:23], s10 offen offset:192
K2_nb{p}:""")
    A(f"""    s_lshl_b32 s10, s3, 12
    s_add_u32 m0, s10, {L_W}
    v_lshlrev_b32 v77, 4, v0
    buffer_load_dwordx4 v77, s[24:27], s10 offen lds
    buffer_load_dwordx4 v77, s[24:27], s10 offen offset:1024 lds
    buffer_load_dwordx4 v77, s[24:27], s10 offen offset:2048 lds
    buffer_load_dwordx4 v77, s[24:27], s10 offen offset:3072 lds
    v_cmp_lt_u32 vcc, s34, v74
    v_mov_b32 v6, 1
    v_mov_b32 v7, {L_FLAG}
    s_and_saveexec_b64 s[36:37], vcc
    ds_write_b32 v7, v6
    s_mov_b64 exec, -1
    s_movk_i32 s11, 0x1fc
    s_waitcnt vmcnt(4)""")
    for p in range(NP):
        A(f"""    v_and_b32 v{TB(p)}, s11, v{RA(p)+2}
    s_mov_b64 exec, s[{MA(p)}:{MA(p)+1}]
    ds_add_rtn_u32 v{RA(p)+3}, v{TB(p)}, v6
    s_mov_b64 exec, -1""")
    for p in range(NP):
        A(f"""    s_cmp_eq_u64 s[{MB(p)}:{MB(p)+1}], 0
    s_cbranch_scc1 K2_nc{p}
    v_and_b32 v76, s11, v{RB(p)+2}
    s_mov_b64 exec, s[{MB(p)}:{MB(p)+1}]
    ds_add_rtn_u32 v{RB(p)+3}, v76, v6
    s_mov_b64 exec, -1
K2_nc{p}:""")
    A(f"""    v_and_b32 v72, 15, v0
    v_lshlrev_b32 v73, 5, v72
    s_waitcnt lgkmcnt(0)
    s_barrier
    ds_read_b128 v[76:79], v73
    ds_read_b128 v[80:83], v73 offset:16
    ds_read_b32 v75, v7
    s_waitcnt lgkmcnt(2)
    v_add_u32 v85, v76, v77                   ; p2
    v_add_u32 v86, v85, v78                   ; p3
    v_add_u32 v87, v86, v79                   ; p4
    s_waitcnt lgkmcnt(1)
    v_add_u32 v88, v87, v80                   ; p5
    v_add_u32 v89, v88, v81                   ; p6
    v_add_u32 v90, v89, v82                   ; p7
    v_add_u32 v91, v90, v83
    v_add_u32 v92, 31, v91
    v_and_b32 v92, 0xffffffe0, v92
    v_mov_b32 v93, v92
    v_cmp_gt_u32 vcc, 10, v72
    s_nop 0
    v_add_u32_dpp v93, v93, v93 row_shr:1 row_mask:0xf bank_mask:0xf
    v_cndmask_b32 v94, -1, v92, vcc
    s_nop 0
    v_add_u32_dpp v93, v93, v93 row_shr:2 row_mask:0xf bank_mask:0xf
    v_min_u32_dpp v94, v94, v94 row_shr:1 row_mask:0xf bank_mask:0xf
    s_nop 0
    v_add_u32_dpp v93, v93, v93 row_shr:4 row_mask:0xf bank_mask:0xf
    v_min_u32_dpp v94, v94, v94 row_shr:2 row_mask:0xf bank_mask:0xf
    s_nop 0
    v_add_u32_dpp v93, v93, v93 row_shr:8 row_mask:0xf bank_mask:0xf
    v_min_u32_dpp v94, v94, v94 row_shr:4 row_mask:0xf bank_mask:0xf
    v_sub_u32 v93, v93, v92
    v_add_u32 v77, v93, v76
    v_min_u32_dpp v94, v94, v94 row_shr:8 row_mask:0xf bank_mask:0xf
    v_mov_b32 v76, v93
    v_add_u32 v78, v93, v85
    v_add_u32 v79, v93, v86
    v_add_u32 v80, v93, v87
    v_add_u32 v81, v93, v88
    v_add_u32 v82, v93, v89
    v_add_u32 v83, v93, v90
    ds_write_b128 v73, v[76:79] offset:{L_BASE}
    ds_write_b128 v73, v[80:83] offset:{L_BASE+16}
    v_readlane_b32 s28, v93, s3
    v_readlane_b32 s29, v91, s3
    v_readlane_b32 s30, v92, s3
    v_readlane_b32 s31, v94, 15
    s_waitcnt lgkmcnt(2)
    v_readfirstlane_b32 s35, v75
    s_mov_b32 s10, {L_COEF}
    s_waitcnt lgkmcnt(0)""")
    for p in range(NP):
        A(f"    ds_read_b32 v{TB(p)}, v{TB(p)} offset:{L_BASE}")
    A(f"""    v_add_u32 v76, s29, v0
    v_cmp_gt_u32 vcc, s30, v76
    v_add_u32 v76, s28, v76
    v_lshlrev_b32 v77, 2, v76
    v_lshl_add_u32 v76, v76, 3, s10
    v_mov_b32 v78, 0
    v_mov_b32 v79, 0
    v_mov_b32 v80, 0x800000""")
    for p in range(NP):
        A(f"""    s_waitcnt lgkmcnt({NP-1-p})
    v_add_u32 v{TB(p)}, v{TB(p)}, v{RA(p)+3}
    v_lshl_add_u32 v{RA(p)+3}, v{TB(p)}, 3, s10
    v_lshlrev_b32 v{TB(p)}, 2, v{TB(p)}""")
    for p in range(NP):
        A(f"""    s_mov_b64 exec, s[{MA(p)}:{MA(p)+1}]
    ds_write_b64 v{RA(p)+3}, v[{RA(p)}:{RA(p)+1}]
    ds_write_b32 v{TB(p)}, v{RA(p)+2} offset:{L_KEY}""")
    A(f"""    s_mov_b64 exec, vcc
    ds_write_b64 v76, v[78:79]
    ds_write_b32 v77, v80 offset:{L_KEY}
    s_mov_b64 exec, -1""")
    for p in range(NP):
        A(f"""    s_cmp_eq_u64 s[{MB(p)}:{MB(p)+1}], 0
    s_cbranch_scc1 K2_nd{p}
    v_and_b32 v76, s11, v{RB(p)+2}
    ds_read_b32 v76, v76 offset:{L_BASE}
    s_waitcnt lgkmcnt(0)
    v_add_u32 v76, v76, v{RB(p)+3}
    v_lshl_add_u32 v77, v76, 3, s10
    v_lshlrev_b32 v76, 2, v76
    s_mov_b64 exec, s[{MB(p)}:{MB(p)+1}]
    ds_write_b64 v77, v[{RB(p)}:{RB(p)+1}]
    ds_write_b32 v76, v{RB(p)+2} offset:{L_KEY}
    s_mov_b64 exec, -1
K2_nd{p}:""")
    A(f"""    v_and_b32 v1, 15, v0
    v_lshrrev_b32 v2, 4, v0
    v_lshlrev_b32 v2, 3, v2
    v_add_u32 v2, s28, v2
    v_lshrrev_b32 v7, 2, v1
    v_add_u32 v7, v7, v2
    v_lshl_add_u32 v30, v7, 3, s10
    v_lshl_or_b32 v30, v0, 30, v30
    v_lshlrev_b32 v6, 2, v2
    v_lshlrev_b32 v7, 2, v7
    v_add_u32 v7, {L_KEY}, v7
    v_lshlrev_b32 v1, 4, v1
    s_lshr_b32 s30, s30, 5
    s_lshr_b32 s31, s31, 5
    s_max_u32 s31, s31, 1
    s_sub_u32 s31, s31, 1
    s_mov_b32 s28, 0x00fffe00
    s_mov_b32 s29, 0xc0000000
    s_mov_b32 s38, 0x05040100
    s_mov_b32 s39, 0x07060302
    s_waitcnt vmcnt(0) lgkmcnt(0)
    s_barrier
    s_cmp_eq_u32 s30, 0
    s_cbranch_scc1 K2_done""")

    def read_keys():
        A(f"""    ds_read_b128 v[8:11], v6 offset:{L_KEY}
    ds_read_b128 v[12:15], v6 offset:{L_KEY+16}
    ds_read2_b32 v[28:29], v7 offset0:0 offset1:4
    v_add_u32 v6, 128, v6
    v_add_u32 v7, 128, v7""")
    def mk_addr():
        for e in range(8):
            A(f"    v_and_or_b32 v{8+e}, v{8+e}, s28, v1")
        A("""    v_bitop3_b32 v28, v28, s29, v30 bitop3:0x6a
    v_bitop3_b32 v29, v29, s29, v30 bitop3:0x6a
    v_add_u32 v30, 256, v30""")
    def issue(h):
        for e in range(8):
            r = 32 + h*32 + e*4
            A(f"    buffer_load_dwordx4 v[{r}:{r+3}], v{8+e}, s[12:15], 0 offen offset:{h*256}")
    def read_b():
        A("""    ds_read_b64_tr_b16 v[16:17], v28
    ds_read_b64_tr_b16 v[18:19], v29 offset:32""")
    def half(h):
        D = 32 + h*32
        def perms(j):
            t = 20 + (j % 2) * 4
            sel = 's38' if j % 2 == 0 else 's39'
            for q in range(4):
                A(f"    v_perm_b32 v{t+q}, v{D + (2*q+1)*4 + j//2}, v{D + 2*q*4 + j//2}, {sel}")
        def mfma(j):
            t = 20 + (j % 2) * 4
            a = ACC + (h*8 + j) * 4
            A(f"    v_mfma_f32_16x16x32_bf16 v[{a}:{a+3}], v[{t}:{t+3}], v[16:19], v[{a}:{a+3}]")
        perms(0)
        for j in range(8):
            if j + 1 < 8:
                perms(j + 1)
            else:
                A("    s_nop 1")
            mfma(j)

    read_keys()
    A("    s_waitcnt lgkmcnt(0)")
    mk_addr()
    issue(0); issue(1)
    read_b()
    read_keys()
    A("""    s_sub_u32 s30, s30, 1
    s_cmp_eq_u32 s30, 0
    s_cbranch_scc1 K2_last
K2_loop:
    s_waitcnt lgkmcnt(0)""")
    mk_addr()
    A("    s_waitcnt vmcnt(8)")
    half(0)
    A("""    s_cmp_eq_u32 s31, 0
    s_cbranch_scc1 K2_nobar
    s_sub_u32 s31, s31, 1
    s_barrier
K2_nobar:""")
    issue(0)
    A("    s_waitcnt vmcnt(8)")
    half(1)
    issue(1)
    read_b()
    read_keys()
    A("""    s_sub_u32 s30, s30, 1
    s_cmp_lg_u32 s30, 0
    s_cbranch_scc1 K2_loop
K2_last:
    s_waitcnt vmcnt(8) lgkmcnt(0)""")
    half(0)
    A("    s_waitcnt vmcnt(0)")
    half(1)
    A(f"""K2_done:
    s_cmp_eq_u32 s35, 0
    s_cbranch_scc1 K2_epi
    s_barrier
    s_add_u32 s33, s33, 32
    v_add_u32 v5, 32, v5
    v_add_u32 v4, {32*12}, v4
    s_branch K2_round
K2_epi:""")
    WB = 64
    A("    v_lshlrev_b32 v1, 4, v0")
    def wread(f):
        r = WB + (f % 8) * 4
        A(f"    ds_read_b128 v[{r}:{r+3}], v1 offset:{L_W + f*1024}")
    order = [(p, u, t) for p in (0, 2, 1, 3, 4) for u in range(2) for t in range(4)]
    fr = lambda put: put[0]*8 + put[1]*4 + put[2]
    def wread_i(n):
        f = fr(order[n]); r = WB + (n % 8) * 4
        A(f"    ds_read_b128 v[{r}:{r+3}], v1 offset:{L_W + f*1024}")
    for n in range(8):
        wread_i(n)
    A("""    v_and_b32 v2, 3, v0
    v_cmp_eq_u32 s[40:41], 0, v2
    v_cmp_eq_u32 s[42:43], 1, v2
    v_cmp_eq_u32 s[44:45], 2, v2
    v_cmp_eq_u32 s[46:47], 3, v2
    s_or_b64 s[48:49], s[40:41], s[42:43]
    s_or_b64 s[50:51], s[40:41], s[44:45]
    s_or_b64 s[52:53], s[40:41], s[46:47]
    v_cndmask_b32 v3, 0, 1.0, s[48:49]        ; b1
    v_cndmask_b32 v4, 0, 1.0, s[50:51]        ; b2
    v_cndmask_b32 v5, 0, 1.0, s[52:53]        ; b3
    v_cndmask_b32 v6, 0, 1.0, s[44:45]
    v_cndmask_b32 v7, 0, 1.0, s[46:47]
    v_cndmask_b32 v32, 0, 1.0, s[42:43]
    v_cndmask_b32 v6, v6, -1.0, s[46:47]      ; c1
    v_cndmask_b32 v7, v7, -1.0, s[42:43]      ; c2
    v_cndmask_b32 v2, v32, -1.0, s[44:45]     ; c3""")
    acc = lambda h, j, r: ACC + (h*8 + j)*4 + r
    for h in range(2):
        for j in range(4):
            for r in range(4):
                A(f"    v_permlane32_swap_b32 v{acc(h,j,r)}, v{acc(h,j+4,r)}")
    PA, PB, PC = 8, 16, 24
    T = lambda c, r, j: acc(c // 2, j + 4*(c % 2), r)
    for u in range(2):
        for q in range(4):
            r = 2*u + q // 2; j = (q % 2) * 2
            A(f"    v_cvt_pk_bf16_f32 v{PA+u*4+q}, v{T(0,r,j)}, v{T(0,r,j+1)}")
    dp = {1: 'quad_perm:[1,0,3,2]', 2: 'quad_perm:[2,3,0,1]', 3: 'quad_perm:[3,2,1,0]'}
    for u in range(2):
        for q in range(4):
            r = 2*u + q // 2; j = (q % 2) * 2
            for (dst, k) in ((32, (3, 4, 5)), (34, (6, 7, 2))):
                for c in (1, 2, 3):
                    for d in range(2):
                        op = 'v_mul_f32_dpp' if c == 1 else 'v_fmac_f32_dpp'
                        A(f"    {op} v{dst+d}, v{T(c,r,j+d)}, v{k[c-1]} {dp[c]} row_mask:0xf bank_mask:0xf")
            A(f"    v_cvt_pk_bf16_f32 v{PB+u*4+q}, v32, v33")
            A(f"    v_cvt_pk_bf16_f32 v{PC+u*4+q}, v34, v35")
    D0, D1 = 32, 48
    A("    s_nop 1")
    seen = set()
    for n, (p, u, t) in enumerate(order):
        P = {0: PA, 2: PA, 1: PB, 3: PB, 4: PC}[p] + u*4
        D = (D0 if p < 2 else D1) + t*4
        w = WB + (n % 8) * 4
        c = f"v[{D}:{D+3}]" if D in seen else "0"
        seen.add(D)
        A(f"    s_waitcnt lgkmcnt({min(7, len(order)-1-n)})")
        A(f"    v_mfma_f32_16x16x32_bf16 v[{D}:{D+3}], v[{P}:{P+3}], v[{w}:{w+3}], {c}")
        if n + 8 < len(order):
            wread_i(n + 8)
    A(f"""    s_mul_i32 s10, s2, 40
    s_lshl_b32 s11, s3, 2
    s_add_u32 s10, s10, s11
    s_lshl_b32 s10, s10, 9
    s_add_u32 s8, s8, s10
    s_addc_u32 s9, s9, 0
    v_lshrrev_b32 v2, 4, v0
    v_and_b32 v3, 15, v0
    v_lshlrev_b32 v2, 9, v2
    v_lshl_add_u32 v2, v3, 3, v2
    s_mov_b32 s10, 0xbfb8aa3b                 ; -log2(e)""")
    for t in range(4):
        A(f"    v_mul_f32 v{8+t}, s10, v{D0+t*4}")
    for t in range(4):
        A(f"    v_exp_f32 v{8+t}, v{8+t}")
    A(f"""    v_cvt_pk_bf16_f32 v12, v{D0}, v{D0+4}
    v_cvt_pk_bf16_f32 v13, v{D0+8}, v{D0+12}""")
    for t in range(4):
        A(f"    v_add_f32 v{8+t}, 1.0, v{8+t}")
    A("    global_store_dwordx2 v2, v[12:13], s[8:9]")
    for t in range(4):
        A(f"    v_rcp_f32 v{8+t}, v{8+t}")
    A("    s_nop 0")
    for i in range(1, 4):
        for t in range(4):
            A(f"    v_mul_f32 v{D1+t*4+i}, v{D1+t*4+i}, v{8+t}")
        A(f"""    v_cvt_pk_bf16_f32 v{12+2*i}, v{D1+i}, v{D1+4+i}
    v_cvt_pk_bf16_f32 v{13+2*i}, v{D1+8+i}, v{D1+12+i}
    global_store_dwordx2 v2, v[{12+2*i}:{13+2*i}], s[8:9] offset:{i*128}""")
    A("""K2_end:
    s_endpgm""")


def gen(o):
    A = Asm()
    A(HDR.rstrip('\n'))
    A(f"; @launch kernel=k1_kernel grid=({NCH+4},1,1) block=(640,1,1) lds=32768")
    A(f"; @launch kernel=k2_kernel grid=({NCH},1,1) block=(640,1,1) lds={L_END}")
    for i in range(o.get('empty', 0)):
        A(f"; @launch kernel=k3_kernel grid=(1,1,1) block=(64,1,1) lds=0")
    A('.amdgcn_target "amdgcn-amd-amdhsa--gfx950"\n.text')
    gen_k1(A, o)
    gen_k2(A, o)
    if o.get('empty', 0):
        A(".globl k3_kernel\n.p2align 8\n.type k3_kernel,@function\nk3_kernel:\n    s_endpgm")
    A('.section .rodata,"a"')
    kd(A, 'k1_kernel', 64, 40)
    kd(A, 'k2_kernel', 160, 72)
    if o.get('empty', 0):
        kd(A, 'k3_kernel', 8, 16)
    return A.text()


if __name__ == '__main__':
    o = eval(sys.argv[2]) if len(sys.argv) > 2 else {}
    open(sys.argv[1], 'w').write(gen(o))
```

```python
import sys

NAME = 'gather_scatter__tensor_product_equiv_equiformer__graph_kernel'
HDR = """; gather_scatter tensor product (equiformer) -- one launch, 250 co-resident workgroups of 11 waves
"""

NCH = 250
CH = 2560
RECB = CH * 12
WS_INB = 0x800000
WS_W = 0x900000
WS_NONCE = 0x910000
WS_TS = 0x1000000
SPIN = 400000

L_CNT = 0
L_FLAG = 512
L_NONCE = 520
L_BASE = 576
L_W = 2048
L_C1 = 2048
L_B1 = 3072
L_ST = 4096
L_KEY = L_W + 40960
CAP = 8320
L_COEF = L_KEY + CAP * 4
L_END = L_COEF + CAP * 8


class Asm:
    def __init__(self):
        self.L = []
    def __call__(self, s):
        for line in s.strip('\n').split('\n'):
            self.L.append(line)
    def text(self):
        return '\n'.join(self.L) + '\n'


def gen_body(A, o):
    NP = 7
    ACC = 96
    RA = lambda p: 8 + 4*p
    RB = lambda p: 36 + 4*p
    TB = lambda p: 64 + p
    MA = lambda p: 40 + 2*p
    MB = lambda p: 54 + 2*p
    PF = o.get('pf', 6500)
    A(f"""
.globl {NAME}
.p2align 8
.type {NAME},@function
{NAME}:
    s_cmp_ge_u32 s2, {NCH}
    s_cbranch_scc1 L_end
;TS start
    s_load_dwordx4 s[40:43], s[0:1], 8
    s_load_dwordx4 s[44:47], s[0:1], 24
    s_load_dwordx2 s[6:7], s[0:1], 88         ; ws
    s_load_dwordx2 s[4:5], s[0:1], 0          ; x
    s_load_dwordx2 s[8:9], s[0:1], 72         ; out
    v_lshrrev_b32 v1, 6, v0
    v_lshlrev_b32 v2, 3, v0
    v_readfirstlane_b32 s3, v1                ; wave
    v_mul_u32_u24 v3, 24, v0
    v_lshlrev_b32 v1, 4, v0
    s_cmp_eq_u32 s3, 10
    s_cbranch_scc1 L_help
    s_mul_i32 s54, s2, {CH*4}
    s_mul_i32 s55, s2, {CH*2}
    s_mul_i32 s56, s2, {CH*6}
    s_mul_i32 s57, s2, {RECB}
    s_waitcnt lgkmcnt(0)
    s_add_u32 s46, s46, s54
    s_addc_u32 s47, s47, 0
    global_load_dwordx4 v[4:7], v1, s[46:47]  ; dst
    s_add_u32 s44, s44, s54
    s_addc_u32 s45, s45, 0
    global_load_dwordx4 v[8:11], v1, s[44:45] ; src
    s_add_u32 s42, s42, s55
    s_addc_u32 s43, s43, 0
    global_load_dwordx2 v[12:13], v2, s[42:43] ; e_attr
    s_add_u32 s40, s40, s56
    s_addc_u32 s41, s41, 0
    global_load_dwordx4 v[14:17], v3, s[40:41] ; rhat
    global_load_dwordx2 v[18:19], v3, s[40:41] offset:16
    v_mov_b32 v44, 0
    v_lshlrev_b32 v45, 2, v0
    ds_write_b32 v45, v44
    ds_write_b32 v45, v44 offset:1024
    s_add_u32 s48, s6, s57
    s_addc_u32 s49, s7, 0
    s_lshl_b32 s57, s2, 3
    s_add_u32 s57, s57, {WS_INB}
    s_add_u32 s50, s6, s57
    s_addc_u32 s51, s7, 0
    s_mov_b32 s12, s4                         ; x descriptor
    s_mov_b32 s13, s5
    s_mov_b32 s14, 5120000
    s_mov_b32 s15, 0x20000
    s_lshl_b32 s57, s2, 11
    s_add_u32 s57, s57, {WS_INB}
    s_add_u32 s16, s6, s57
    s_addc_u32 s17, s7, 0
    s_mov_b32 s18, {NCH*8}
    s_mov_b32 s19, 0x20000
    s_mov_b32 s20, s6
    s_mov_b32 s21, s7
    s_mov_b32 s22, {NCH*RECB}
    s_mov_b32 s23, 0x20000
    s_add_u32 s24, s6, {WS_W}
    s_addc_u32 s25, s7, 0
    s_mov_b32 s26, 40960
    s_mov_b32 s27, 0x20000
    s_mov_b32 s54, 52429
    s_mov_b32 s55, 6711
    s_mov_b32 s56, 0xffff0000
    s_movk_i32 s57, {L_ST}
    v_mov_b32 v46, 1
    v_and_b32 v0, 63, v0
    v_lshlrev_b32 v47, 4, v0                  ; lane*16
    s_waitcnt lgkmcnt(0)
    s_barrier                                 ; B1""")
    for i in range(64):
        A(f"    v_mov_b32 v{ACC+i}, 0")
    A("    s_waitcnt vmcnt(4)\n;TS dst")
    for i in range(4):
        A(f"""    v_mul_u32_u24 v{20+i}, s54, v{4+i}
    v_lshrrev_b32 v{20+i}, 21, v{20+i}          ; bucket""")
    for i in range(4):
        A(f"""    v_mul_u32_u24 v{48+i}, 40, v{20+i}
    v_lshlrev_b32 v{20+i}, 2, v{20+i}
    ds_add_rtn_u32 v{24+i}, v{20+i}, v46 offset:{L_C1}""")
    for i in range(4):
        A(f"    v_sub_u32 v{4+i}, v{4+i}, v{48+i}")
    A("""    s_waitcnt lgkmcnt(0)
    s_barrier                                 ; B2
;TS hist1""")
    A(f"""    ds_read_b128 v[48:51], v47 offset:{L_C1}
    v_add_u32 v2, {CH*4}, v1
    v_add_u32 v3, {CH*8}, v1
    s_waitcnt lgkmcnt(0)
    v_add_u32 v52, v48, v49
    v_add_u32 v53, v52, v50
    v_add_u32 v54, v53, v51
    v_mov_b32 v55, v54
    s_nop 1
    v_add_u32_dpp v55, v55, v55 row_shr:1 row_mask:0xf bank_mask:0xf
    s_nop 1
    v_add_u32_dpp v55, v55, v55 row_shr:2 row_mask:0xf bank_mask:0xf
    s_nop 1
    v_add_u32_dpp v55, v55, v55 row_shr:4 row_mask:0xf bank_mask:0xf
    s_nop 1
    v_add_u32_dpp v55, v55, v55 row_shr:8 row_mask:0xf bank_mask:0xf
    s_nop 1
    v_add_u32_dpp v55, v55, v55 row_bcast:15 row_mask:0xa bank_mask:0xf
    s_nop 1
    v_add_u32_dpp v55, v55, v55 row_bcast:31 row_mask:0xc bank_mask:0xf
    v_sub_u32 v56, v55, v54
    v_add_u32 v57, v56, v48
    v_add_u32 v58, v56, v52
    v_add_u32 v59, v56, v53
    ds_write_b128 v47, v[56:59] offset:{L_B1}
    v_lshl_or_b32 v60, v48, 12, v56
    v_lshl_or_b32 v61, v49, 12, v57
    v_lshl_or_b32 v62, v50, 12, v58
    v_lshl_or_b32 v63, v51, 12, v59
    s_waitcnt lgkmcnt(0)""")
    for i in range(4):
        A(f"    ds_read_b32 v{64+i}, v{20+i} offset:{L_B1}")
    A("    s_waitcnt vmcnt(3)")
    for i in range(4):
        k = 30 + 4*i
        A(f"""    v_mul_u32_u24 v48, s55, v{8+i}
    v_lshrrev_b32 v48, 23, v48
    v_lshrrev_b32 v49, 2, v{4+i}
    v_lshl_add_u32 v48, v49, 3, v48
    v_lshlrev_b32 v{k}, 9, v{8+i}
    v_lshl_or_b32 v{k}, v48, 2, v{k}
    v_lshl_or_b32 v{k}, v{4+i}, 30, v{k}""")
    A("    s_waitcnt lgkmcnt(0)")
    for i in range(4):
        A(f"""    v_add_u32 v{64+i}, v{64+i}, v{24+i}
    v_mad_u32_u24 v{64+i}, v{64+i}, 12, s57
    ds_write_b32 v{64+i}, v{30+4*i} offset:8""")
    A("    s_waitcnt vmcnt(0)\n;TS loads")
    for i in range(4):
        src = 12 + i // 2
        A(f"    v_lshlrev_b32 v{68+i}, 16, v{src}" if i % 2 == 0 else f"    v_and_b32 v{68+i}, s56, v{src}")
    for i in range(4):
        for j in range(3*i, 3*i+3):
            src = 14 + j // 2
            A(f"    v_lshlrev_b32 v{72+j}, 16, v{src}" if j % 2 == 0 else f"    v_and_b32 v{72+j}, s56, v{src}")
            A(f"    v_mul_f32 v{72+j}, v{68+i}, v{72+j}")
        r = 28 + 4*i
        A(f"""    v_cvt_pk_bf16_f32 v{r}, v{68+i}, v{72+3*i}
    v_cvt_pk_bf16_f32 v{r+1}, v{73+3*i}, v{74+3*i}
    ds_write2_b32 v{64+i}, v{r}, v{r+1} offset0:0 offset1:1""")
    A(f"""    v_mov_b32 v44, {L_NONCE}
    s_waitcnt lgkmcnt(0)
    s_barrier                                 ; B3
;TS staged
    ds_read_b128 v[28:31], v1 offset:{L_ST}
    ds_read_b128 v[32:35], v1 offset:{L_ST+CH*4}
    ds_read_b128 v[36:39], v1 offset:{L_ST+CH*8}
    ds_read_b32 v44, v44
    s_waitcnt lgkmcnt(3)
    global_store_dwordx4 v1, v[28:31], s[48:49] sc1
    s_waitcnt lgkmcnt(2)
    global_store_dwordx4 v2, v[32:35], s[48:49] sc1
    s_waitcnt lgkmcnt(1)
    global_store_dwordx4 v3, v[36:39], s[48:49] sc1
    s_cmp_eq_u32 s3, 1
    s_cselect_b64 s[58:59], -1, 0
    s_cmp_eq_u32 s3, 2
    s_cselect_b64 s[60:61], -1, 0
    s_cmp_eq_u32 s3, 3
    s_cselect_b64 s[62:63], -1, 0
    v_cndmask_b32 v60, v60, v61, s[58:59]
    v_cndmask_b32 v60, v60, v62, s[60:61]
    v_cndmask_b32 v60, v60, v63, s[62:63]
    v_lshlrev_b32 v62, 13, v0
    s_lshl_b32 s58, s3, 11
    v_add_u32 v62, s58, v62
    s_mul_i32 s58, s3, 25
    v_add_u32 v45, s58, v0
    v_lshlrev_b32 v45, 3, v45
    v_lshrrev_b32 v2, 4, v0
    v_add_u32 v4, s58, v2
    s_mov_b32 s10, {RECB}
    v_mul_lo_u32 v4, v4, s10
    v_and_b32 v5, 15, v0
    v_mad_u32_u24 v4, v5, 12, v4
    v_lshlrev_b32 v2, 2, v2
    s_mov_b32 s33, 0
    s_waitcnt lgkmcnt(0)
    v_readfirstlane_b32 s70, v44
    s_and_b32 s71, s70, 0xff000000
    s_xor_b32 s71, s71, 0xa5000000
    v_or_b32 v60, s71, v60
    v_mov_b32 v61, s70
    s_waitcnt vmcnt(0)
    s_barrier                                 ; B4
;TS drained
    s_cmp_ge_u32 s3, 4
    s_cbranch_scc1 L_nopub
    global_store_dwordx2 v62, v[60:61], s[50:51] sc1
L_nopub:
    s_mov_b32 s10, {SPIN}
    s_mov_b64 exec, 0x1ffffff
L_poll:
    buffer_load_dwordx2 v[6:7], v45, s[16:19], 0 offen sc1
    s_sub_u32 s10, s10, 1
    s_cbranch_scc1 L_end
    s_waitcnt vmcnt(0)
    v_xor_b32 v3, s71, v6
    v_xor_b32 v7, s70, v7
    v_lshrrev_b32 v6, 24, v3
    v_or_b32 v6, v6, v7
    v_cmp_ne_u32 vcc, 0, v6
    s_cbranch_vccnz L_poll
    s_not_b64 exec, exec
    v_mov_b32 v3, 0
    s_mov_b64 exec, -1
;TS polled
L_round:
    s_nop 0""")
    for p in range(NP):
        A(f"    ds_bpermute_b32 v{TB(p)}, v2, v3 offset:{16*p}")
    A(f"""    v_mov_b32 v72, 0x40000000
    v_add_u32 v73, 16, v5
    v_mov_b32 v74, 0
    s_add_u32 s34, s33, 32
    s_movk_i32 s11, 0xfff""")
    for p in range(NP):
        A(f"""    s_waitcnt lgkmcnt({NP-1-p})
    v_lshrrev_b32 v75, 12, v{TB(p)}
    v_and_b32 v76, s11, v{TB(p)}
    v_cmp_lt_u32 s[{MA(p)}:{MA(p)+1}], v5, v75
    v_cmp_lt_u32 s[{MB(p)}:{MB(p)+1}], v73, v75
    v_mad_u32_u24 v{TB(p)}, v76, 12, v4
    v_max_u32 v74, v74, v75
    v_cndmask_b32 v76, v72, v{TB(p)}, s[{MA(p)}:{MA(p)+1}]
    s_mov_b32 s10, {p*4*RECB}
    buffer_load_dwordx3 v[{RA(p)}:{RA(p)+2}], v76, s[20:23], s10 offen sc1""")
    for p in range(NP):
        A(f"""    s_cmp_eq_u64 s[{MB(p)}:{MB(p)+1}], 0
    s_cbranch_scc1 L_nb{p}
    v_cndmask_b32 v76, v72, v{TB(p)}, s[{MB(p)}:{MB(p)+1}]
    s_mov_b32 s10, {p*4*RECB}
    buffer_load_dwordx3 v[{RB(p)}:{RB(p)+2}], v76, s[20:23], s10 offen offset:192 sc1
L_nb{p}:""")
    NPF = 0
    if PF:
        NPF = (PF * 4 + 31*640 - 1) // (31*640)
        A(f"""    s_lshr_b32 s10, s2, 3
    s_min_u32 s10, s10, 30
    s_mul_i32 s11, s3, 31
    s_add_u32 s10, s10, s11
    s_lshl_b32 s10, s10, 13
    v_lshlrev_b32 v76, 7, v0
    s_mov_b32 s14, {PF*512}""")
        for i in range(NPF):
            A(f"    buffer_load_dword v{160+i}, v76, s[12:15], s10 offen")
            if i + 1 < NPF:
                A(f"    s_add_u32 s10, s10, {310*8192}")
        A("    s_mov_b32 s14, 5120000")
    A(f"""    v_cmp_lt_u32 vcc, s34, v74
    v_mov_b32 v6, 1
    v_mov_b32 v7, {L_FLAG}
    s_and_saveexec_b64 s[36:37], vcc
    ds_write_b32 v7, v6
    s_mov_b64 exec, -1
    s_movk_i32 s11, 0x1fc
    s_waitcnt vmcnt({NPF})
;TS recs""")
    for p in range(NP):
        A(f"""    v_and_b32 v{TB(p)}, s11, v{RA(p)+2}
    s_mov_b64 exec, s[{MA(p)}:{MA(p)+1}]
    ds_add_rtn_u32 v{RA(p)+3}, v{TB(p)}, v6
    s_mov_b64 exec, -1""")
    for p in range(NP):
        A(f"""    s_cmp_eq_u64 s[{MB(p)}:{MB(p)+1}], 0
    s_cbranch_scc1 L_nc{p}
    v_and_b32 v76, s11, v{RB(p)+2}
    s_mov_b64 exec, s[{MB(p)}:{MB(p)+1}]
    ds_add_rtn_u32 v{RB(p)+3}, v76, v6
    s_mov_b64 exec, -1
L_nc{p}:""")
    A(f"""    v_and_b32 v72, 15, v0
    v_lshlrev_b32 v73, 5, v72
    v_lshlrev_b32 v77, 4, v0
    s_lshl_b32 s10, s3, 12
    s_add_u32 m0, s10, {L_W}
    s_waitcnt lgkmcnt(0)
    s_barrier                                 ; B5
;TS hist2
    ds_read_b128 v[84:87], v73
    ds_read_b128 v[80:83], v73 offset:16
    ds_read_b32 v75, v7
    buffer_load_dwordx4 v77, s[24:27], s10 offen sc1 lds
    buffer_load_dwordx4 v77, s[24:27], s10 offen offset:1024 sc1 lds
    buffer_load_dwordx4 v77, s[24:27], s10 offen offset:2048 sc1 lds
    buffer_load_dwordx4 v77, s[24:27], s10 offen offset:3072 sc1 lds
    s_waitcnt lgkmcnt(2)
    v_add_u32 v85, v84, v85                   ; p2
    v_add_u32 v86, v85, v86                   ; p3
    v_add_u32 v87, v86, v87                   ; p4
    s_waitcnt lgkmcnt(1)
    v_add_u32 v88, v87, v80                   ; p5
    v_add_u32 v89, v88, v81                   ; p6
    v_add_u32 v90, v89, v82                   ; p7
    v_add_u32 v91, v90, v83
    v_add_u32 v92, 31, v91
    v_and_b32 v92, 0xffffffe0, v92
    v_mov_b32 v93, v92
    v_cmp_gt_u32 vcc, 10, v72
    s_nop 0
    v_add_u32_dpp v93, v93, v93 row_shr:1 row_mask:0xf bank_mask:0xf
    v_cndmask_b32 v94, -1, v92, vcc
    s_nop 0
    v_add_u32_dpp v93, v93, v93 row_shr:2 row_mask:0xf bank_mask:0xf
    v_min_u32_dpp v94, v94, v94 row_shr:1 row_mask:0xf bank_mask:0xf
    s_nop 0
    v_add_u32_dpp v93, v93, v93 row_shr:4 row_mask:0xf bank_mask:0xf
    v_min_u32_dpp v94, v94, v94 row_shr:2 row_mask:0xf bank_mask:0xf
    s_nop 0
    v_add_u32_dpp v93, v93, v93 row_shr:8 row_mask:0xf bank_mask:0xf
    v_min_u32_dpp v94, v94, v94 row_shr:4 row_mask:0xf bank_mask:0xf
    v_sub_u32 v93, v93, v92
    v_add_u32 v77, v93, v84
    v_min_u32_dpp v94, v94, v94 row_shr:8 row_mask:0xf bank_mask:0xf
    v_mov_b32 v76, v93
    v_add_u32 v78, v93, v85
    v_add_u32 v79, v93, v86
    v_add_u32 v80, v93, v87
    v_add_u32 v81, v93, v88
    v_add_u32 v82, v93, v89
    v_add_u32 v83, v93, v90
    ds_write_b128 v73, v[76:79] offset:{L_BASE}
    ds_write_b128 v73, v[80:83] offset:{L_BASE+16}
    v_readlane_b32 s28, v93, s3
    v_readlane_b32 s29, v91, s3
    v_readlane_b32 s30, v92, s3
    v_readlane_b32 s31, v94, 15
    s_waitcnt lgkmcnt(2)
    v_readfirstlane_b32 s35, v75
    s_mov_b32 s10, {L_COEF}
    s_waitcnt lgkmcnt(0)""")
    for p in range(NP):
        A(f"    ds_read_b32 v{TB(p)}, v{TB(p)} offset:{L_BASE}")
    A(f"""    v_add_u32 v76, s29, v0
    v_cmp_gt_u32 vcc, s30, v76
    v_add_u32 v76, s28, v76
    v_lshlrev_b32 v77, 2, v76
    v_lshl_add_u32 v76, v76, 3, s10
    v_mov_b32 v78, 0
    v_mov_b32 v79, 0
    v_mov_b32 v80, 0x800000""")
    for p in range(NP):
        A(f"""    s_waitcnt lgkmcnt({NP-1-p})
    v_add_u32 v{TB(p)}, v{TB(p)}, v{RA(p)+3}
    v_lshl_add_u32 v{RA(p)+3}, v{TB(p)}, 3, s10
    v_lshlrev_b32 v{TB(p)}, 2, v{TB(p)}""")
    for p in range(NP):
        A(f"""    s_mov_b64 exec, s[{MA(p)}:{MA(p)+1}]
    ds_write_b64 v{RA(p)+3}, v[{RA(p)}:{RA(p)+1}]
    ds_write_b32 v{TB(p)}, v{RA(p)+2} offset:{L_KEY}""")
    A(f"""    s_mov_b64 exec, vcc
    ds_write_b64 v76, v[78:79]
    ds_write_b32 v77, v80 offset:{L_KEY}
    s_mov_b64 exec, -1""")
    for p in range(NP):
        A(f"""    s_cmp_eq_u64 s[{MB(p)}:{MB(p)+1}], 0
    s_cbranch_scc1 L_nd{p}
    v_and_b32 v76, s11, v{RB(p)+2}
    ds_read_b32 v76, v76 offset:{L_BASE}
    s_waitcnt lgkmcnt(0)
    v_add_u32 v76, v76, v{RB(p)+3}
    v_lshl_add_u32 v77, v76, 3, s10
    v_lshlrev_b32 v76, 2, v76
    s_mov_b64 exec, s[{MB(p)}:{MB(p)+1}]
    ds_write_b64 v77, v[{RB(p)}:{RB(p)+1}]
    ds_write_b32 v76, v{RB(p)+2} offset:{L_KEY}
    s_mov_b64 exec, -1
L_nd{p}:""")
    NBM = o.get('nbm', 3)
    A(f"""    v_and_b32 v1, 15, v0
    v_lshrrev_b32 v31, 4, v0
    v_lshlrev_b32 v31, 3, v31
    v_add_u32 v31, s28, v31
    v_lshrrev_b32 v7, 2, v1
    v_add_u32 v7, v7, v31
    v_lshl_add_u32 v30, v7, 3, s10
    v_lshl_or_b32 v30, v0, 30, v30
    v_lshlrev_b32 v6, 2, v31
    v_lshlrev_b32 v7, 2, v7
    v_add_u32 v7, {L_KEY}, v7
    v_lshlrev_b32 v1, 4, v1
    s_lshr_b32 s30, s30, 5
    s_lshr_b32 s31, s31, 5
    s_max_u32 s31, s31, {NBM}
    s_sub_u32 s31, s31, {NBM}
    s_mov_b32 s28, 0x00fffe00
    s_mov_b32 s29, 0xc0000000
    s_mov_b32 s38, 0x05040100
    s_mov_b32 s39, 0x07060302
    s_waitcnt lgkmcnt(0)
    s_barrier                                 ; B6
;TS sorted
;CLK 0
    s_cmp_lg_u32 s30, 0
    s_cbranch_scc1 L_go
    s_waitcnt vmcnt(0)
    s_barrier
    s_branch L_done
L_go:""")

    def read_keys():
        A(f"""    ds_read_b128 v[8:11], v6 offset:{L_KEY}
    ds_read_b128 v[12:15], v6 offset:{L_KEY+16}
    ds_read2_b32 v[28:29], v7 offset0:0 offset1:4
    v_add_u32 v6, 128, v6
    v_add_u32 v7, 128, v7""")
    def mk_addr():
        for e in range(8):
            A(f"    v_and_or_b32 v{8+e}, v{8+e}, s28, v1")
        A("""    v_bitop3_b32 v28, v28, s29, v30 bitop3:0x6a
    v_bitop3_b32 v29, v29, s29, v30 bitop3:0x6a
    v_add_u32 v30, 256, v30""")
    def issue(h):
        for e in range(8):
            r = 32 + h*32 + e*4
            A(f"    buffer_load_dwordx4 v[{r}:{r+3}], v{8+e}, s[12:15], 0 offen offset:{h*256}")
    def read_b():
        A("""    ds_read_b64_tr_b16 v[16:17], v28
    ds_read_b64_tr_b16 v[18:19], v29 offset:32""")
    def half(h):
        D = 32 + h*32
        def perms(j):
            t = 20 + (j % 2) * 4
            sel = 's38' if j % 2 == 0 else 's39'
            for q in range(4):
                A(f"    v_perm_b32 v{t+q}, v{D + (2*q+1)*4 + j//2}, v{D + 2*q*4 + j//2}, {sel}")
        def mfma(j):
            t = 20 + (j % 2) * 4
            a = ACC + (h*8 + j) * 4
            A(f"    v_mfma_f32_16x16x32_bf16 v[{a}:{a+3}], v[{t}:{t+3}], v[16:19], v[{a}:{a+3}]")
        perms(0)
        for j in range(8):
            if j + 1 < 8:
                perms(j + 1)
            else:
                A("    s_nop 1")
            mfma(j)

    read_keys()
    A("    s_waitcnt lgkmcnt(0)")
    mk_addr()
    issue(0); issue(1)
    read_b()
    read_keys()
    A("""    s_waitcnt vmcnt(16)
    s_barrier                                 ; B7
    s_sub_u32 s30, s30, 1
    s_cmp_eq_u32 s30, 0
    s_cbranch_scc1 L_last
L_loop:
    s_waitcnt lgkmcnt(0)""")
    mk_addr()
    A("    s_waitcnt vmcnt(8)")
    half(0)
    issue(0)
    A("""    s_cmp_eq_u32 s31, 0
    s_cbranch_scc1 L_nobar
    s_sub_u32 s31, s31, 1
    s_barrier
L_nobar:
    s_waitcnt vmcnt(8)""")
    half(1)
    issue(1)
    read_b()
    read_keys()
    A("""    s_sub_u32 s30, s30, 1
    s_cmp_lg_u32 s30, 0
    s_cbranch_scc1 L_loop
L_last:
    s_waitcnt vmcnt(8) lgkmcnt(0)""")
    half(0)
    A("    s_waitcnt vmcnt(0)")
    half(1)
    A(f"""L_done:
    s_cmp_eq_u32 s35, 0
    s_cbranch_scc1 L_epi
    s_barrier
    v_mov_b32 v6, 0
    v_lshlrev_b32 v7, 2, v0
    ds_write_b32 v7, v6
    ds_write_b32 v7, v6 offset:256
    ds_write_b32 v7, v6 offset:264
    s_add_u32 s33, s33, 32
    v_add_u32 v5, 32, v5
    v_add_u32 v4, {32*12}, v4
    s_waitcnt lgkmcnt(0)
    s_barrier
    s_branch L_round
L_epi:
;TS main
;CLK 1""")
    WB = 64
    A("    v_lshlrev_b32 v1, 4, v0")
    order = [(p, u, t) for p in (0, 2, 1, 3, 4) for u in range(2) for t in range(4)]
    fr = lambda put: put[0]*8 + put[1]*4 + put[2]
    def wread_i(n):
        f = fr(order[n]); r = WB + (n % 8) * 4
        A(f"    ds_read_b128 v[{r}:{r+3}], v1 offset:{L_W + f*1024}")
    for n in range(8):
        wread_i(n)
    A("""    v_and_b32 v2, 3, v0
    v_cmp_eq_u32 s[40:41], 0, v2
    v_cmp_eq_u32 s[42:43], 1, v2
    v_cmp_eq_u32 s[44:45], 2, v2
    v_cmp_eq_u32 s[46:47], 3, v2
    s_or_b64 s[48:49], s[40:41], s[42:43]
    s_or_b64 s[50:51], s[40:41], s[44:45]
    s_or_b64 s[52:53], s[40:41], s[46:47]
    v_cndmask_b32 v3, 0, 1.0, s[48:49]        ; b1
    v_cndmask_b32 v4, 0, 1.0, s[50:51]        ; b2
    v_cndmask_b32 v5, 0, 1.0, s[52:53]        ; b3
    v_cndmask_b32 v6, 0, 1.0, s[44:45]
    v_cndmask_b32 v7, 0, 1.0, s[46:47]
    v_cndmask_b32 v32, 0, 1.0, s[42:43]
    v_cndmask_b32 v6, v6, -1.0, s[46:47]      ; c1
    v_cndmask_b32 v7, v7, -1.0, s[42:43]      ; c2
    v_cndmask_b32 v2, v32, -1.0, s[44:45]     ; c3""")
    acc = lambda h, j, r: ACC + (h*8 + j)*4 + r
    for h in range(2):
        for j in range(4):
            for r in range(4):
                A(f"    v_permlane32_swap_b32 v{acc(h,j,r)}, v{acc(h,j+4,r)}")
    PA, PB, PC = 8, 16, 24
    T = lambda c, r, j: acc(c // 2, j + 4*(c % 2), r)
    for u in range(2):
        for q in range(4):
            r = 2*u + q // 2; j = (q % 2) * 2
            A(f"    v_cvt_pk_bf16_f32 v{PA+u*4+q}, v{T(0,r,j)}, v{T(0,r,j+1)}")
    dp = {1: 'quad_perm:[1,0,3,2]', 2: 'quad_perm:[2,3,0,1]', 3: 'quad_perm:[3,2,1,0]'}
    for u in range(2):
        for q in range(4):
            r = 2*u + q // 2; j = (q % 2) * 2
            for (dst, k) in ((32, (3, 4, 5)), (34, (6, 7, 2))):
                for c in (1, 2, 3):
                    for d in range(2):
                        op = 'v_mul_f32_dpp' if c == 1 else 'v_fmac_f32_dpp'
                        A(f"    {op} v{dst+d}, v{T(c,r,j+d)}, v{k[c-1]} {dp[c]} row_mask:0xf bank_mask:0xf")
            A(f"    v_cvt_pk_bf16_f32 v{PB+u*4+q}, v32, v33")
            A(f"    v_cvt_pk_bf16_f32 v{PC+u*4+q}, v34, v35")
    D0, D1 = 32, 48
    A("    s_nop 1")
    seen = set()
    for n, (p, u, t) in enumerate(order):
        P = {0: PA, 2: PA, 1: PB, 3: PB, 4: PC}[p] + u*4
        D = (D0 if p < 2 else D1) + t*4
        w = WB + (n % 8) * 4
        c = f"v[{D}:{D+3}]" if D in seen else "0"
        seen.add(D)
        A(f"    s_waitcnt lgkmcnt({min(7, len(order)-1-n)})")
        A(f"    v_mfma_f32_16x16x32_bf16 v[{D}:{D+3}], v[{P}:{P+3}], v[{w}:{w+3}], {c}")
        if n + 8 < len(order):
            wread_i(n + 8)
    A(f"""    s_mul_i32 s10, s2, 40
    s_lshl_b32 s11, s3, 2
    s_add_u32 s10, s10, s11
    s_lshl_b32 s10, s10, 9
    s_add_u32 s8, s8, s10
    s_addc_u32 s9, s9, 0
    v_lshrrev_b32 v2, 4, v0
    v_and_b32 v3, 15, v0
    v_lshlrev_b32 v2, 9, v2
    v_lshl_add_u32 v2, v3, 3, v2
    s_mov_b32 s10, 0xbfb8aa3b                 ; -log2(e)""")
    for t in range(4):
        A(f"    v_mul_f32 v{8+t}, s10, v{D0+t*4}")
    for t in range(4):
        A(f"    v_exp_f32 v{8+t}, v{8+t}")
    A(f"""    v_cvt_pk_bf16_f32 v12, v{D0}, v{D0+4}
    v_cvt_pk_bf16_f32 v13, v{D0+8}, v{D0+12}""")
    for t in range(4):
        A(f"    v_add_f32 v{8+t}, 1.0, v{8+t}")
    A("    global_store_dwordx2 v2, v[12:13], s[8:9]")
    for t in range(4):
        A(f"    v_rcp_f32 v{8+t}, v{8+t}")
    A("    s_nop 0")
    for i in range(1, 4):
        for t in range(4):
            A(f"    v_mul_f32 v{D1+t*4+i}, v{D1+t*4+i}, v{8+t}")
        A(f"""    v_cvt_pk_bf16_f32 v{12+2*i}, v{D1+i}, v{D1+4+i}
    v_cvt_pk_bf16_f32 v{13+2*i}, v{D1+8+i}, v{D1+12+i}
    global_store_dwordx2 v2, v[{12+2*i}:{13+2*i}], s[8:9] offset:{i*128}""")
    A(""";TSOUT
L_end:
    s_endpgm""")

    A(f"""L_help:
    s_load_dwordx4 s[60:63], s[0:1], 40
    s_load_dwordx2 s[64:65], s[0:1], 56       ; w_si1
    s_load_dwordx2 s[66:67], s[0:1], 80
    v_and_b32 v0, 63, v0
    v_mov_b32 v40, 0
    s_barrier                                 ; B1
    s_waitcnt lgkmcnt(0)
    s_mov_b32 s12, s4                         ; x descriptor
    s_mov_b32 s13, s5
    s_mov_b32 s14, 5120000
    s_mov_b32 s15, 0x20000
    s_cmp_lg_u32 s2, 0
    s_cbranch_scc1 L_h1
    s_add_u32 s48, s6, {WS_NONCE}
    s_addc_u32 s49, s7, 0
    global_load_dword v41, v40, s[48:49] sc1
    s_mov_b32 s10, 1664525
    s_waitcnt vmcnt(0)
    v_mul_lo_u32 v41, v41, s10
    v_add_u32 v41, 0x3c6ef35f, v41
    v_max_u32 v41, 1, v41
    global_store_dword v40, v41, s[66:67] sc1
    global_store_dword v40, v41, s[48:49] sc1
L_h1:
    s_sub_u32 s53, s2, 1
    s_cmp_ge_u32 s53, 40
    s_cbranch_scc1 L_h2
    s_lshr_b32 s55, s53, 3
    s_bfe_u32 s56, s53, 0x10002
    s_and_b32 s57, s53, 3
    v_lshrrev_b32 v1, 4, v0
    v_and_b32 v2, 1, v1
    v_lshlrev_b32 v2, 5, v2
    v_lshrrev_b32 v1, 1, v1
    v_lshl_add_u32 v2, v1, 2, v2
    s_lshl_b32 s56, s56, 4
    v_add_u32 v2, s56, v2                     ; ch0 = 32*(g&1) + 4*(g>>1) + 16*u
    v_and_b32 v3, 15, v0
    v_lshlrev_b32 v3, 2, v3
    v_add_u32 v3, s57, v3                     ; c_out = 4n + t
    s_lshl_b32 s58, s55, 6
    v_add_u32 v4, s58, v2
    v_lshlrev_b32 v4, 1, v4
    s_cmp_lt_u32 s55, 2
    s_cselect_b32 s59, 0, 128
    s_cselect_b32 s62, s62, s64
    s_cselect_b32 s63, s63, s65
    s_sub_u32 s58, s58, s59
    v_add_u32 v5, s58, v2
    v_lshlrev_b32 v5, 7, v5
    v_lshl_add_u32 v5, v3, 1, v5
    s_lshl_b32 s54, s53, 10
    s_add_u32 s54, s54, {WS_W}
    v_lshlrev_b32 v6, 4, v0
    s_add_u32 s50, s6, s54
    s_addc_u32 s51, s7, 0
    global_load_dwordx2 v[8:9], v4, s[60:61]
    global_load_dwordx2 v[10:11], v4, s[60:61] offset:16""")
    for e in range(8):
        row = (e // 4) * 8 + e % 4
        A(f"    global_load_ushort v{12+e}, v5, s[62:63] offset:{row*128}")
    A("    s_mov_b32 s56, 0xffff0000\n    s_waitcnt vmcnt(0)")
    for e in range(8):
        src = 8 + e // 2
        A(f"    v_lshlrev_b32 v{20+e}, 16, v{src}" if e % 2 == 0 else f"    v_and_b32 v{20+e}, s56, v{src}")
        A(f"    v_lshlrev_b32 v{12+e}, 16, v{12+e}")
        A(f"    v_mul_f32 v{12+e}, v{12+e}, v{20+e}")
    for q in range(4):
        A(f"    v_cvt_pk_bf16_f32 v{28+q}, v{12+2*q}, v{13+2*q}")
    A(f"""    global_store_dwordx4 v6, v[28:31], s[50:51] sc1
L_h2:
    v_lshlrev_b32 v1, 7, v0
    s_mov_b32 s10, {SPIN}
    global_load_dword v41, v40, s[66:67] sc1
    s_barrier                                 ; B2
    s_branch L_hchk
L_hpoll:
    global_load_dword v41, v40, s[66:67] sc1
    s_sub_u32 s10, s10, 1
    s_cbranch_scc1 L_end
L_hchk:
    s_waitcnt vmcnt(0)
    v_cmp_eq_u32 vcc, 0, v41
    s_cbranch_vccnz L_hpoll
    v_mov_b32 v42, {L_NONCE}
    ds_write_b32 v42, v41""")
    if o.get('mall', 1):
        A(f"""    s_mul_i32 s10, s2, {160*128}
    buffer_load_dword v32, v1, s[12:15], s10 offen
    s_add_u32 s10, s10, 8192
    buffer_load_dword v33, v1, s[12:15], s10 offen
    s_add_u32 s10, s10, 4096
    buffer_load_dword v34, v1, s[12:15], s10 offen""")
    A("""    s_waitcnt lgkmcnt(0)
    s_barrier                                 ; B3
    s_barrier                                 ; B4
    s_endpgm""")


def gen(o):
    A = Asm()
    A(HDR.rstrip('\n'))
    A(f"; @launch grid=({NCH},1,1) block=(704,1,1) lds={L_END}")
    A('.amdgcn_target "amdgcn-amd-amdhsa--gfx950"\n.text')
    gen_body(A, o)
    ts = o.get('ts') or []
    A(f""".section .rodata,"a"
.p2align 6
.amdhsa_kernel {NAME}
  .amdhsa_next_free_vgpr 164
  .amdhsa_next_free_sgpr {102 if ts else 72}
  .amdhsa_accum_offset 164
  .amdhsa_group_segment_fixed_size 0
  .amdhsa_kernarg_size 96
  .amdhsa_user_sgpr_count 2
  .amdhsa_user_sgpr_kernarg_segment_ptr 1
  .amdhsa_system_sgpr_workgroup_id_x 1
.end_amdhsa_kernel""")
    out = Asm()
    names = []
    for line in A.L:
        if line.startswith(';TS '):
            nm = line.split()[1]
            if (ts == 1 or nm in ts) and len(names) < 11:
                k = len(names)
                out(f"    s_memrealtime s[{74+2*k}:{75+2*k}]")
                names.append(nm)
        elif line.startswith(';CLK'):
            if ts:
                k = int(line.split()[1])
                out(f"    s_memtime s[{98+2*k}:{99+2*k}]")
        elif line.startswith(';TSOUT'):
            if ts:
                n = len(names)
                out(f"""    s_waitcnt vmcnt(0)
    s_memrealtime s[{74+2*n}:{75+2*n}]
    s_waitcnt lgkmcnt(0)
    s_mul_i32 s72, s2, 10
    s_add_u32 s72, s72, s3
    s_lshl_b32 s72, s72, 6
    s_add_u32 s72, s72, {WS_TS}
    s_add_u32 s6, s6, s72
    s_addc_u32 s7, s7, 0
    v_mov_b32 v0, 0
    s_sub_u32 s98, s100, s98
    v_mov_b32 v1, s98
    global_store_dword v0, v1, s[6:7] offset:60""")
                for k in range(n + 1):
                    out(f"""    v_mov_b32 v1, s{74+2*k}
    global_store_dword v0, v1, s[6:7] offset:{4*k}""")
                names.append('end')
        else:
            out.L.append(line)
    global TSNAMES
    TSNAMES = names
    return out.text()


if __name__ == '__main__':
    o = eval(sys.argv[2]) if len(sys.argv) > 2 else {}
    open(sys.argv[1], 'w').write(gen(o))
```

```python
import sys

NAME = 'gather_scatter__tensor_product_equiv_equiformer__graph_kernel'
HDR = """; gather_scatter tensor product (equiformer) -- one launch, 250 co-resident workgroups of 11 waves
"""

NCH = 250
CH = 2560
RECB = CH * 12
WS_INB = 0x800000
WS_W = 0x900000
WS_NONCE = 0x910000
WS_TS = 0x1000000
SPIN = 30000

L_CNT = 0
L_FLAG = 512
L_NONCE = 520
L_BASE = 576
L_W = 2048
L_C1 = 2048
L_B1 = 3072
L_ST = 4096
L_KEY = L_W + 40960
CAP = 8320
L_COEF = L_KEY + CAP * 4
L_END = L_COEF + CAP * 8


class Asm:
    def __init__(self):
        self.L = []
    def __call__(self, s):
        for line in s.strip('\n').split('\n'):
            self.L.append(line)
    def text(self):
        return '\n'.join(self.L) + '\n'


def gen_body(A, o):
    NP = 7
    ACC = 96
    RA = lambda p: 8 + 4*p
    RB = lambda p: 36 + 4*p
    TB = lambda p: 64 + p
    MA = lambda p: 40 + 2*p
    MB = lambda p: 54 + 2*p
    PF = o.get('pf', 6500)
    A(f"""
.globl {NAME}
.p2align 8
.type {NAME},@function
{NAME}:
    s_cmp_ge_u32 s2, {NCH}
    s_cbranch_scc1 L_end
;TS start
    s_load_dwordx4 s[40:43], s[0:1], 8
    s_load_dwordx4 s[44:47], s[0:1], 24
    s_load_dwordx2 s[6:7], s[0:1], 88         ; ws
    s_load_dwordx2 s[4:5], s[0:1], 0          ; x
    s_load_dwordx2 s[8:9], s[0:1], 72         ; out
    v_lshrrev_b32 v1, 6, v0
    v_lshlrev_b32 v2, 3, v0
    v_readfirstlane_b32 s3, v1                ; wave
    v_mul_u32_u24 v3, 24, v0
    v_lshlrev_b32 v1, 4, v0
    s_cmp_eq_u32 s3, 10
    s_cbranch_scc1 L_help
    s_mul_i32 s54, s2, {CH*4}
    s_mul_i32 s55, s2, {CH*2}
    s_mul_i32 s56, s2, {CH*6}
    s_mul_i32 s57, s2, {RECB}
    s_waitcnt lgkmcnt(0)
    s_add_u32 s46, s46, s54
    s_addc_u32 s47, s47, 0
    global_load_dwordx4 v[4:7], v1, s[46:47]  ; dst
    s_add_u32 s44, s44, s54
    s_addc_u32 s45, s45, 0
    global_load_dwordx4 v[8:11], v1, s[44:45] ; src
    s_add_u32 s42, s42, s55
    s_addc_u32 s43, s43, 0
    global_load_dwordx2 v[12:13], v2, s[42:43] ; e_attr
    s_add_u32 s40, s40, s56
    s_addc_u32 s41, s41, 0
    global_load_dwordx4 v[14:17], v3, s[40:41] ; rhat
    global_load_dwordx2 v[18:19], v3, s[40:41] offset:16
    v_mov_b32 v44, 0
    v_lshlrev_b32 v45, 2, v0
    ds_write_b32 v45, v44
    ds_write_b32 v45, v44 offset:1024
    s_add_u32 s48, s6, s57
    s_addc_u32 s49, s7, 0
    s_lshl_b32 s57, s2, 3
    s_add_u32 s57, s57, {WS_INB}
    s_add_u32 s50, s6, s57
    s_addc_u32 s51, s7, 0
    s_mov_b32 s12, s4                         ; x descriptor
    s_mov_b32 s13, s5
    s_mov_b32 s14, 5120000
    s_mov_b32 s15, 0x20000
    s_lshl_b32 s57, s2, 11
    s_add_u32 s57, s57, {WS_INB}
    s_add_u32 s16, s6, s57
    s_addc_u32 s17, s7, 0
    s_mov_b32 s18, {NCH*8}
    s_mov_b32 s19, 0x20000
    s_mov_b32 s20, s6
    s_mov_b32 s21, s7
    s_mov_b32 s22, {NCH*RECB}
    s_mov_b32 s23, 0x20000
    s_add_u32 s24, s6, {WS_W}
    s_addc_u32 s25, s7, 0
    s_mov_b32 s26, 40960
    s_mov_b32 s27, 0x20000
    s_mov_b32 s54, 52429
    s_mov_b32 s55, 6711
    s_mov_b32 s56, 0xffff0000
    s_movk_i32 s57, {L_ST}
    v_mov_b32 v46, 1
    v_and_b32 v0, 63, v0
    v_lshlrev_b32 v47, 4, v0                  ; lane*16
    s_waitcnt lgkmcnt(0)
    s_barrier                                 ; B1""")
    for i in range(64):
        A(f"    v_mov_b32 v{ACC+i}, 0")
    A("    s_waitcnt vmcnt(4)\n;TS dst")
    for i in range(4):
        A(f"""    v_mul_u32_u24 v{20+i}, s54, v{4+i}
    v_lshrrev_b32 v{20+i}, 21, v{20+i}          ; bucket""")
    for i in range(4):
        A(f"""    v_mul_u32_u24 v{48+i}, 40, v{20+i}
    v_lshlrev_b32 v{20+i}, 2, v{20+i}
    ds_add_rtn_u32 v{24+i}, v{20+i}, v46 offset:{L_C1}""")
    for i in range(4):
        A(f"    v_sub_u32 v{4+i}, v{4+i}, v{48+i}")
    A("""    s_waitcnt lgkmcnt(0)
    s_barrier                                 ; B2
;TS hist1""")
    A(f"""    ds_read_b128 v[48:51], v47 offset:{L_C1}
    v_add_u32 v2, {CH*4}, v1
    v_add_u32 v3, {CH*8}, v1
    s_waitcnt lgkmcnt(0)
    v_add_u32 v52, v48, v49
    v_add_u32 v53, v52, v50
    v_add_u32 v54, v53, v51
    v_mov_b32 v55, v54
    s_nop 1
    v_add_u32_dpp v55, v55, v55 row_shr:1 row_mask:0xf bank_mask:0xf
    s_nop 1
    v_add_u32_dpp v55, v55, v55 row_shr:2 row_mask:0xf bank_mask:0xf
    s_nop 1
    v_add_u32_dpp v55, v55, v55 row_shr:4 row_mask:0xf bank_mask:0xf
    s_nop 1
    v_add_u32_dpp v55, v55, v55 row_shr:8 row_mask:0xf bank_mask:0xf
    s_nop 1
    v_add_u32_dpp v55, v55, v55 row_bcast:15 row_mask:0xa bank_mask:0xf
    s_nop 1
    v_add_u32_dpp v55, v55, v55 row_bcast:31 row_mask:0xc bank_mask:0xf
    v_sub_u32 v56, v55, v54
    v_add_u32 v57, v56, v48
    v_add_u32 v58, v56, v52
    v_add_u32 v59, v56, v53
    ds_write_b128 v47, v[56:59] offset:{L_B1}
    v_lshl_or_b32 v60, v48, 12, v56
    v_lshl_or_b32 v61, v49, 12, v57
    v_lshl_or_b32 v62, v50, 12, v58
    v_lshl_or_b32 v63, v51, 12, v59
    s_waitcnt lgkmcnt(0)""")
    for i in range(4):
        A(f"    ds_read_b32 v{64+i}, v{20+i} offset:{L_B1}")
    A("    s_waitcnt vmcnt(3)")
    for i in range(4):
        k = 30 + 4*i
        A(f"""    v_mul_u32_u24 v48, s55, v{8+i}
    v_lshrrev_b32 v48, 23, v48
    v_lshrrev_b32 v49, 2, v{4+i}
    v_lshl_add_u32 v48, v49, 3, v48
    v_lshlrev_b32 v{k}, 9, v{8+i}
    v_lshl_or_b32 v{k}, v48, 2, v{k}
    v_lshl_or_b32 v{k}, v{4+i}, 30, v{k}""")
    A("    s_waitcnt lgkmcnt(0)")
    for i in range(4):
        A(f"""    v_add_u32 v{64+i}, v{64+i}, v{24+i}
    v_mad_u32_u24 v{64+i}, v{64+i}, 12, s57
    ds_write_b32 v{64+i}, v{30+4*i} offset:8""")
    A("    s_waitcnt vmcnt(0)\n;TS loads")
    for i in range(4):
        src = 12 + i // 2
        A(f"    v_lshlrev_b32 v{68+i}, 16, v{src}" if i % 2 == 0 else f"    v_and_b32 v{68+i}, s56, v{src}")
    for i in range(4):
        for j in range(3*i, 3*i+3):
            src = 14 + j // 2
            A(f"    v_lshlrev_b32 v{72+j}, 16, v{src}" if j % 2 == 0 else f"    v_and_b32 v{72+j}, s56, v{src}")
            A(f"    v_mul_f32 v{72+j}, v{68+i}, v{72+j}")
        r = 28 + 4*i
        A(f"""    v_cvt_pk_bf16_f32 v{r}, v{68+i}, v{72+3*i}
    v_cvt_pk_bf16_f32 v{r+1}, v{73+3*i}, v{74+3*i}
    ds_write2_b32 v{64+i}, v{r}, v{r+1} offset0:0 offset1:1""")
    A(f"""    v_mov_b32 v44, {L_NONCE}
    s_waitcnt lgkmcnt(0)
    s_barrier                                 ; B3
;TS staged
    ds_read_b128 v[28:31], v1 offset:{L_ST}
    ds_read_b128 v[32:35], v1 offset:{L_ST+CH*4}
    ds_read_b128 v[36:39], v1 offset:{L_ST+CH*8}
    ds_read_b32 v44, v44
    s_waitcnt lgkmcnt(3)
    global_store_dwordx4 v1, v[28:31], s[48:49] sc1
    s_waitcnt lgkmcnt(2)
    global_store_dwordx4 v2, v[32:35], s[48:49] sc1
    s_waitcnt lgkmcnt(1)
    global_store_dwordx4 v3, v[36:39], s[48:49] sc1
    s_cmp_eq_u32 s3, 1
    s_cselect_b64 s[58:59], -1, 0
    s_cmp_eq_u32 s3, 2
    s_cselect_b64 s[60:61], -1, 0
    s_cmp_eq_u32 s3, 3
    s_cselect_b64 s[62:63], -1, 0
    v_cndmask_b32 v60, v60, v61, s[58:59]
    v_cndmask_b32 v60, v60, v62, s[60:61]
    v_cndmask_b32 v60, v60, v63, s[62:63]
    v_lshlrev_b32 v62, 13, v0
    s_lshl_b32 s58, s3, 11
    v_add_u32 v62, s58, v62
    s_mul_i32 s58, s3, 25
    v_add_u32 v45, s58, v0
    v_lshlrev_b32 v45, 3, v45
    v_lshrrev_b32 v2, 4, v0
    v_add_u32 v4, s58, v2
    s_mov_b32 s10, {RECB}
    v_mul_lo_u32 v4, v4, s10
    v_and_b32 v5, 15, v0
    v_mad_u32_u24 v4, v5, 12, v4
    v_lshlrev_b32 v2, 2, v2
    s_mov_b32 s33, 0
    s_waitcnt lgkmcnt(0)
    v_readfirstlane_b32 s70, v44
    s_and_b32 s71, s70, 0xff000000
    s_xor_b32 s71, s71, 0xa5000000
    v_or_b32 v60, s71, v60
    v_mov_b32 v61, s70
    s_waitcnt vmcnt(0)
    s_barrier                                 ; B4
;TS drained
    s_cmp_ge_u32 s3, 4
    s_cbranch_scc1 L_nopub
    global_store_dwordx2 v62, v[60:61], s[50:51] sc1
L_nopub:
    s_mov_b32 s10, {SPIN}
    s_mov_b64 exec, 0x1ffffff
L_poll:
    buffer_load_dwordx2 v[6:7], v45, s[16:19], 0 offen sc1
    s_sub_u32 s10, s10, 1
    s_cbranch_scc1 L_end
    s_waitcnt vmcnt(0)
    v_xor_b32 v3, s71, v6
    v_xor_b32 v7, s70, v7
    v_lshrrev_b32 v6, 24, v3
    v_or_b32 v6, v6, v7
    v_cmp_ne_u32 vcc, 0, v6
    s_cbranch_vccnz L_poll
    s_not_b64 exec, exec
    v_mov_b32 v3, 0
    s_mov_b64 exec, -1
;TS polled
L_round:
    s_nop 0""")
    for p in range(NP):
        A(f"    ds_bpermute_b32 v{TB(p)}, v2, v3 offset:{16*p}")
    A(f"""    v_mov_b32 v72, 0x40000000
    v_add_u32 v73, 16, v5
    v_mov_b32 v74, 0
    s_add_u32 s34, s33, 32
    s_movk_i32 s11, 0xfff""")
    for p in range(NP):
        A(f"""    s_waitcnt lgkmcnt({NP-1-p})
    v_lshrrev_b32 v75, 12, v{TB(p)}
    v_and_b32 v76, s11, v{TB(p)}
    v_cmp_lt_u32 s[{MA(p)}:{MA(p)+1}], v5, v75
    v_cmp_lt_u32 s[{MB(p)}:{MB(p)+1}], v73, v75
    v_mad_u32_u24 v{TB(p)}, v76, 12, v4
    v_max_u32 v74, v74, v75
    v_cndmask_b32 v76, v72, v{TB(p)}, s[{MA(p)}:{MA(p)+1}]
    s_mov_b32 s10, {p*4*RECB}
    buffer_load_dwordx3 v[{RA(p)}:{RA(p)+2}], v76, s[20:23], s10 offen sc1""")
    for p in range(NP):
        A(f"""    s_cmp_eq_u64 s[{MB(p)}:{MB(p)+1}], 0
    s_cbranch_scc1 L_nb{p}
    v_cndmask_b32 v76, v72, v{TB(p)}, s[{MB(p)}:{MB(p)+1}]
    s_mov_b32 s10, {p*4*RECB}
    buffer_load_dwordx3 v[{RB(p)}:{RB(p)+2}], v76, s[20:23], s10 offen offset:192 sc1
L_nb{p}:""")
    NPF = 0
    if PF:
        NPF = (PF * 4 + 31*640 - 1) // (31*640)
        A(f"""    s_lshr_b32 s10, s2, 3
    s_min_u32 s10, s10, 30
    s_mul_i32 s11, s3, 31
    s_add_u32 s10, s10, s11
    s_lshl_b32 s10, s10, 13
    v_lshlrev_b32 v76, 7, v0
    s_mov_b32 s14, {PF*512}""")
        for i in range(NPF):
            A(f"    buffer_load_dword v{160+i}, v76, s[12:15], s10 offen")
            if i + 1 < NPF:
                A(f"    s_add_u32 s10, s10, {310*8192}")
        A("    s_mov_b32 s14, 5120000")
    A(f"""    v_cmp_lt_u32 vcc, s34, v74
    v_mov_b32 v6, 1
    v_mov_b32 v7, {L_FLAG}
    s_and_saveexec_b64 s[36:37], vcc
    ds_write_b32 v7, v6
    s_mov_b64 exec, -1
    s_movk_i32 s11, 0x1fc
    s_waitcnt vmcnt({NPF})
;TS recs""")
    for p in range(NP):
        A(f"""    v_and_b32 v{TB(p)}, s11, v{RA(p)+2}
    s_mov_b64 exec, s[{MA(p)}:{MA(p)+1}]
    ds_add_rtn_u32 v{RA(p)+3}, v{TB(p)}, v6
    s_mov_b64 exec, -1""")
    for p in range(NP):
        A(f"""    s_cmp_eq_u64 s[{MB(p)}:{MB(p)+1}], 0
    s_cbranch_scc1 L_nc{p}
    v_and_b32 v76, s11, v{RB(p)+2}
    s_mov_b64 exec, s[{MB(p)}:{MB(p)+1}]
    ds_add_rtn_u32 v{RB(p)+3}, v76, v6
    s_mov_b64 exec, -1
L_nc{p}:""")
    A(f"""    v_and_b32 v72, 15, v0
    v_lshlrev_b32 v73, 5, v72
    v_lshlrev_b32 v77, 4, v0
    s_lshl_b32 s10, s3, 12
    s_add_u32 m0, s10, {L_W}
    s_waitcnt lgkmcnt(0)
    s_barrier                                 ; B5
;TS hist2
    ds_read_b128 v[84:87], v73
    ds_read_b128 v[80:83], v73 offset:16
    ds_read_b32 v75, v7
    buffer_load_dwordx4 v77, s[24:27], s10 offen sc1 lds
    buffer_load_dwordx4 v77, s[24:27], s10 offen offset:1024 sc1 lds
    buffer_load_dwordx4 v77, s[24:27], s10 offen offset:2048 sc1 lds
    buffer_load_dwordx4 v77, s[24:27], s10 offen offset:3072 sc1 lds
    s_waitcnt lgkmcnt(2)
    v_add_u32 v85, v84, v85                   ; p2
    v_add_u32 v86, v85, v86                   ; p3
    v_add_u32 v87, v86, v87                   ; p4
    s_waitcnt lgkmcnt(1)
    v_add_u32 v88, v87, v80                   ; p5
    v_add_u32 v89, v88, v81                   ; p6
    v_add_u32 v90, v89, v82                   ; p7
    v_add_u32 v91, v90, v83
    v_add_u32 v92, 31, v91
    v_and_b32 v92, 0xffffffe0, v92
    v_mov_b32 v93, v92
    v_cmp_gt_u32 vcc, 10, v72
    s_nop 0
    v_add_u32_dpp v93, v93, v93 row_shr:1 row_mask:0xf bank_mask:0xf
    v_cndmask_b32 v94, -1, v92, vcc
    s_nop 0
    v_add_u32_dpp v93, v93, v93 row_shr:2 row_mask:0xf bank_mask:0xf
    v_min_u32_dpp v94, v94, v94 row_shr:1 row_mask:0xf bank_mask:0xf
    s_nop 0
    v_add_u32_dpp v93, v93, v93 row_shr:4 row_mask:0xf bank_mask:0xf
    v_min_u32_dpp v94, v94, v94 row_shr:2 row_mask:0xf bank_mask:0xf
    s_nop 0
    v_add_u32_dpp v93, v93, v93 row_shr:8 row_mask:0xf bank_mask:0xf
    v_min_u32_dpp v94, v94, v94 row_shr:4 row_mask:0xf bank_mask:0xf
    v_sub_u32 v93, v93, v92
    v_add_u32 v77, v93, v84
    v_min_u32_dpp v94, v94, v94 row_shr:8 row_mask:0xf bank_mask:0xf
    v_mov_b32 v76, v93
    v_add_u32 v78, v93, v85
    v_add_u32 v79, v93, v86
    v_add_u32 v80, v93, v87
    v_add_u32 v81, v93, v88
    v_add_u32 v82, v93, v89
    v_add_u32 v83, v93, v90
    ds_write_b128 v73, v[76:79] offset:{L_BASE}
    ds_write_b128 v73, v[80:83] offset:{L_BASE+16}
    v_readlane_b32 s28, v93, s3
    v_readlane_b32 s29, v91, s3
    v_readlane_b32 s30, v92, s3
    v_readlane_b32 s31, v94, 15
    s_waitcnt lgkmcnt(2)
    v_readfirstlane_b32 s35, v75
    s_mov_b32 s10, {L_COEF}
    s_waitcnt lgkmcnt(0)""")
    for p in range(NP):
        A(f"    ds_read_b32 v{TB(p)}, v{TB(p)} offset:{L_BASE}")
    A(f"""    v_add_u32 v76, s29, v0
    v_cmp_gt_u32 vcc, s30, v76
    v_add_u32 v76, s28, v76
    v_lshlrev_b32 v77, 2, v76
    v_lshl_add_u32 v76, v76, 3, s10
    v_mov_b32 v78, 0
    v_mov_b32 v79, 0
    v_mov_b32 v80, 0x800000""")
    for p in range(NP):
        A(f"""    s_waitcnt lgkmcnt({NP-1-p})
    v_add_u32 v{TB(p)}, v{TB(p)}, v{RA(p)+3}
    v_lshl_add_u32 v{RA(p)+3}, v{TB(p)}, 3, s10
    v_lshlrev_b32 v{TB(p)}, 2, v{TB(p)}""")
    for p in range(NP):
        A(f"""    s_mov_b64 exec, s[{MA(p)}:{MA(p)+1}]
    ds_write_b64 v{RA(p)+3}, v[{RA(p)}:{RA(p)+1}]
    ds_write_b32 v{TB(p)}, v{RA(p)+2} offset:{L_KEY}""")
    A(f"""    s_mov_b64 exec, vcc
    ds_write_b64 v76, v[78:79]
    ds_write_b32 v77, v80 offset:{L_KEY}
    s_mov_b64 exec, -1""")
    for p in range(NP):
        A(f"""    s_cmp_eq_u64 s[{MB(p)}:{MB(p)+1}], 0
    s_cbranch_scc1 L_nd{p}
    v_and_b32 v76, s11, v{RB(p)+2}
    ds_read_b32 v76, v76 offset:{L_BASE}
    s_waitcnt lgkmcnt(0)
    v_add_u32 v76, v76, v{RB(p)+3}
    v_lshl_add_u32 v77, v76, 3, s10
    v_lshlrev_b32 v76, 2, v76
    s_mov_b64 exec, s[{MB(p)}:{MB(p)+1}]
    ds_write_b64 v77, v[{RB(p)}:{RB(p)+1}]
    ds_write_b32 v76, v{RB(p)+2} offset:{L_KEY}
    s_mov_b64 exec, -1
L_nd{p}:""")
    NBM = o.get('nbm', 3)
    A(f"""    v_and_b32 v1, 15, v0
    v_lshrrev_b32 v31, 4, v0
    v_lshlrev_b32 v31, 3, v31
    v_add_u32 v31, s28, v31
    v_lshrrev_b32 v7, 2, v1
    v_add_u32 v7, v7, v31
    v_lshl_add_u32 v30, v7, 3, s10
    v_lshl_or_b32 v30, v0, 30, v30
    v_lshlrev_b32 v6, 2, v31
    v_lshlrev_b32 v7, 2, v7
    v_add_u32 v7, {L_KEY}, v7
    v_lshlrev_b32 v1, 4, v1
    s_lshr_b32 s30, s30, 5
    s_lshr_b32 s31, s31, 5
    s_max_u32 s31, s31, {NBM}
    s_sub_u32 s31, s31, {NBM}
    s_mov_b32 s28, 0x00fffe00
    s_mov_b32 s29, 0xc0000000
    s_mov_b32 s38, 0x05040100
    s_mov_b32 s39, 0x07060302
    s_waitcnt lgkmcnt(0)
    s_barrier                                 ; B6
;TS sorted
;CLK 0
    s_cmp_lg_u32 s30, 0
    s_cbranch_scc1 L_go
    s_waitcnt vmcnt(0)
    s_barrier
    s_branch L_done
L_go:""")

    def read_keys():
        A(f"""    ds_read_b128 v[8:11], v6 offset:{L_KEY}
    ds_read_b128 v[12:15], v6 offset:{L_KEY+16}
    ds_read2_b32 v[28:29], v7 offset0:0 offset1:4
    v_add_u32 v6, 128, v6
    v_add_u32 v7, 128, v7""")
    def mk_addr():
        for e in range(8):
            A(f"    v_and_or_b32 v{8+e}, v{8+e}, s28, v1")
        A("""    v_bitop3_b32 v28, v28, s29, v30 bitop3:0x6a
    v_bitop3_b32 v29, v29, s29, v30 bitop3:0x6a
    v_add_u32 v30, 256, v30""")
    def issue(h):
        for e in range(8):
            r = 32 + h*32 + e*4
            A(f"    buffer_load_dwordx4 v[{r}:{r+3}], v{8+e}, s[12:15], 0 offen offset:{h*256}")
    def read_b():
        A("""    ds_read_b64_tr_b16 v[16:17], v28
    ds_read_b64_tr_b16 v[18:19], v29 offset:32""")
    def half(h):
        D = 32 + h*32
        def perms(j):
            t = 20 + (j % 2) * 4
            sel = 's38' if j % 2 == 0 else 's39'
            for q in range(4):
                A(f"    v_perm_b32 v{t+q}, v{D + (2*q+1)*4 + j//2}, v{D + 2*q*4 + j//2}, {sel}")
        def mfma(j):
            t = 20 + (j % 2) * 4
            a = ACC + (h*8 + j) * 4
            A(f"    v_mfma_f32_16x16x32_bf16 v[{a}:{a+3}], v[{t}:{t+3}], v[16:19], v[{a}:{a+3}]")
        perms(0)
        for j in range(8):
            if j + 1 < 8:
                perms(j + 1)
            else:
                A("    s_nop 1")
            mfma(j)

    read_keys()
    A("    s_waitcnt lgkmcnt(0)")
    mk_addr()
    issue(0); issue(1)
    read_b()
    read_keys()
    A("""    s_waitcnt vmcnt(16)
    s_barrier                                 ; B7
    s_sub_u32 s30, s30, 1
    s_cmp_eq_u32 s30, 0
    s_cbranch_scc1 L_last
L_loop:
    s_waitcnt lgkmcnt(0)""")
    mk_addr()
    A("    s_waitcnt vmcnt(8)")
    half(0)
    issue(0)
    A("""    s_cmp_eq_u32 s31, 0
    s_cbranch_scc1 L_nobar
    s_sub_u32 s31, s31, 1
    s_barrier
L_nobar:
    s_waitcnt vmcnt(8)""")
    half(1)
    issue(1)
    read_b()
    read_keys()
    A("""    s_sub_u32 s30, s30, 1
    s_cmp_lg_u32 s30, 0
    s_cbranch_scc1 L_loop
L_last:
    s_waitcnt vmcnt(8) lgkmcnt(0)""")
    half(0)
    A("    s_waitcnt vmcnt(0)")
    half(1)
    A(f"""L_done:
    s_cmp_eq_u32 s35, 0
    s_cbranch_scc1 L_epi
    s_barrier
    v_mov_b32 v6, 0
    v_lshlrev_b32 v7, 2, v0
    ds_write_b32 v7, v6
    ds_write_b32 v7, v6 offset:256
    ds_write_b32 v7, v6 offset:264
    s_add_u32 s33, s33, 32
    v_add_u32 v5, 32, v5
    v_add_u32 v4, {32*12}, v4
    s_waitcnt lgkmcnt(0)
    s_barrier
    s_branch L_round
L_epi:
;TS main
;CLK 1""")
    WB = 64
    A("    v_lshlrev_b32 v1, 4, v0")
    order = [(p, u, t) for p in (0, 2, 1, 3, 4) for u in range(2) for t in range(4)]
    fr = lambda put: put[0]*8 + put[1]*4 + put[2]
    def wread_i(n):
        f = fr(order[n]); r = WB + (n % 8) * 4
        A(f"    ds_read_b128 v[{r}:{r+3}], v1 offset:{L_W + f*1024}")
    for n in range(8):
        wread_i(n)
    A("""    v_and_b32 v2, 3, v0
    v_cmp_eq_u32 s[40:41], 0, v2
    v_cmp_eq_u32 s[42:43], 1, v2
    v_cmp_eq_u32 s[44:45], 2, v2
    v_cmp_eq_u32 s[46:47], 3, v2
    s_or_b64 s[48:49], s[40:41], s[42:43]
    s_or_b64 s[50:51], s[40:41], s[44:45]
    s_or_b64 s[52:53], s[40:41], s[46:47]
    v_cndmask_b32 v3, 0, 1.0, s[48:49]        ; b1
    v_cndmask_b32 v4, 0, 1.0, s[50:51]        ; b2
    v_cndmask_b32 v5, 0, 1.0, s[52:53]        ; b3
    v_cndmask_b32 v6, 0, 1.0, s[44:45]
    v_cndmask_b32 v7, 0, 1.0, s[46:47]
    v_cndmask_b32 v32, 0, 1.0, s[42:43]
    v_cndmask_b32 v6, v6, -1.0, s[46:47]      ; c1
    v_cndmask_b32 v7, v7, -1.0, s[42:43]      ; c2
    v_cndmask_b32 v2, v32, -1.0, s[44:45]     ; c3""")
    acc = lambda h, j, r: ACC + (h*8 + j)*4 + r
    for h in range(2):
        for j in range(4):
            for r in range(4):
                A(f"    v_permlane32_swap_b32 v{acc(h,j,r)}, v{acc(h,j+4,r)}")
    PA, PB, PC = 8, 16, 24
    T = lambda c, r, j: acc(c // 2, j + 4*(c % 2), r)
    for u in range(2):
        for q in range(4):
            r = 2*u + q // 2; j = (q % 2) * 2
            A(f"    v_cvt_pk_bf16_f32 v{PA+u*4+q}, v{T(0,r,j)}, v{T(0,r,j+1)}")
    dp = {1: 'quad_perm:[1,0,3,2]', 2: 'quad_perm:[2,3,0,1]', 3: 'quad_perm:[3,2,1,0]'}
    for u in range(2):
        for q in range(4):
            r = 2*u + q // 2; j = (q % 2) * 2
            for (dst, k) in ((32, (3, 4, 5)), (34, (6, 7, 2))):
                for c in (1, 2, 3):
                    for d in range(2):
                        op = 'v_mul_f32_dpp' if c == 1 else 'v_fmac_f32_dpp'
                        A(f"    {op} v{dst+d}, v{T(c,r,j+d)}, v{k[c-1]} {dp[c]} row_mask:0xf bank_mask:0xf")
            A(f"    v_cvt_pk_bf16_f32 v{PB+u*4+q}, v32, v33")
            A(f"    v_cvt_pk_bf16_f32 v{PC+u*4+q}, v34, v35")
    D0, D1 = 32, 48
    A("    s_nop 1")
    seen = set()
    for n, (p, u, t) in enumerate(order):
        P = {0: PA, 2: PA, 1: PB, 3: PB, 4: PC}[p] + u*4
        D = (D0 if p < 2 else D1) + t*4
        w = WB + (n % 8) * 4
        c = f"v[{D}:{D+3}]" if D in seen else "0"
        seen.add(D)
        A(f"    s_waitcnt lgkmcnt({min(7, len(order)-1-n)})")
        A(f"    v_mfma_f32_16x16x32_bf16 v[{D}:{D+3}], v[{P}:{P+3}], v[{w}:{w+3}], {c}")
        if n + 8 < len(order):
            wread_i(n + 8)
    A(f"""    s_mul_i32 s10, s2, 40
    s_lshl_b32 s11, s3, 2
    s_add_u32 s10, s10, s11
    s_lshl_b32 s10, s10, 9
    s_add_u32 s8, s8, s10
    s_addc_u32 s9, s9, 0
    v_lshrrev_b32 v2, 4, v0
    v_and_b32 v3, 15, v0
    v_lshlrev_b32 v2, 9, v2
    v_lshl_add_u32 v2, v3, 3, v2
    s_mov_b32 s10, 0xbfb8aa3b                 ; -log2(e)""")
    for t in range(4):
        A(f"    v_mul_f32 v{8+t}, s10, v{D0+t*4}")
    for t in range(4):
        A(f"    v_exp_f32 v{8+t}, v{8+t}")
    A(f"""    v_cvt_pk_bf16_f32 v12, v{D0}, v{D0+4}
    v_cvt_pk_bf16_f32 v13, v{D0+8}, v{D0+12}""")
    for t in range(4):
        A(f"    v_add_f32 v{8+t}, 1.0, v{8+t}")
    A("    global_store_dwordx2 v2, v[12:13], s[8:9]")
    for t in range(4):
        A(f"    v_rcp_f32 v{8+t}, v{8+t}")
    A("    s_nop 0")
    for i in range(1, 4):
        for t in range(4):
            A(f"    v_mul_f32 v{D1+t*4+i}, v{D1+t*4+i}, v{8+t}")
        A(f"""    v_cvt_pk_bf16_f32 v{12+2*i}, v{D1+i}, v{D1+4+i}
    v_cvt_pk_bf16_f32 v{13+2*i}, v{D1+8+i}, v{D1+12+i}
    global_store_dwordx2 v2, v[{12+2*i}:{13+2*i}], s[8:9] offset:{i*128}""")
    A(""";TSOUT
L_end:
    s_endpgm""")

    A(f"""L_help:
    s_load_dwordx4 s[60:63], s[0:1], 40
    s_load_dwordx2 s[64:65], s[0:1], 56       ; w_si1
    s_load_dwordx2 s[66:67], s[0:1], 80
    v_and_b32 v0, 63, v0
    v_mov_b32 v40, 0
    s_barrier                                 ; B1
    s_waitcnt lgkmcnt(0)
    s_mov_b32 s12, s4                         ; x descriptor
    s_mov_b32 s13, s5
    s_mov_b32 s14, 5120000
    s_mov_b32 s15, 0x20000
    s_cmp_lg_u32 s2, 0
    s_cbranch_scc1 L_h1
    s_add_u32 s48, s6, {WS_NONCE}
    s_addc_u32 s49, s7, 0
    global_load_dword v41, v40, s[48:49] sc1
    s_mov_b32 s10, 1664525
    s_waitcnt vmcnt(0)
    v_mul_lo_u32 v41, v41, s10
    v_add_u32 v41, 0x3c6ef35f, v41
    v_max_u32 v41, 1, v41
    global_store_dword v40, v41, s[66:67] sc1
    global_store_dword v40, v41, s[48:49] sc1
L_h1:
    s_sub_u32 s53, s2, 1
    s_cmp_ge_u32 s53, 40
    s_cbranch_scc1 L_h2
    s_lshr_b32 s55, s53, 3
    s_bfe_u32 s56, s53, 0x10002
    s_and_b32 s57, s53, 3
    v_lshrrev_b32 v1, 4, v0
    v_and_b32 v2, 1, v1
    v_lshlrev_b32 v2, 5, v2
    v_lshrrev_b32 v1, 1, v1
    v_lshl_add_u32 v2, v1, 2, v2
    s_lshl_b32 s56, s56, 4
    v_add_u32 v2, s56, v2                     ; ch0 = 32*(g&1) + 4*(g>>1) + 16*u
    v_and_b32 v3, 15, v0
    v_lshlrev_b32 v3, 2, v3
    v_add_u32 v3, s57, v3                     ; c_out = 4n + t
    s_lshl_b32 s58, s55, 6
    v_add_u32 v4, s58, v2
    v_lshlrev_b32 v4, 1, v4
    s_cmp_lt_u32 s55, 2
    s_cselect_b32 s59, 0, 128
    s_cselect_b32 s62, s62, s64
    s_cselect_b32 s63, s63, s65
    s_sub_u32 s58, s58, s59
    v_add_u32 v5, s58, v2
    v_lshlrev_b32 v5, 7, v5
    v_lshl_add_u32 v5, v3, 1, v5
    s_lshl_b32 s54, s53, 10
    s_add_u32 s54, s54, {WS_W}
    v_lshlrev_b32 v6, 4, v0
    s_add_u32 s50, s6, s54
    s_addc_u32 s51, s7, 0
    global_load_dwordx2 v[8:9], v4, s[60:61]
    global_load_dwordx2 v[10:11], v4, s[60:61] offset:16""")
    for e in range(8):
        row = (e // 4) * 8 + e % 4
        A(f"    global_load_ushort v{12+e}, v5, s[62:63] offset:{row*128}")
    A("    s_mov_b32 s56, 0xffff0000\n    s_waitcnt vmcnt(0)")
    for e in range(8):
        src = 8 + e // 2
        A(f"    v_lshlrev_b32 v{20+e}, 16, v{src}" if e % 2 == 0 else f"    v_and_b32 v{20+e}, s56, v{src}")
        A(f"    v_lshlrev_b32 v{12+e}, 16, v{12+e}")
        A(f"    v_mul_f32 v{12+e}, v{12+e}, v{20+e}")
    for q in range(4):
        A(f"    v_cvt_pk_bf16_f32 v{28+q}, v{12+2*q}, v{13+2*q}")
    A(f"""    global_store_dwordx4 v6, v[28:31], s[50:51] sc1
L_h2:
    v_lshlrev_b32 v1, 7, v0
    s_mov_b32 s10, {SPIN}
    global_load_dword v41, v40, s[66:67] sc1
    s_barrier                                 ; B2
    s_branch L_hchk
L_hpoll:
    global_load_dword v41, v40, s[66:67] sc1
    s_sub_u32 s10, s10, 1
    s_cbranch_scc1 L_end
L_hchk:
    s_waitcnt vmcnt(0)
    v_cmp_eq_u32 vcc, 0, v41
    s_cbranch_vccnz L_hpoll
    v_mov_b32 v42, {L_NONCE}
    ds_write_b32 v42, v41""")
    if o.get('mall', 1):
        A(f"""    s_mul_i32 s10, s2, {160*128}
    buffer_load_dword v32, v1, s[12:15], s10 offen
    s_add_u32 s10, s10, 8192
    buffer_load_dword v33, v1, s[12:15], s10 offen
    s_add_u32 s10, s10, 4096
    buffer_load_dword v34, v1, s[12:15], s10 offen""")
    A("""    s_waitcnt lgkmcnt(0)
    s_barrier                                 ; B3
    s_barrier                                 ; B4
    s_endpgm""")


def gen(o):
    A = Asm()
    A(HDR.rstrip('\n'))
    A(f"; @launch grid=({NCH},1,1) block=(704,1,1) lds={L_END}")
    A('.amdgcn_target "amdgcn-amd-amdhsa--gfx950"\n.text')
    gen_body(A, o)
    ts = o.get('ts') or []
    A(f""".section .rodata,"a"
.p2align 6
.amdhsa_kernel {NAME}
  .amdhsa_next_free_vgpr 164
  .amdhsa_next_free_sgpr {102 if ts else 72}
  .amdhsa_accum_offset 164
  .amdhsa_group_segment_fixed_size 0
  .amdhsa_kernarg_size 96
  .amdhsa_user_sgpr_count 2
  .amdhsa_user_sgpr_kernarg_segment_ptr 1
  .amdhsa_system_sgpr_workgroup_id_x 1
.end_amdhsa_kernel""")
    out = Asm()
    names = []
    for line in A.L:
        if line.startswith(';TS '):
            nm = line.split()[1]
            if (ts == 1 or nm in ts) and len(names) < 11:
                k = len(names)
                out(f"    s_memrealtime s[{74+2*k}:{75+2*k}]")
                names.append(nm)
        elif line.startswith(';CLK'):
            if ts:
                k = int(line.split()[1])
                out(f"    s_memtime s[{98+2*k}:{99+2*k}]")
        elif line.startswith(';TSOUT'):
            if ts:
                n = len(names)
                out(f"""    s_waitcnt vmcnt(0)
    s_memrealtime s[{74+2*n}:{75+2*n}]
    s_waitcnt lgkmcnt(0)
    s_mul_i32 s72, s2, 10
    s_add_u32 s72, s72, s3
    s_lshl_b32 s72, s72, 6
    s_add_u32 s72, s72, {WS_TS}
    s_add_u32 s6, s6, s72
    s_addc_u32 s7, s7, 0
    v_mov_b32 v0, 0
    s_mov_b64 exec, 1
    s_sub_u32 s98, s100, s98
    v_mov_b32 v1, s98
    global_store_dword v0, v1, s[6:7] offset:60""")
                for k in range(n + 1):
                    out(f"""    v_mov_b32 v1, s{74+2*k}
    global_store_dword v0, v1, s[6:7] offset:{4*k}""")
                if o.get('dbg'):
                    out("""    s_load_dwordx2 s[72:73], s[0:1], 80
    s_waitcnt lgkmcnt(0)
    s_not_b32 s98, s74
    v_mov_b32 v1, s98
    global_atomic_umax v0, v1, s[72:73] offset:4""")
                    for k in range(n + 1):
                        out(f"""    v_mov_b32 v1, s{74+2*k}
    global_atomic_umax v0, v1, s[72:73] offset:{8+4*k}""")
                names.append('end')
        else:
            out.L.append(line)
    global TSNAMES
    TSNAMES = names
    return out.text()


if __name__ == '__main__':
    o = eval(sys.argv[2]) if len(sys.argv) > 2 else {}
    open(sys.argv[1], 'w').write(gen(o))
```

```python
import sys

NAME = 'gather_scatter__tensor_product_equiv_equiformer__graph_kernel'
HDR = """; gather_scatter tensor product (equiformer) -- one launch, 250 co-resident workgroups of 11 waves
"""

NCH = 250
CH = 2560
RECB = CH * 12
WS_INB = 0x800000
WS_W = 0x900000
WS_NONCE = 0x910000
WS_TS = 0x1000000
SPIN = 30000

L_CNT = 0
L_FLAG = 512
L_NONCE = 520
L_BASE = 576
L_W = 2048
L_C1 = 2048
L_B1 = 3072
L_ST = 4096
L_KEY = L_W + 40960
CAP = 8320
L_COEF = L_KEY + CAP * 4
L_END = L_COEF + CAP * 8


class Asm:
    def __init__(self):
        self.L = []
    def __call__(self, s):
        for line in s.strip('\n').split('\n'):
            self.L.append(line)
    def text(self):
        return '\n'.join(self.L) + '\n'


def gen_body(A, o):
    NP = 7
    ACC = 96
    RA = lambda p: 8 + 4*p
    RB = lambda p: 36 + 4*p
    TB = lambda p: 64 + p
    MA = lambda p: 40 + 2*p
    MB = lambda p: 54 + 2*p
    PF = o.get('pf', 6500)
    A(f"""
.globl {NAME}
.p2align 8
.type {NAME},@function
{NAME}:
    s_cmp_ge_u32 s2, {NCH}
    s_cbranch_scc1 L_end
;TS start
    s_load_dwordx4 s[40:43], s[0:1], 8
    s_load_dwordx4 s[44:47], s[0:1], 24
    s_load_dwordx2 s[6:7], s[0:1], 88         ; ws
    s_load_dwordx2 s[4:5], s[0:1], 0          ; x
    s_load_dwordx2 s[8:9], s[0:1], 72         ; out
    v_lshrrev_b32 v1, 6, v0
    v_lshlrev_b32 v2, 3, v0
    v_readfirstlane_b32 s3, v1                ; wave
    v_mul_u32_u24 v3, 24, v0
    v_lshlrev_b32 v1, 4, v0
    s_cmp_eq_u32 s3, 10
    s_cbranch_scc1 L_help
    s_mul_i32 s54, s2, {CH*4}
    s_mul_i32 s55, s2, {CH*2}
    s_mul_i32 s56, s2, {CH*6}
    s_mul_i32 s57, s2, {RECB}
    s_waitcnt lgkmcnt(0)
    s_add_u32 s46, s46, s54
    s_addc_u32 s47, s47, 0
    global_load_dwordx4 v[4:7], v1, s[46:47]  ; dst
    s_add_u32 s44, s44, s54
    s_addc_u32 s45, s45, 0
    global_load_dwordx4 v[8:11], v1, s[44:45] ; src
    s_add_u32 s42, s42, s55
    s_addc_u32 s43, s43, 0
    global_load_dwordx2 v[12:13], v2, s[42:43] ; e_attr
    s_add_u32 s40, s40, s56
    s_addc_u32 s41, s41, 0
    global_load_dwordx4 v[14:17], v3, s[40:41] ; rhat
    global_load_dwordx2 v[18:19], v3, s[40:41] offset:16
    v_mov_b32 v44, 0
    v_lshlrev_b32 v45, 2, v0
    ds_write_b32 v45, v44
    ds_write_b32 v45, v44 offset:1024
    s_add_u32 s48, s6, s57
    s_addc_u32 s49, s7, 0
    s_lshl_b32 s57, s2, 3
    s_add_u32 s57, s57, {WS_INB}
    s_add_u32 s50, s6, s57
    s_addc_u32 s51, s7, 0
    s_mov_b32 s12, s4                         ; x descriptor
    s_mov_b32 s13, s5
    s_mov_b32 s14, 5120000
    s_mov_b32 s15, 0x20000
    s_lshl_b32 s57, s2, 11
    s_add_u32 s57, s57, {WS_INB}
    s_add_u32 s16, s6, s57
    s_addc_u32 s17, s7, 0
    s_mov_b32 s18, {NCH*8}
    s_mov_b32 s19, 0x20000
    s_mov_b32 s20, s6
    s_mov_b32 s21, s7
    s_mov_b32 s22, {NCH*RECB}
    s_mov_b32 s23, 0x20000
    s_add_u32 s24, s6, {WS_W}
    s_addc_u32 s25, s7, 0
    s_mov_b32 s26, 40960
    s_mov_b32 s27, 0x20000
    s_mov_b32 s54, 52429
    s_mov_b32 s55, 6711
    s_mov_b32 s56, 0xffff0000
    s_movk_i32 s57, {L_ST}
    v_mov_b32 v46, 1
    v_and_b32 v0, 63, v0
    v_lshlrev_b32 v47, 4, v0                  ; lane*16
    s_waitcnt lgkmcnt(0)
    s_barrier                                 ; B1""")
    for i in range(64):
        A(f"    v_mov_b32 v{ACC+i}, 0")
    A("    s_waitcnt vmcnt(4)\n;TS dst")
    for i in range(4):
        A(f"""    v_mul_u32_u24 v{20+i}, s54, v{4+i}
    v_lshrrev_b32 v{20+i}, 21, v{20+i}          ; bucket""")
    for i in range(4):
        A(f"""    v_mul_u32_u24 v{48+i}, 40, v{20+i}
    v_lshlrev_b32 v{20+i}, 2, v{20+i}
    ds_add_rtn_u32 v{24+i}, v{20+i}, v46 offset:{L_C1}""")
    for i in range(4):
        A(f"    v_sub_u32 v{4+i}, v{4+i}, v{48+i}")
    A("""    s_waitcnt lgkmcnt(0)
    s_barrier                                 ; B2
;TS hist1""")
    A(f"""    ds_read_b128 v[48:51], v47 offset:{L_C1}
    v_add_u32 v2, {CH*4}, v1
    v_add_u32 v3, {CH*8}, v1
    s_waitcnt lgkmcnt(0)
    v_add_u32 v52, v48, v49
    v_add_u32 v53, v52, v50
    v_add_u32 v54, v53, v51
    v_mov_b32 v55, v54
    s_nop 1
    v_add_u32_dpp v55, v55, v55 row_shr:1 row_mask:0xf bank_mask:0xf
    s_nop 1
    v_add_u32_dpp v55, v55, v55 row_shr:2 row_mask:0xf bank_mask:0xf
    s_nop 1
    v_add_u32_dpp v55, v55, v55 row_shr:4 row_mask:0xf bank_mask:0xf
    s_nop 1
    v_add_u32_dpp v55, v55, v55 row_shr:8 row_mask:0xf bank_mask:0xf
    s_nop 1
    v_add_u32_dpp v55, v55, v55 row_bcast:15 row_mask:0xa bank_mask:0xf
    s_nop 1
    v_add_u32_dpp v55, v55, v55 row_bcast:31 row_mask:0xc bank_mask:0xf
    v_sub_u32 v56, v55, v54
    v_add_u32 v57, v56, v48
    v_add_u32 v58, v56, v52
    v_add_u32 v59, v56, v53
    ds_write_b128 v47, v[56:59] offset:{L_B1}
    v_lshl_or_b32 v60, v48, 12, v56
    v_lshl_or_b32 v61, v49, 12, v57
    v_lshl_or_b32 v62, v50, 12, v58
    v_lshl_or_b32 v63, v51, 12, v59
    s_waitcnt lgkmcnt(0)""")
    for i in range(4):
        A(f"    ds_read_b32 v{64+i}, v{20+i} offset:{L_B1}")
    A("    s_waitcnt vmcnt(3)")
    for i in range(4):
        k = 30 + 4*i
        A(f"""    v_mul_u32_u24 v48, s55, v{8+i}
    v_lshrrev_b32 v48, 23, v48
    v_lshrrev_b32 v49, 2, v{4+i}
    v_lshl_add_u32 v48, v49, 3, v48
    v_lshlrev_b32 v{k}, 9, v{8+i}
    v_lshl_or_b32 v{k}, v48, 2, v{k}
    v_lshl_or_b32 v{k}, v{4+i}, 30, v{k}""")
    A("    s_waitcnt lgkmcnt(0)")
    for i in range(4):
        A(f"""    v_add_u32 v{64+i}, v{64+i}, v{24+i}
    v_mad_u32_u24 v{64+i}, v{64+i}, 12, s57
    ds_write_b32 v{64+i}, v{30+4*i} offset:8""")
    A("    s_waitcnt vmcnt(0)\n;TS loads")
    for i in range(4):
        src = 12 + i // 2
        A(f"    v_lshlrev_b32 v{68+i}, 16, v{src}" if i % 2 == 0 else f"    v_and_b32 v{68+i}, s56, v{src}")
    for i in range(4):
        for j in range(3*i, 3*i+3):
            src = 14 + j // 2
            A(f"    v_lshlrev_b32 v{72+j}, 16, v{src}" if j % 2 == 0 else f"    v_and_b32 v{72+j}, s56, v{src}")
            A(f"    v_mul_f32 v{72+j}, v{68+i}, v{72+j}")
        r = 28 + 4*i
        A(f"""    v_cvt_pk_bf16_f32 v{r}, v{68+i}, v{72+3*i}
    v_cvt_pk_bf16_f32 v{r+1}, v{73+3*i}, v{74+3*i}
    ds_write2_b32 v{64+i}, v{r}, v{r+1} offset0:0 offset1:1""")
    A(f"""    v_mov_b32 v44, {L_NONCE}
    s_waitcnt lgkmcnt(0)
    s_barrier                                 ; B3
;TS staged
    ds_read_b128 v[28:31], v1 offset:{L_ST}
    ds_read_b128 v[32:35], v1 offset:{L_ST+CH*4}
    ds_read_b128 v[36:39], v1 offset:{L_ST+CH*8}
    ds_read_b32 v44, v44
    s_waitcnt lgkmcnt(3)
    global_store_dwordx4 v1, v[28:31], s[48:49] sc1
    s_waitcnt lgkmcnt(2)
    global_store_dwordx4 v2, v[32:35], s[48:49] sc1
    s_waitcnt lgkmcnt(1)
    global_store_dwordx4 v3, v[36:39], s[48:49] sc1
    s_cmp_eq_u32 s3, 1
    s_cselect_b64 s[58:59], -1, 0
    s_cmp_eq_u32 s3, 2
    s_cselect_b64 s[60:61], -1, 0
    s_cmp_eq_u32 s3, 3
    s_cselect_b64 s[62:63], -1, 0
    v_cndmask_b32 v60, v60, v61, s[58:59]
    v_cndmask_b32 v60, v60, v62, s[60:61]
    v_cndmask_b32 v60, v60, v63, s[62:63]
    v_lshlrev_b32 v62, 13, v0
    s_lshl_b32 s58, s3, 11
    v_add_u32 v62, s58, v62
    s_mul_i32 s58, s3, 25
    v_add_u32 v45, s58, v0
    v_lshlrev_b32 v45, 3, v45
    v_lshrrev_b32 v2, 4, v0
    v_add_u32 v4, s58, v2
    s_mov_b32 s10, {RECB}
    v_mul_lo_u32 v4, v4, s10
    v_and_b32 v5, 15, v0
    v_mad_u32_u24 v4, v5, 12, v4
    v_lshlrev_b32 v2, 2, v2
    s_mov_b32 s33, 0
    s_waitcnt lgkmcnt(0)
    v_readfirstlane_b32 s70, v44
    s_and_b32 s71, s70, 0xff000000
    s_xor_b32 s71, s71, 0xa5000000
    v_or_b32 v60, s71, v60
    v_mov_b32 v61, s70
    s_waitcnt vmcnt(0)
    s_barrier                                 ; B4
;TS drained
    s_cmp_ge_u32 s3, 4
    s_cbranch_scc1 L_nopub
    global_store_dwordx2 v62, v[60:61], s[50:51] sc1
L_nopub:
    s_mov_b32 s10, {SPIN}
    s_mov_b64 exec, 0x1ffffff
L_poll:
    buffer_load_dwordx2 v[6:7], v45, s[16:19], 0 offen sc1
    s_sub_u32 s10, s10, 1
    s_cbranch_scc1 L_end
    s_waitcnt vmcnt(0)
    v_xor_b32 v3, s71, v6
    v_xor_b32 v7, s70, v7
    v_lshrrev_b32 v6, 24, v3
    v_or_b32 v6, v6, v7
    v_cmp_ne_u32 vcc, 0, v6
    s_cbranch_vccnz L_poll
    s_not_b64 exec, exec
    v_mov_b32 v3, 0
    s_mov_b64 exec, -1
;TS polled
L_round:
    s_nop 0""")
    for p in range(NP):
        A(f"    ds_bpermute_b32 v{TB(p)}, v2, v3 offset:{16*p}")
    A(f"""    v_mov_b32 v72, 0x40000000
    v_add_u32 v73, 16, v5
    v_mov_b32 v74, 0
    s_add_u32 s34, s33, 32
    s_movk_i32 s11, 0xfff""")
    for p in range(NP):
        A(f"""    s_waitcnt lgkmcnt({NP-1-p})
    v_lshrrev_b32 v75, 12, v{TB(p)}
    v_and_b32 v76, s11, v{TB(p)}
    v_cmp_lt_u32 s[{MA(p)}:{MA(p)+1}], v5, v75
    v_cmp_lt_u32 s[{MB(p)}:{MB(p)+1}], v73, v75
    v_mad_u32_u24 v{TB(p)}, v76, 12, v4
    v_max_u32 v74, v74, v75
    v_cndmask_b32 v76, v72, v{TB(p)}, s[{MA(p)}:{MA(p)+1}]
    s_mov_b32 s10, {p*4*RECB}
    buffer_load_dwordx3 v[{RA(p)}:{RA(p)+2}], v76, s[20:23], s10 offen sc1""")
    for p in range(NP):
        A(f"""    s_cmp_eq_u64 s[{MB(p)}:{MB(p)+1}], 0
    s_cbranch_scc1 L_nb{p}
    v_cndmask_b32 v76, v72, v{TB(p)}, s[{MB(p)}:{MB(p)+1}]
    s_mov_b32 s10, {p*4*RECB}
    buffer_load_dwordx3 v[{RB(p)}:{RB(p)+2}], v76, s[20:23], s10 offen offset:192 sc1
L_nb{p}:""")
    NPF = 0
    if PF:
        NPF = (PF * 4 + 31*640 - 1) // (31*640)
        A(f"""    s_lshr_b32 s10, s2, 3
    s_min_u32 s10, s10, 30
    s_mul_i32 s11, s3, 31
    s_add_u32 s10, s10, s11
    s_lshl_b32 s10, s10, 13
    v_lshlrev_b32 v76, 7, v0
    s_mov_b32 s14, {PF*512}""")
        for i in range(NPF):
            A(f"    buffer_load_dword v{160+i}, v76, s[12:15], s10 offen")
            if i + 1 < NPF:
                A(f"    s_add_u32 s10, s10, {310*8192}")
        A("    s_mov_b32 s14, 5120000")
    A(f"""    v_cmp_lt_u32 vcc, s34, v74
    v_mov_b32 v6, 1
    v_mov_b32 v7, {L_FLAG}
    s_and_saveexec_b64 s[36:37], vcc
    ds_write_b32 v7, v6
    s_mov_b64 exec, -1
    s_movk_i32 s11, 0x1fc
    s_waitcnt vmcnt({NPF})
;TS recs""")
    for p in range(NP):
        A(f"""    v_and_b32 v{TB(p)}, s11, v{RA(p)+2}
    s_mov_b64 exec, s[{MA(p)}:{MA(p)+1}]
    ds_add_rtn_u32 v{RA(p)+3}, v{TB(p)}, v6
    s_mov_b64 exec, -1""")
    for p in range(NP):
        A(f"""    s_cmp_eq_u64 s[{MB(p)}:{MB(p)+1}], 0
    s_cbranch_scc1 L_nc{p}
    v_and_b32 v76, s11, v{RB(p)+2}
    s_mov_b64 exec, s[{MB(p)}:{MB(p)+1}]
    ds_add_rtn_u32 v{RB(p)+3}, v76, v6
    s_mov_b64 exec, -1
L_nc{p}:""")
    A(f"""    v_and_b32 v72, 15, v0
    v_lshlrev_b32 v73, 5, v72
    v_lshlrev_b32 v77, 4, v0
    s_lshl_b32 s10, s3, 12
    s_add_u32 m0, s10, {L_W}
    s_waitcnt lgkmcnt(0)
    s_barrier                                 ; B5
;TS hist2
    ds_read_b128 v[84:87], v73
    ds_read_b128 v[80:83], v73 offset:16
    ds_read_b32 v75, v7
    buffer_load_dwordx4 v77, s[24:27], s10 offen sc1 lds
    buffer_load_dwordx4 v77, s[24:27], s10 offen offset:1024 sc1 lds
    buffer_load_dwordx4 v77, s[24:27], s10 offen offset:2048 sc1 lds
    buffer_load_dwordx4 v77, s[24:27], s10 offen offset:3072 sc1 lds
    s_waitcnt lgkmcnt(2)
    v_add_u32 v85, v84, v85                   ; p2
    v_add_u32 v86, v85, v86                   ; p3
    v_add_u32 v87, v86, v87                   ; p4
    s_waitcnt lgkmcnt(1)
    v_add_u32 v88, v87, v80                   ; p5
    v_add_u32 v89, v88, v81                   ; p6
    v_add_u32 v90, v89, v82                   ; p7
    v_add_u32 v91, v90, v83
    v_add_u32 v92, 31, v91
    v_and_b32 v92, 0xffffffe0, v92
    v_mov_b32 v93, v92
    v_cmp_gt_u32 vcc, 10, v72
    s_nop 0
    v_add_u32_dpp v93, v93, v93 row_shr:1 row_mask:0xf bank_mask:0xf
    v_cndmask_b32 v94, -1, v92, vcc
    s_nop 0
    v_add_u32_dpp v93, v93, v93 row_shr:2 row_mask:0xf bank_mask:0xf
    v_min_u32_dpp v94, v94, v94 row_shr:1 row_mask:0xf bank_mask:0xf
    s_nop 0
    v_add_u32_dpp v93, v93, v93 row_shr:4 row_mask:0xf bank_mask:0xf
    v_min_u32_dpp v94, v94, v94 row_shr:2 row_mask:0xf bank_mask:0xf
    s_nop 0
    v_add_u32_dpp v93, v93, v93 row_shr:8 row_mask:0xf bank_mask:0xf
    v_min_u32_dpp v94, v94, v94 row_shr:4 row_mask:0xf bank_mask:0xf
    v_sub_u32 v93, v93, v92
    v_add_u32 v77, v93, v84
    v_min_u32_dpp v94, v94, v94 row_shr:8 row_mask:0xf bank_mask:0xf
    v_mov_b32 v76, v93
    v_add_u32 v78, v93, v85
    v_add_u32 v79, v93, v86
    v_add_u32 v80, v93, v87
    v_add_u32 v81, v93, v88
    v_add_u32 v82, v93, v89
    v_add_u32 v83, v93, v90
    ds_write_b128 v73, v[76:79] offset:{L_BASE}
    ds_write_b128 v73, v[80:83] offset:{L_BASE+16}
    v_readlane_b32 s28, v93, s3
    v_readlane_b32 s29, v91, s3
    v_readlane_b32 s30, v92, s3
    v_readlane_b32 s31, v94, 15
    s_waitcnt lgkmcnt(2)
    v_readfirstlane_b32 s35, v75
    s_mov_b32 s10, {L_COEF}
    s_waitcnt lgkmcnt(0)""")
    for p in range(NP):
        A(f"    ds_read_b32 v{TB(p)}, v{TB(p)} offset:{L_BASE}")
    A(f"""    v_add_u32 v76, s29, v0
    v_cmp_gt_u32 vcc, s30, v76
    v_add_u32 v76, s28, v76
    v_lshlrev_b32 v77, 2, v76
    v_lshl_add_u32 v76, v76, 3, s10
    v_mov_b32 v78, 0
    v_mov_b32 v79, 0
    v_mov_b32 v80, 0x800000""")
    for p in range(NP):
        A(f"""    s_waitcnt lgkmcnt({NP-1-p})
    v_add_u32 v{TB(p)}, v{TB(p)}, v{RA(p)+3}
    v_lshl_add_u32 v{RA(p)+3}, v{TB(p)}, 3, s10
    v_lshlrev_b32 v{TB(p)}, 2, v{TB(p)}""")
    for p in range(NP):
        A(f"""    s_mov_b64 exec, s[{MA(p)}:{MA(p)+1}]
    ds_write_b64 v{RA(p)+3}, v[{RA(p)}:{RA(p)+1}]
    ds_write_b32 v{TB(p)}, v{RA(p)+2} offset:{L_KEY}""")
    A(f"""    s_mov_b64 exec, vcc
    ds_write_b64 v76, v[78:79]
    ds_write_b32 v77, v80 offset:{L_KEY}
    s_mov_b64 exec, -1""")
    for p in range(NP):
        A(f"""    s_cmp_eq_u64 s[{MB(p)}:{MB(p)+1}], 0
    s_cbranch_scc1 L_nd{p}
    v_and_b32 v76, s11, v{RB(p)+2}
    ds_read_b32 v76, v76 offset:{L_BASE}
    s_waitcnt lgkmcnt(0)
    v_add_u32 v76, v76, v{RB(p)+3}
    v_lshl_add_u32 v77, v76, 3, s10
    v_lshlrev_b32 v76, 2, v76
    s_mov_b64 exec, s[{MB(p)}:{MB(p)+1}]
    ds_write_b64 v77, v[{RB(p)}:{RB(p)+1}]
    ds_write_b32 v76, v{RB(p)+2} offset:{L_KEY}
    s_mov_b64 exec, -1
L_nd{p}:""")
    NBM = o.get('nbm', 3)
    A(f"""    v_and_b32 v1, 15, v0
    v_lshrrev_b32 v31, 4, v0
    v_lshlrev_b32 v31, 3, v31
    v_add_u32 v31, s28, v31
    v_lshrrev_b32 v7, 2, v1
    v_add_u32 v7, v7, v31
    v_lshl_add_u32 v30, v7, 3, s10
    v_lshl_or_b32 v30, v0, 30, v30
    v_lshlrev_b32 v6, 2, v31
    v_lshlrev_b32 v7, 2, v7
    v_add_u32 v7, {L_KEY}, v7
    v_lshlrev_b32 v1, 4, v1
    s_lshr_b32 s30, s30, 5
    s_lshr_b32 s31, s31, 5
    s_max_u32 s31, s31, {NBM}
    s_sub_u32 s31, s31, {NBM}
    s_mov_b32 s28, 0x00fffe00
    s_mov_b32 s29, 0xc0000000
    s_mov_b32 s38, 0x05040100
    s_mov_b32 s39, 0x07060302
    s_waitcnt lgkmcnt(0)
    s_barrier                                 ; B6
;TS sorted
;CLK 0
    s_cmp_lg_u32 s30, 0
    s_cbranch_scc1 L_go
    s_waitcnt vmcnt(0)
    s_barrier
    s_branch L_done
L_go:""")

    def read_keys():
        A(f"""    ds_read_b128 v[8:11], v6 offset:{L_KEY}
    ds_read_b128 v[12:15], v6 offset:{L_KEY+16}
    ds_read2_b32 v[28:29], v7 offset0:0 offset1:4
    v_add_u32 v6, 128, v6
    v_add_u32 v7, 128, v7""")
    def mk_addr():
        for e in range(8):
            A(f"    v_and_or_b32 v{8+e}, v{8+e}, s28, v1")
        A("""    v_bitop3_b32 v28, v28, s29, v30 bitop3:0x6a
    v_bitop3_b32 v29, v29, s29, v30 bitop3:0x6a
    v_add_u32 v30, 256, v30""")
    def issue(h):
        for e in range(8):
            r = 32 + h*32 + e*4
            A(f"    buffer_load_dwordx4 v[{r}:{r+3}], v{8+e}, s[12:15], 0 offen offset:{h*256}")
    def read_b():
        A("""    ds_read_b64_tr_b16 v[16:17], v28
    ds_read_b64_tr_b16 v[18:19], v29 offset:32""")
    def half(h):
        D = 32 + h*32
        def perms(j):
            t = 20 + (j % 2) * 4
            sel = 's38' if j % 2 == 0 else 's39'
            for q in range(4):
                A(f"    v_perm_b32 v{t+q}, v{D + (2*q+1)*4 + j//2}, v{D + 2*q*4 + j//2}, {sel}")
        def mfma(j):
            t = 20 + (j % 2) * 4
            a = ACC + (h*8 + j) * 4
            A(f"    v_mfma_f32_16x16x32_bf16 v[{a}:{a+3}], v[{t}:{t+3}], v[16:19], v[{a}:{a+3}]")
        perms(0)
        for j in range(8):
            if j + 1 < 8:
                perms(j + 1)
            else:
                A("    s_nop 1")
            mfma(j)

    read_keys()
    A("    s_waitcnt lgkmcnt(0)")
    mk_addr()
    issue(0); issue(1)
    read_b()
    read_keys()
    A("""    s_waitcnt vmcnt(16)
    s_barrier                                 ; B7
    s_sub_u32 s30, s30, 1
    s_cmp_eq_u32 s30, 0
    s_cbranch_scc1 L_last
L_loop:
    s_waitcnt lgkmcnt(0)""")
    mk_addr()
    A("    s_waitcnt vmcnt(8)")
    half(0)
    issue(0)
    A("""    s_cmp_eq_u32 s31, 0
    s_cbranch_scc1 L_nobar
    s_sub_u32 s31, s31, 1
    s_barrier
L_nobar:
    s_waitcnt vmcnt(8)""")
    half(1)
    issue(1)
    read_b()
    read_keys()
    A("""    s_sub_u32 s30, s30, 1
    s_cmp_lg_u32 s30, 0
    s_cbranch_scc1 L_loop
L_last:
    s_waitcnt vmcnt(8) lgkmcnt(0)""")
    half(0)
    A("    s_waitcnt vmcnt(0)")
    half(1)
    A(f"""L_done:
    s_cmp_eq_u32 s35, 0
    s_cbranch_scc1 L_epi
    s_barrier
    v_mov_b32 v6, 0
    v_lshlrev_b32 v7, 2, v0
    ds_write_b32 v7, v6
    ds_write_b32 v7, v6 offset:256
    ds_write_b32 v7, v6 offset:264
    s_add_u32 s33, s33, 32
    v_add_u32 v5, 32, v5
    v_add_u32 v4, {32*12}, v4
    s_waitcnt lgkmcnt(0)
    s_barrier
    s_branch L_round
L_epi:
;TS main
;CLK 1""")
    WB = 64
    A("    v_lshlrev_b32 v1, 4, v0")
    order = [(p, u, t) for p in (0, 2, 1, 3, 4) for u in range(2) for t in range(4)]
    fr = lambda put: put[0]*8 + put[1]*4 + put[2]
    def wread_i(n):
        f = fr(order[n]); r = WB + (n % 8) * 4
        A(f"    ds_read_b128 v[{r}:{r+3}], v1 offset:{L_W + f*1024}")
    for n in range(8):
        wread_i(n)
    A("""    v_and_b32 v2, 3, v0
    v_cmp_eq_u32 s[40:41], 0, v2
    v_cmp_eq_u32 s[42:43], 1, v2
    v_cmp_eq_u32 s[44:45], 2, v2
    v_cmp_eq_u32 s[46:47], 3, v2
    s_or_b64 s[48:49], s[40:41], s[42:43]
    s_or_b64 s[50:51], s[40:41], s[44:45]
    s_or_b64 s[52:53], s[40:41], s[46:47]
    v_cndmask_b32 v3, 0, 1.0, s[48:49]        ; b1
    v_cndmask_b32 v4, 0, 1.0, s[50:51]        ; b2
    v_cndmask_b32 v5, 0, 1.0, s[52:53]        ; b3
    v_cndmask_b32 v6, 0, 1.0, s[44:45]
    v_cndmask_b32 v7, 0, 1.0, s[46:47]
    v_cndmask_b32 v32, 0, 1.0, s[42:43]
    v_cndmask_b32 v6, v6, -1.0, s[46:47]      ; c1
    v_cndmask_b32 v7, v7, -1.0, s[42:43]      ; c2
    v_cndmask_b32 v2, v32, -1.0, s[44:45]     ; c3""")
    acc = lambda h, j, r: ACC + (h*8 + j)*4 + r
    for h in range(2):
        for j in range(4):
            for r in range(4):
                A(f"    v_permlane32_swap_b32 v{acc(h,j,r)}, v{acc(h,j+4,r)}")
    PA, PB, PC = 8, 16, 24
    T = lambda c, r, j: acc(c // 2, j + 4*(c % 2), r)
    for u in range(2):
        for q in range(4):
            r = 2*u + q // 2; j = (q % 2) * 2
            A(f"    v_cvt_pk_bf16_f32 v{PA+u*4+q}, v{T(0,r,j)}, v{T(0,r,j+1)}")
    dp = {1: 'quad_perm:[1,0,3,2]', 2: 'quad_perm:[2,3,0,1]', 3: 'quad_perm:[3,2,1,0]'}
    for u in range(2):
        for q in range(4):
            r = 2*u + q // 2; j = (q % 2) * 2
            for (dst, k) in ((32, (3, 4, 5)), (34, (6, 7, 2))):
                for c in (1, 2, 3):
                    for d in range(2):
                        op = 'v_mul_f32_dpp' if c == 1 else 'v_fmac_f32_dpp'
                        A(f"    {op} v{dst+d}, v{T(c,r,j+d)}, v{k[c-1]} {dp[c]} row_mask:0xf bank_mask:0xf")
            A(f"    v_cvt_pk_bf16_f32 v{PB+u*4+q}, v32, v33")
            A(f"    v_cvt_pk_bf16_f32 v{PC+u*4+q}, v34, v35")
    D0, D1 = 32, 48
    A("    s_nop 1")
    seen = set()
    for n, (p, u, t) in enumerate(order):
        P = {0: PA, 2: PA, 1: PB, 3: PB, 4: PC}[p] + u*4
        D = (D0 if p < 2 else D1) + t*4
        w = WB + (n % 8) * 4
        c = f"v[{D}:{D+3}]" if D in seen else "0"
        seen.add(D)
        A(f"    s_waitcnt lgkmcnt({min(7, len(order)-1-n)})")
        A(f"    v_mfma_f32_16x16x32_bf16 v[{D}:{D+3}], v[{P}:{P+3}], v[{w}:{w+3}], {c}")
        if n + 8 < len(order):
            wread_i(n + 8)
    A(f"""    s_mul_i32 s10, s2, 40
    s_lshl_b32 s11, s3, 2
    s_add_u32 s10, s10, s11
    s_lshl_b32 s10, s10, 9
    s_add_u32 s8, s8, s10
    s_addc_u32 s9, s9, 0
    v_lshrrev_b32 v2, 4, v0
    v_and_b32 v3, 15, v0
    v_lshlrev_b32 v2, 9, v2
    v_lshl_add_u32 v2, v3, 3, v2
    s_mov_b32 s10, 0xbfb8aa3b                 ; -log2(e)""")
    for t in range(4):
        A(f"    v_mul_f32 v{8+t}, s10, v{D0+t*4}")
    for t in range(4):
        A(f"    v_exp_f32 v{8+t}, v{8+t}")
    A(f"""    v_cvt_pk_bf16_f32 v12, v{D0}, v{D0+4}
    v_cvt_pk_bf16_f32 v13, v{D0+8}, v{D0+12}""")
    for t in range(4):
        A(f"    v_add_f32 v{8+t}, 1.0, v{8+t}")
    A("    global_store_dwordx2 v2, v[12:13], s[8:9]")
    for t in range(4):
        A(f"    v_rcp_f32 v{8+t}, v{8+t}")
    A("    s_nop 0")
    for i in range(1, 4):
        for t in range(4):
            A(f"    v_mul_f32 v{D1+t*4+i}, v{D1+t*4+i}, v{8+t}")
        A(f"""    v_cvt_pk_bf16_f32 v{12+2*i}, v{D1+i}, v{D1+4+i}
    v_cvt_pk_bf16_f32 v{13+2*i}, v{D1+8+i}, v{D1+12+i}
    global_store_dwordx2 v2, v[{12+2*i}:{13+2*i}], s[8:9] offset:{i*128}""")
    A(""";TSOUT
L_end:
    s_endpgm""")

    A(f"""L_help:
    s_load_dwordx4 s[60:63], s[0:1], 40
    s_load_dwordx2 s[64:65], s[0:1], 56       ; w_si1
    s_load_dwordx2 s[66:67], s[0:1], 80
    v_and_b32 v0, 63, v0
    v_mov_b32 v40, 0
    s_barrier                                 ; B1
    s_waitcnt lgkmcnt(0)
    s_mov_b32 s12, s4                         ; x descriptor
    s_mov_b32 s13, s5
    s_mov_b32 s14, 5120000
    s_mov_b32 s15, 0x20000
    s_cmp_lg_u32 s2, 0
    s_cbranch_scc1 L_h1
    s_add_u32 s48, s6, {WS_NONCE}
    s_addc_u32 s49, s7, 0
    global_load_dword v41, v40, s[48:49] sc1
    s_mov_b32 s10, 1664525
    s_waitcnt vmcnt(0)
    v_mul_lo_u32 v41, v41, s10
    v_add_u32 v41, 0x3c6ef35f, v41
    v_max_u32 v41, 1, v41
    global_store_dword v40, v41, s[66:67] sc1
    global_store_dword v40, v41, s[48:49] sc1
L_h1:
    s_sub_u32 s53, s2, 1
    s_cmp_ge_u32 s53, 40
    s_cbranch_scc1 L_h2
    s_lshr_b32 s55, s53, 3
    s_bfe_u32 s56, s53, 0x10002
    s_and_b32 s57, s53, 3
    v_lshrrev_b32 v1, 4, v0
    v_and_b32 v2, 1, v1
    v_lshlrev_b32 v2, 5, v2
    v_lshrrev_b32 v1, 1, v1
    v_lshl_add_u32 v2, v1, 2, v2
    s_lshl_b32 s56, s56, 4
    v_add_u32 v2, s56, v2                     ; ch0 = 32*(g&1) + 4*(g>>1) + 16*u
    v_and_b32 v3, 15, v0
    v_lshlrev_b32 v3, 2, v3
    v_add_u32 v3, s57, v3                     ; c_out = 4n + t
    s_lshl_b32 s58, s55, 6
    v_add_u32 v4, s58, v2
    v_lshlrev_b32 v4, 1, v4
    s_cmp_lt_u32 s55, 2
    s_cselect_b32 s59, 0, 128
    s_cselect_b32 s62, s62, s64
    s_cselect_b32 s63, s63, s65
    s_sub_u32 s58, s58, s59
    v_add_u32 v5, s58, v2
    v_lshlrev_b32 v5, 7, v5
    v_lshl_add_u32 v5, v3, 1, v5
    s_lshl_b32 s54, s53, 10
    s_add_u32 s54, s54, {WS_W}
    v_lshlrev_b32 v6, 4, v0
    s_add_u32 s50, s6, s54
    s_addc_u32 s51, s7, 0
    global_load_dwordx2 v[8:9], v4, s[60:61]
    global_load_dwordx2 v[10:11], v4, s[60:61] offset:16""")
    for e in range(8):
        row = (e // 4) * 8 + e % 4
        A(f"    global_load_ushort v{12+e}, v5, s[62:63] offset:{row*128}")
    A("    s_mov_b32 s56, 0xffff0000\n    s_waitcnt vmcnt(0)")
    for e in range(8):
        src = 8 + e // 2
        A(f"    v_lshlrev_b32 v{20+e}, 16, v{src}" if e % 2 == 0 else f"    v_and_b32 v{20+e}, s56, v{src}")
        A(f"    v_lshlrev_b32 v{12+e}, 16, v{12+e}")
        A(f"    v_mul_f32 v{12+e}, v{12+e}, v{20+e}")
    for q in range(4):
        A(f"    v_cvt_pk_bf16_f32 v{28+q}, v{12+2*q}, v{13+2*q}")
    A(f"""    global_store_dwordx4 v6, v[28:31], s[50:51] sc1
L_h2:
    v_lshlrev_b32 v1, 7, v0
    s_mov_b32 s10, {SPIN}
    global_load_dword v41, v40, s[66:67] sc1
    s_barrier                                 ; B2
    s_branch L_hchk
L_hpoll:
    global_load_dword v41, v40, s[66:67] sc1
    s_sub_u32 s10, s10, 1
    s_cbranch_scc1 L_end
L_hchk:
    s_waitcnt vmcnt(0)
    v_cmp_eq_u32 vcc, 0, v41
    s_cbranch_vccnz L_hpoll
    v_mov_b32 v42, {L_NONCE}
    ds_write_b32 v42, v41""")
    if o.get('mall', 1):
        A(f"""    s_mul_i32 s10, s2, {160*128}
    buffer_load_dword v32, v1, s[12:15], s10 offen
    s_add_u32 s10, s10, 8192
    buffer_load_dword v33, v1, s[12:15], s10 offen
    s_add_u32 s10, s10, 4096
    buffer_load_dword v34, v1, s[12:15], s10 offen""")
    A("""    s_waitcnt lgkmcnt(0)
    s_barrier                                 ; B3
    s_barrier                                 ; B4
    s_endpgm""")


def gen(o):
    A = Asm()
    A(HDR.rstrip('\n'))
    A(f"; @launch grid=({NCH},1,1) block=(704,1,1) lds={L_END}")
    A('.amdgcn_target "amdgcn-amd-amdhsa--gfx950"\n.text')
    gen_body(A, o)
    ts = o.get('ts') or []
    A(f""".section .rodata,"a"
.p2align 6
.amdhsa_kernel {NAME}
  .amdhsa_next_free_vgpr 164
  .amdhsa_next_free_sgpr {102 if ts else 72}
  .amdhsa_accum_offset 164
  .amdhsa_group_segment_fixed_size 0
  .amdhsa_kernarg_size 96
  .amdhsa_user_sgpr_count 2
  .amdhsa_user_sgpr_kernarg_segment_ptr 1
  .amdhsa_system_sgpr_workgroup_id_x 1
.end_amdhsa_kernel""")
    out = Asm()
    names = []
    for line in A.L:
        if line.startswith(';TS '):
            nm = line.split()[1]
            if (ts == 1 or nm in ts) and len(names) < 11:
                k = len(names)
                out(f"    s_memrealtime s[{74+2*k}:{75+2*k}]")
                names.append(nm)
        elif line.startswith(';CLK'):
            if ts:
                k = int(line.split()[1])
                out(f"    s_memtime s[{98+2*k}:{99+2*k}]")
        elif line.startswith(';TSOUT'):
            if ts:
                n = len(names)
                out(f"""    s_waitcnt vmcnt(0)
    s_memrealtime s[{74+2*n}:{75+2*n}]
    s_waitcnt lgkmcnt(0)
    s_mul_i32 s72, s2, 10
    s_add_u32 s72, s72, s3
    s_lshl_b32 s72, s72, 6
    s_add_u32 s72, s72, {WS_TS}
    s_add_u32 s6, s6, s72
    s_addc_u32 s7, s7, 0
    v_mov_b32 v0, 0
    s_mov_b64 exec, 1
    s_sub_u32 s98, s100, s98
    v_mov_b32 v1, s98
    global_store_dword v0, v1, s[6:7] offset:60""")
                for k in range(n + 1):
                    out(f"""    v_mov_b32 v1, s{74+2*k}
    global_store_dword v0, v1, s[6:7] offset:{4*k}""")
                if o.get('enc'):
                    k = (names + ['end']).index(o['enc'])
                    out(f"""    s_add_u32 s72, s2, s3
    s_cmp_lg_u32 s72, 0
    s_cbranch_scc1 L_end
    s_sub_u32 s72, s{74+2*k}, s74
    s_mul_i32 s72, s72, 20
L_enc:
    s_memrealtime s[98:99]
    s_waitcnt lgkmcnt(0)
    s_sub_u32 s98, s98, s{74+2*n}
    s_cmp_lt_u32 s98, s72
    s_cbranch_scc1 L_enc""")
                if o.get('dbg'):
                    out("""    s_load_dwordx2 s[72:73], s[0:1], 80
    s_waitcnt lgkmcnt(0)
    s_not_b32 s98, s74
    v_mov_b32 v1, s98
    global_atomic_umax v0, v1, s[72:73] offset:4""")
                    for k in range(n + 1):
                        out(f"""    v_mov_b32 v1, s{74+2*k}
    global_atomic_umax v0, v1, s[72:73] offset:{8+4*k}""")
                names.append('end')
        else:
            out.L.append(line)
    global TSNAMES
    TSNAMES = names
    return out.text()


if __name__ == '__main__':
    o = eval(sys.argv[2]) if len(sys.argv) > 2 else {}
    open(sys.argv[1], 'w').write(gen(o))
```

```python
import sys

NAME = 'gather_scatter__tensor_product_equiv_equiformer__graph_kernel'
HDR = """; gather_scatter tensor product (equiformer) -- one launch, 250 co-resident workgroups of 11 waves
"""

NCH = 250
CH = 2560
RECB = CH * 12
WS_INB = 0x800000
WS_W = 0x900000
WS_NONCE = 0x910000
WS_TS = 0x1000000
SPIN = 30000

L_CNT = 0
L_FLAG = 512
L_NONCE = 520
L_BASE = 576
L_W = 2048
L_C1 = 2048
L_B1 = 3072
L_ST = 4096
L_KEY = L_W + 40960
CAP = 8320
L_COEF = L_KEY + CAP * 4
L_END = L_COEF + CAP * 8


class Asm:
    def __init__(self):
        self.L = []
    def __call__(self, s):
        for line in s.strip('\n').split('\n'):
            self.L.append(line)
    def text(self):
        return '\n'.join(self.L) + '\n'


def gen_body(A, o):
    NP = 7
    ACC = 96
    RA = lambda p: 8 + 4*p
    RB = lambda p: 36 + 4*p
    TB = lambda p: 64 + p
    MA = lambda p: 40 + 2*p
    MB = lambda p: 54 + 2*p
    PF = o.get('pf', 6500)
    A(f"""
.globl {NAME}
.p2align 8
.type {NAME},@function
{NAME}:
    s_cmp_ge_u32 s2, {NCH}
    s_cbranch_scc1 L_end
;TS start
    s_load_dwordx4 s[40:43], s[0:1], 8
    s_load_dwordx4 s[44:47], s[0:1], 24
    s_load_dwordx2 s[6:7], s[0:1], 88         ; ws
    s_load_dwordx2 s[4:5], s[0:1], 0          ; x
    s_load_dwordx2 s[8:9], s[0:1], 72         ; out
    v_lshrrev_b32 v1, 6, v0
    v_lshlrev_b32 v2, 3, v0
    v_readfirstlane_b32 s3, v1                ; wave
    v_mul_u32_u24 v3, 24, v0
    v_lshlrev_b32 v1, 4, v0
    s_cmp_eq_u32 s3, 10
    s_cbranch_scc1 L_help
    s_mul_i32 s54, s2, {CH*4}
    s_mul_i32 s55, s2, {CH*2}
    s_mul_i32 s56, s2, {CH*6}
    s_mul_i32 s57, s2, {RECB}
    s_waitcnt lgkmcnt(0)
    s_add_u32 s46, s46, s54
    s_addc_u32 s47, s47, 0
    global_load_dwordx4 v[4:7], v1, s[46:47]  ; dst
    s_add_u32 s44, s44, s54
    s_addc_u32 s45, s45, 0
    global_load_dwordx4 v[8:11], v1, s[44:45] ; src
    s_add_u32 s42, s42, s55
    s_addc_u32 s43, s43, 0
    global_load_dwordx2 v[12:13], v2, s[42:43] ; e_attr
    s_add_u32 s40, s40, s56
    s_addc_u32 s41, s41, 0
    global_load_dwordx4 v[14:17], v3, s[40:41] ; rhat
    global_load_dwordx2 v[18:19], v3, s[40:41] offset:16
    v_mov_b32 v44, 0
    v_lshlrev_b32 v45, 2, v0
    ds_write_b32 v45, v44
    ds_write_b32 v45, v44 offset:1024
    s_add_u32 s48, s6, s57
    s_addc_u32 s49, s7, 0
    s_lshl_b32 s57, s2, 3
    s_add_u32 s57, s57, {WS_INB}
    s_add_u32 s50, s6, s57
    s_addc_u32 s51, s7, 0
    s_mov_b32 s12, s4                         ; x descriptor
    s_mov_b32 s13, s5
    s_mov_b32 s14, 5120000
    s_mov_b32 s15, 0x20000
    s_lshl_b32 s57, s2, 11
    s_add_u32 s57, s57, {WS_INB}
    s_add_u32 s16, s6, s57
    s_addc_u32 s17, s7, 0
    s_mov_b32 s18, {NCH*8}
    s_mov_b32 s19, 0x20000
    s_mov_b32 s20, s6
    s_mov_b32 s21, s7
    s_mov_b32 s22, {NCH*RECB}
    s_mov_b32 s23, 0x20000
    s_add_u32 s24, s6, {WS_W}
    s_addc_u32 s25, s7, 0
    s_mov_b32 s26, 40960
    s_mov_b32 s27, 0x20000
    s_mov_b32 s54, 52429
    s_mov_b32 s55, 6711
    s_mov_b32 s56, 0xffff0000
    s_movk_i32 s57, {L_ST}
    v_mov_b32 v46, 1
    v_and_b32 v0, 63, v0
    v_lshlrev_b32 v47, 4, v0                  ; lane*16
    s_waitcnt lgkmcnt(0)
    s_barrier                                 ; B1""")
    for i in range(64):
        A(f"    v_mov_b32 v{ACC+i}, 0")
    A("    s_waitcnt vmcnt(4)\n;TS dst")
    for i in range(4):
        A(f"""    v_mul_u32_u24 v{20+i}, s54, v{4+i}
    v_lshrrev_b32 v{20+i}, 21, v{20+i}          ; bucket""")
    for i in range(4):
        A(f"""    v_mul_u32_u24 v{48+i}, 40, v{20+i}
    v_lshlrev_b32 v{20+i}, 2, v{20+i}
    ds_add_rtn_u32 v{24+i}, v{20+i}, v46 offset:{L_C1}""")
    for i in range(4):
        A(f"    v_sub_u32 v{4+i}, v{4+i}, v{48+i}")
    A("""    s_waitcnt lgkmcnt(0)
    s_barrier                                 ; B2
;TS hist1""")
    A(f"""    ds_read_b128 v[48:51], v47 offset:{L_C1}
    v_add_u32 v2, {CH*4}, v1
    v_add_u32 v3, {CH*8}, v1
    s_waitcnt lgkmcnt(0)
    v_add_u32 v52, v48, v49
    v_add_u32 v53, v52, v50
    v_add_u32 v54, v53, v51
    v_mov_b32 v55, v54
    s_nop 1
    v_add_u32_dpp v55, v55, v55 row_shr:1 row_mask:0xf bank_mask:0xf
    s_nop 1
    v_add_u32_dpp v55, v55, v55 row_shr:2 row_mask:0xf bank_mask:0xf
    s_nop 1
    v_add_u32_dpp v55, v55, v55 row_shr:4 row_mask:0xf bank_mask:0xf
    s_nop 1
    v_add_u32_dpp v55, v55, v55 row_shr:8 row_mask:0xf bank_mask:0xf
    s_nop 1
    v_add_u32_dpp v55, v55, v55 row_bcast:15 row_mask:0xa bank_mask:0xf
    s_nop 1
    v_add_u32_dpp v55, v55, v55 row_bcast:31 row_mask:0xc bank_mask:0xf
    v_sub_u32 v56, v55, v54
    v_add_u32 v57, v56, v48
    v_add_u32 v58, v56, v52
    v_add_u32 v59, v56, v53
    ds_write_b128 v47, v[56:59] offset:{L_B1}
    v_lshl_or_b32 v60, v48, 12, v56
    v_lshl_or_b32 v61, v49, 12, v57
    v_lshl_or_b32 v62, v50, 12, v58
    v_lshl_or_b32 v63, v51, 12, v59
    s_waitcnt lgkmcnt(0)""")
    for i in range(4):
        A(f"    ds_read_b32 v{64+i}, v{20+i} offset:{L_B1}")
    A("    s_waitcnt vmcnt(3)")
    for i in range(4):
        k = 30 + 4*i
        A(f"""    v_mul_u32_u24 v48, s55, v{8+i}
    v_lshrrev_b32 v48, 23, v48
    v_lshrrev_b32 v49, 2, v{4+i}
    v_lshl_add_u32 v48, v49, 3, v48
    v_lshlrev_b32 v{k}, 9, v{8+i}
    v_lshl_or_b32 v{k}, v48, 2, v{k}
    v_lshl_or_b32 v{k}, v{4+i}, 30, v{k}""")
    A("    s_waitcnt lgkmcnt(0)")
    for i in range(4):
        A(f"""    v_add_u32 v{64+i}, v{64+i}, v{24+i}
    v_mad_u32_u24 v{64+i}, v{64+i}, 12, s57
    ds_write_b32 v{64+i}, v{30+4*i} offset:8""")
    A("    s_waitcnt vmcnt(0)\n;TS loads")
    for i in range(4):
        src = 12 + i // 2
        A(f"    v_lshlrev_b32 v{68+i}, 16, v{src}" if i % 2 == 0 else f"    v_and_b32 v{68+i}, s56, v{src}")
    for i in range(4):
        for j in range(3*i, 3*i+3):
            src = 14 + j // 2
            A(f"    v_lshlrev_b32 v{72+j}, 16, v{src}" if j % 2 == 0 else f"    v_and_b32 v{72+j}, s56, v{src}")
            A(f"    v_mul_f32 v{72+j}, v{68+i}, v{72+j}")
        r = 28 + 4*i
        A(f"""    v_cvt_pk_bf16_f32 v{r}, v{68+i}, v{72+3*i}
    v_cvt_pk_bf16_f32 v{r+1}, v{73+3*i}, v{74+3*i}
    ds_write2_b32 v{64+i}, v{r}, v{r+1} offset0:0 offset1:1""")
    A(f"""    v_mov_b32 v44, {L_NONCE}
    s_waitcnt lgkmcnt(0)
    s_barrier                                 ; B3
;TS staged
    ds_read_b128 v[28:31], v1 offset:{L_ST}
    ds_read_b128 v[32:35], v1 offset:{L_ST+CH*4}
    ds_read_b128 v[36:39], v1 offset:{L_ST+CH*8}
    ds_read_b32 v44, v44
    s_waitcnt lgkmcnt(3)
    global_store_dwordx4 v1, v[28:31], s[48:49] sc1
    s_waitcnt lgkmcnt(2)
    global_store_dwordx4 v2, v[32:35], s[48:49] sc1
    s_waitcnt lgkmcnt(1)
    global_store_dwordx4 v3, v[36:39], s[48:49] sc1
    s_cmp_eq_u32 s3, 1
    s_cselect_b64 s[58:59], -1, 0
    s_cmp_eq_u32 s3, 2
    s_cselect_b64 s[60:61], -1, 0
    s_cmp_eq_u32 s3, 3
    s_cselect_b64 s[62:63], -1, 0
    v_cndmask_b32 v60, v60, v61, s[58:59]
    v_cndmask_b32 v60, v60, v62, s[60:61]
    v_cndmask_b32 v60, v60, v63, s[62:63]
    v_lshlrev_b32 v62, 13, v0
    s_lshl_b32 s58, s3, 11
    v_add_u32 v62, s58, v62
    s_mul_i32 s58, s3, 25
    v_add_u32 v45, s58, v0
    v_lshlrev_b32 v45, 3, v45
    v_lshrrev_b32 v2, 4, v0
    v_add_u32 v4, s58, v2
    s_mov_b32 s10, {RECB}
    v_mul_lo_u32 v4, v4, s10
    v_and_b32 v5, 15, v0
    v_mad_u32_u24 v4, v5, 12, v4
    v_lshlrev_b32 v2, 2, v2
    s_mov_b32 s33, 0
    s_waitcnt lgkmcnt(0)
    v_readfirstlane_b32 s70, v44
    s_and_b32 s71, s70, 0xff000000
    s_xor_b32 s71, s71, 0xa5000000
    v_or_b32 v60, s71, v60
    v_mov_b32 v61, s70
    s_waitcnt vmcnt(0)
    s_barrier                                 ; B4
;TS drained
    s_cmp_ge_u32 s3, 4
    s_cbranch_scc1 L_nopub
    global_store_dwordx2 v62, v[60:61], s[50:51] sc1
L_nopub:
    s_mov_b32 s10, {SPIN}
    s_mov_b64 exec, 0x1ffffff
L_poll:
    buffer_load_dwordx2 v[6:7], v45, s[16:19], 0 offen sc1
    s_sub_u32 s10, s10, 1
    s_cbranch_scc1 L_end
    s_waitcnt vmcnt(0)
    v_xor_b32 v3, s71, v6
    v_xor_b32 v7, s70, v7
    v_lshrrev_b32 v6, 24, v3
    v_or_b32 v6, v6, v7
    v_cmp_ne_u32 vcc, 0, v6
    s_cbranch_vccnz L_poll
    s_not_b64 exec, exec
    v_mov_b32 v3, 0
    s_mov_b64 exec, -1
;TS polled
L_round:
    s_nop 0""")
    for p in range(NP):
        A(f"    ds_bpermute_b32 v{TB(p)}, v2, v3 offset:{16*p}")
    A(f"""    v_mov_b32 v72, 0x40000000
    v_add_u32 v73, 16, v5
    v_mov_b32 v74, 0
    s_add_u32 s34, s33, 32
    s_movk_i32 s11, 0xfff""")
    for p in range(NP):
        A(f"""    s_waitcnt lgkmcnt({NP-1-p})
    v_lshrrev_b32 v75, 12, v{TB(p)}
    v_and_b32 v76, s11, v{TB(p)}
    v_cmp_lt_u32 s[{MA(p)}:{MA(p)+1}], v5, v75
    v_cmp_lt_u32 s[{MB(p)}:{MB(p)+1}], v73, v75
    v_mad_u32_u24 v{TB(p)}, v76, 12, v4
    v_max_u32 v74, v74, v75
    v_cndmask_b32 v76, v72, v{TB(p)}, s[{MA(p)}:{MA(p)+1}]
    s_mov_b32 s10, {p*4*RECB}
    buffer_load_dwordx3 v[{RA(p)}:{RA(p)+2}], v76, s[20:23], s10 offen sc1""")
    for p in range(NP):
        A(f"""    s_cmp_eq_u64 s[{MB(p)}:{MB(p)+1}], 0
    s_cbranch_scc1 L_nb{p}
    v_cndmask_b32 v76, v72, v{TB(p)}, s[{MB(p)}:{MB(p)+1}]
    s_mov_b32 s10, {p*4*RECB}
    buffer_load_dwordx3 v[{RB(p)}:{RB(p)+2}], v76, s[20:23], s10 offen offset:192 sc1
L_nb{p}:""")
    NPF = 0
    if PF:
        NPF = (PF * 4 + 31*640 - 1) // (31*640)
        A(f"""    s_lshr_b32 s10, s2, 3
    s_min_u32 s10, s10, 30
    s_mul_i32 s11, s3, 31
    s_add_u32 s10, s10, s11
    s_lshl_b32 s10, s10, 13
    v_lshlrev_b32 v76, 7, v0
    s_mov_b32 s14, {PF*512}""")
        for i in range(NPF):
            A(f"    buffer_load_dword v{160+i}, v76, s[12:15], s10 offen")
            if i + 1 < NPF:
                A(f"    s_add_u32 s10, s10, {310*8192}")
        A("    s_mov_b32 s14, 5120000")
    A(f"""    v_cmp_lt_u32 vcc, s34, v74
    v_mov_b32 v6, 1
    v_mov_b32 v7, {L_FLAG}
    s_and_saveexec_b64 s[36:37], vcc
    ds_write_b32 v7, v6
    s_mov_b64 exec, -1
    s_movk_i32 s11, 0x1fc
    s_waitcnt vmcnt({NPF})
;TS recs""")
    for p in range(NP):
        A(f"""    v_and_b32 v{TB(p)}, s11, v{RA(p)+2}
    s_mov_b64 exec, s[{MA(p)}:{MA(p)+1}]
    ds_add_rtn_u32 v{RA(p)+3}, v{TB(p)}, v6
    s_mov_b64 exec, -1""")
    for p in range(NP):
        A(f"""    s_cmp_eq_u64 s[{MB(p)}:{MB(p)+1}], 0
    s_cbranch_scc1 L_nc{p}
    v_and_b32 v76, s11, v{RB(p)+2}
    s_mov_b64 exec, s[{MB(p)}:{MB(p)+1}]
    ds_add_rtn_u32 v{RB(p)+3}, v76, v6
    s_mov_b64 exec, -1
L_nc{p}:""")
    A(f"""    v_and_b32 v72, 15, v0
    v_lshlrev_b32 v73, 5, v72
    v_lshlrev_b32 v77, 4, v0
    s_lshl_b32 s10, s3, 12
    s_add_u32 m0, s10, {L_W}
    s_waitcnt lgkmcnt(0)
    s_barrier                                 ; B5
;TS hist2
    ds_read_b128 v[84:87], v73
    ds_read_b128 v[80:83], v73 offset:16
    ds_read_b32 v75, v7
    buffer_load_dwordx4 v77, s[24:27], s10 offen sc1 lds
    buffer_load_dwordx4 v77, s[24:27], s10 offen offset:1024 sc1 lds
    buffer_load_dwordx4 v77, s[24:27], s10 offen offset:2048 sc1 lds
    buffer_load_dwordx4 v77, s[24:27], s10 offen offset:3072 sc1 lds
    s_waitcnt lgkmcnt(2)
    v_add_u32 v85, v84, v85                   ; p2
    v_add_u32 v86, v85, v86                   ; p3
    v_add_u32 v87, v86, v87                   ; p4
    s_waitcnt lgkmcnt(1)
    v_add_u32 v88, v87, v80                   ; p5
    v_add_u32 v89, v88, v81                   ; p6
    v_add_u32 v90, v89, v82                   ; p7
    v_add_u32 v91, v90, v83
    v_add_u32 v92, 31, v91
    v_and_b32 v92, 0xffffffe0, v92
    v_mov_b32 v93, v92
    v_cmp_gt_u32 vcc, 10, v72
    s_nop 0
    v_add_u32_dpp v93, v93, v93 row_shr:1 row_mask:0xf bank_mask:0xf
    v_cndmask_b32 v94, -1, v92, vcc
    s_nop 0
    v_add_u32_dpp v93, v93, v93 row_shr:2 row_mask:0xf bank_mask:0xf
    v_min_u32_dpp v94, v94, v94 row_shr:1 row_mask:0xf bank_mask:0xf
    s_nop 0
    v_add_u32_dpp v93, v93, v93 row_shr:4 row_mask:0xf bank_mask:0xf
    v_min_u32_dpp v94, v94, v94 row_shr:2 row_mask:0xf bank_mask:0xf
    s_nop 0
    v_add_u32_dpp v93, v93, v93 row_shr:8 row_mask:0xf bank_mask:0xf
    v_min_u32_dpp v94, v94, v94 row_shr:4 row_mask:0xf bank_mask:0xf
    v_sub_u32 v93, v93, v92
    v_add_u32 v77, v93, v84
    v_min_u32_dpp v94, v94, v94 row_shr:8 row_mask:0xf bank_mask:0xf
    v_mov_b32 v76, v93
    v_add_u32 v78, v93, v85
    v_add_u32 v79, v93, v86
    v_add_u32 v80, v93, v87
    v_add_u32 v81, v93, v88
    v_add_u32 v82, v93, v89
    v_add_u32 v83, v93, v90
    ds_write_b128 v73, v[76:79] offset:{L_BASE}
    ds_write_b128 v73, v[80:83] offset:{L_BASE+16}
    v_readlane_b32 s28, v93, s3
    v_readlane_b32 s29, v91, s3
    v_readlane_b32 s30, v92, s3
    v_readlane_b32 s31, v94, 15
    s_waitcnt lgkmcnt(2)
    v_readfirstlane_b32 s35, v75
    s_mov_b32 s10, {L_COEF}
    s_waitcnt lgkmcnt(0)""")
    for p in range(NP):
        A(f"    ds_read_b32 v{TB(p)}, v{TB(p)} offset:{L_BASE}")
    A(f"""    v_add_u32 v76, s29, v0
    v_cmp_gt_u32 vcc, s30, v76
    v_add_u32 v76, s28, v76
    v_lshlrev_b32 v77, 2, v76
    v_lshl_add_u32 v76, v76, 3, s10
    v_mov_b32 v78, 0
    v_mov_b32 v79, 0
    v_mov_b32 v80, 0x800000""")
    for p in range(NP):
        A(f"""    s_waitcnt lgkmcnt({NP-1-p})
    v_add_u32 v{TB(p)}, v{TB(p)}, v{RA(p)+3}
    v_lshl_add_u32 v{RA(p)+3}, v{TB(p)}, 3, s10
    v_lshlrev_b32 v{TB(p)}, 2, v{TB(p)}""")
    for p in range(NP):
        A(f"""    s_mov_b64 exec, s[{MA(p)}:{MA(p)+1}]
    ds_write_b64 v{RA(p)+3}, v[{RA(p)}:{RA(p)+1}]
    ds_write_b32 v{TB(p)}, v{RA(p)+2} offset:{L_KEY}""")
    A(f"""    s_mov_b64 exec, vcc
    ds_write_b64 v76, v[78:79]
    ds_write_b32 v77, v80 offset:{L_KEY}
    s_mov_b64 exec, -1""")
    for p in range(NP):
        A(f"""    s_cmp_eq_u64 s[{MB(p)}:{MB(p)+1}], 0
    s_cbranch_scc1 L_nd{p}
    v_and_b32 v76, s11, v{RB(p)+2}
    ds_read_b32 v76, v76 offset:{L_BASE}
    s_waitcnt lgkmcnt(0)
    v_add_u32 v76, v76, v{RB(p)+3}
    v_lshl_add_u32 v77, v76, 3, s10
    v_lshlrev_b32 v76, 2, v76
    s_mov_b64 exec, s[{MB(p)}:{MB(p)+1}]
    ds_write_b64 v77, v[{RB(p)}:{RB(p)+1}]
    ds_write_b32 v76, v{RB(p)+2} offset:{L_KEY}
    s_mov_b64 exec, -1
L_nd{p}:""")
    NBM = o.get('nbm', 3)
    A(f"""    v_and_b32 v1, 15, v0
    v_lshrrev_b32 v31, 4, v0
    v_lshlrev_b32 v31, 3, v31
    v_add_u32 v31, s28, v31
    v_lshrrev_b32 v7, 2, v1
    v_add_u32 v7, v7, v31
    v_lshl_add_u32 v30, v7, 3, s10
    v_lshl_or_b32 v30, v0, 30, v30
    v_lshlrev_b32 v6, 2, v31
    v_lshlrev_b32 v7, 2, v7
    v_add_u32 v7, {L_KEY}, v7
    v_lshlrev_b32 v1, 4, v1
    s_lshr_b32 s30, s30, 5
    s_lshr_b32 s31, s31, 5
    s_max_u32 s31, s31, {NBM}
    s_sub_u32 s31, s31, {NBM}
    s_mov_b32 s28, 0x00fffe00
    s_mov_b32 s29, 0xc0000000
    s_mov_b32 s38, 0x05040100
    s_mov_b32 s39, 0x07060302
    s_waitcnt lgkmcnt(0)
    s_barrier                                 ; B6
;TS sorted
;CLK 0
    s_cmp_lg_u32 s30, 0
    s_cbranch_scc1 L_go
    s_waitcnt vmcnt(0)
    s_barrier
    s_branch L_done
L_go:""")

    def read_keys():
        A(f"""    ds_read_b128 v[8:11], v6 offset:{L_KEY}
    ds_read_b128 v[12:15], v6 offset:{L_KEY+16}
    ds_read2_b32 v[28:29], v7 offset0:0 offset1:4
    v_add_u32 v6, 128, v6
    v_add_u32 v7, 128, v7""")
    def mk_addr():
        for e in range(8):
            A(f"    v_and_or_b32 v{8+e}, v{8+e}, s28, v1")
        A("""    v_bitop3_b32 v28, v28, s29, v30 bitop3:0x6a
    v_bitop3_b32 v29, v29, s29, v30 bitop3:0x6a
    v_add_u32 v30, 256, v30""")
    def issue(h):
        for e in range(8):
            r = 32 + h*32 + e*4
            A(f"    buffer_load_dwordx4 v[{r}:{r+3}], v{8+e}, s[12:15], 0 offen offset:{h*256}")
    def read_b():
        A("""    ds_read_b64_tr_b16 v[16:17], v28
    ds_read_b64_tr_b16 v[18:19], v29 offset:32""")
    def half(h):
        D = 32 + h*32
        def perms(j):
            t = 20 + (j % 2) * 4
            sel = 's38' if j % 2 == 0 else 's39'
            for q in range(4):
                A(f"    v_perm_b32 v{t+q}, v{D + (2*q+1)*4 + j//2}, v{D + 2*q*4 + j//2}, {sel}")
        def mfma(j):
            t = 20 + (j % 2) * 4
            a = ACC + (h*8 + j) * 4
            A(f"    v_mfma_f32_16x16x32_bf16 v[{a}:{a+3}], v[{t}:{t+3}], v[16:19], v[{a}:{a+3}]")
        perms(0)
        for j in range(8):
            if j + 1 < 8:
                perms(j + 1)
            else:
                A("    s_nop 1")
            mfma(j)

    read_keys()
    A("    s_waitcnt lgkmcnt(0)")
    mk_addr()
    issue(0); issue(1)
    read_b()
    read_keys()
    A("""    s_waitcnt vmcnt(16)
    s_barrier                                 ; B7
    s_sub_u32 s30, s30, 1
    s_cmp_eq_u32 s30, 0
    s_cbranch_scc1 L_last
L_loop:
    s_waitcnt lgkmcnt(0)""")
    mk_addr()
    A("    s_waitcnt vmcnt(8)")
    half(0)
    issue(0)
    A("""    s_cmp_eq_u32 s31, 0
    s_cbranch_scc1 L_nobar
    s_sub_u32 s31, s31, 1
    s_barrier
L_nobar:
    s_waitcnt vmcnt(8)""")
    half(1)
    issue(1)
    read_b()
    read_keys()
    A("""    s_sub_u32 s30, s30, 1
    s_cmp_lg_u32 s30, 0
    s_cbranch_scc1 L_loop
L_last:
    s_waitcnt vmcnt(8) lgkmcnt(0)""")
    half(0)
    A("    s_waitcnt vmcnt(0)")
    half(1)
    A(f"""L_done:
    s_cmp_eq_u32 s35, 0
    s_cbranch_scc1 L_epi
    s_barrier                                 ; every wave is done with this round's lists
    v_mov_b32 v6, 0
    v_lshlrev_b32 v7, 2, v0
    ds_write_b32 v7, v6
    ds_write_b32 v7, v6 offset:256
    ds_write_b32 v7, v6 offset:264
    s_add_u32 s33, s33, 32
    v_add_u32 v5, 32, v5
    v_add_u32 v4, {32*12}, v4
    s_waitcnt lgkmcnt(0)
    s_barrier
    s_branch L_round
L_epi:
;TS main
;CLK 1""")
    WB = 64
    A("    v_lshlrev_b32 v1, 4, v0")
    order = [(p, u, t) for p in (0, 2, 1, 3, 4) for u in range(2) for t in range(4)]
    fr = lambda put: put[0]*8 + put[1]*4 + put[2]
    def wread_i(n):
        f = fr(order[n]); r = WB + (n % 8) * 4
        A(f"    ds_read_b128 v[{r}:{r+3}], v1 offset:{L_W + f*1024}")
    for n in range(8):
        wread_i(n)
    A("""    v_and_b32 v2, 3, v0
    v_cmp_eq_u32 s[40:41], 0, v2
    v_cmp_eq_u32 s[42:43], 1, v2
    v_cmp_eq_u32 s[44:45], 2, v2
    v_cmp_eq_u32 s[46:47], 3, v2
    s_or_b64 s[48:49], s[40:41], s[42:43]
    s_or_b64 s[50:51], s[40:41], s[44:45]
    s_or_b64 s[52:53], s[40:41], s[46:47]
    v_cndmask_b32 v3, 0, 1.0, s[48:49]        ; b1
    v_cndmask_b32 v4, 0, 1.0, s[50:51]        ; b2
    v_cndmask_b32 v5, 0, 1.0, s[52:53]        ; b3
    v_cndmask_b32 v6, 0, 1.0, s[44:45]
    v_cndmask_b32 v7, 0, 1.0, s[46:47]
    v_cndmask_b32 v32, 0, 1.0, s[42:43]
    v_cndmask_b32 v6, v6, -1.0, s[46:47]      ; c1
    v_cndmask_b32 v7, v7, -1.0, s[42:43]      ; c2
    v_cndmask_b32 v2, v32, -1.0, s[44:45]     ; c3""")
    acc = lambda h, j, r: ACC + (h*8 + j)*4 + r
    for h in range(2):
        for j in range(4):
            for r in range(4):
                A(f"    v_permlane32_swap_b32 v{acc(h,j,r)}, v{acc(h,j+4,r)}")
    PA, PB, PC = 8, 16, 24
    T = lambda c, r, j: acc(c // 2, j + 4*(c % 2), r)
    for u in range(2):
        for q in range(4):
            r = 2*u + q // 2; j = (q % 2) * 2
            A(f"    v_cvt_pk_bf16_f32 v{PA+u*4+q}, v{T(0,r,j)}, v{T(0,r,j+1)}")
    dp = {1: 'quad_perm:[1,0,3,2]', 2: 'quad_perm:[2,3,0,1]', 3: 'quad_perm:[3,2,1,0]'}
    for u in range(2):
        for q in range(4):
            r = 2*u + q // 2; j = (q % 2) * 2
            for (dst, k) in ((32, (3, 4, 5)), (34, (6, 7, 2))):
                for c in (1, 2, 3):
                    for d in range(2):
                        op = 'v_mul_f32_dpp' if c == 1 else 'v_fmac_f32_dpp'
                        A(f"    {op} v{dst+d}, v{T(c,r,j+d)}, v{k[c-1]} {dp[c]} row_mask:0xf bank_mask:0xf")
            A(f"    v_cvt_pk_bf16_f32 v{PB+u*4+q}, v32, v33")
            A(f"    v_cvt_pk_bf16_f32 v{PC+u*4+q}, v34, v35")
    D0, D1 = 32, 48
    A("    s_nop 1")
    seen = set()
    for n, (p, u, t) in enumerate(order):
        P = {0: PA, 2: PA, 1: PB, 3: PB, 4: PC}[p] + u*4
        D = (D0 if p < 2 else D1) + t*4
        w = WB + (n % 8) * 4
        c = f"v[{D}:{D+3}]" if D in seen else "0"
        seen.add(D)
        A(f"    s_waitcnt lgkmcnt({min(7, len(order)-1-n)})")
        A(f"    v_mfma_f32_16x16x32_bf16 v[{D}:{D+3}], v[{P}:{P+3}], v[{w}:{w+3}], {c}")
        if n + 8 < len(order):
            wread_i(n + 8)
    A(f"""    s_mul_i32 s10, s2, 40
    s_lshl_b32 s11, s3, 2
    s_add_u32 s10, s10, s11
    s_lshl_b32 s10, s10, 9
    s_add_u32 s8, s8, s10
    s_addc_u32 s9, s9, 0
    v_lshrrev_b32 v2, 4, v0
    v_and_b32 v3, 15, v0
    v_lshlrev_b32 v2, 9, v2
    v_lshl_add_u32 v2, v3, 3, v2
    s_mov_b32 s10, 0xbfb8aa3b                 ; -log2(e)""")
    for t in range(4):
        A(f"    v_mul_f32 v{8+t}, s10, v{D0+t*4}")
    for t in range(4):
        A(f"    v_exp_f32 v{8+t}, v{8+t}")
    A(f"""    v_cvt_pk_bf16_f32 v12, v{D0}, v{D0+4}
    v_cvt_pk_bf16_f32 v13, v{D0+8}, v{D0+12}""")
    for t in range(4):
        A(f"    v_add_f32 v{8+t}, 1.0, v{8+t}")
    A("    global_store_dwordx2 v2, v[12:13], s[8:9]")
    for t in range(4):
        A(f"    v_rcp_f32 v{8+t}, v{8+t}")
    A("    s_nop 0")
    for i in range(1, 4):
        for t in range(4):
            A(f"    v_mul_f32 v{D1+t*4+i}, v{D1+t*4+i}, v{8+t}")
        A(f"""    v_cvt_pk_bf16_f32 v{12+2*i}, v{D1+i}, v{D1+4+i}
    v_cvt_pk_bf16_f32 v{13+2*i}, v{D1+8+i}, v{D1+12+i}
    global_store_dwordx2 v2, v[{12+2*i}:{13+2*i}], s[8:9] offset:{i*128}""")
    A(""";TSOUT
L_end:
    s_endpgm""")

    A(f"""L_help:
    s_load_dwordx4 s[60:63], s[0:1], 40
    s_load_dwordx2 s[64:65], s[0:1], 56       ; w_si1
    s_load_dwordx2 s[66:67], s[0:1], 80
    v_and_b32 v0, 63, v0
    v_mov_b32 v40, 0
    s_barrier                                 ; B1
    s_waitcnt lgkmcnt(0)
    s_mov_b32 s12, s4                         ; x descriptor
    s_mov_b32 s13, s5
    s_mov_b32 s14, 5120000
    s_mov_b32 s15, 0x20000
    s_cmp_lg_u32 s2, 0
    s_cbranch_scc1 L_h1
    s_add_u32 s48, s6, {WS_NONCE}
    s_addc_u32 s49, s7, 0
    global_load_dword v41, v40, s[48:49] sc1
    s_mov_b32 s10, 1664525
    s_waitcnt vmcnt(0)
    v_mul_lo_u32 v41, v41, s10
    v_add_u32 v41, 0x3c6ef35f, v41
    v_max_u32 v41, 1, v41
    global_store_dword v40, v41, s[66:67] sc1
    global_store_dword v40, v41, s[48:49] sc1
L_h1:
    s_sub_u32 s53, s2, 1
    s_cmp_ge_u32 s53, 40
    s_cbranch_scc1 L_h2
    s_lshr_b32 s55, s53, 3
    s_bfe_u32 s56, s53, 0x10002
    s_and_b32 s57, s53, 3
    v_lshrrev_b32 v1, 4, v0
    v_and_b32 v2, 1, v1
    v_lshlrev_b32 v2, 5, v2
    v_lshrrev_b32 v1, 1, v1
    v_lshl_add_u32 v2, v1, 2, v2
    s_lshl_b32 s56, s56, 4
    v_add_u32 v2, s56, v2                     ; ch0 = 32*(g&1) + 4*(g>>1) + 16*u
    v_and_b32 v3, 15, v0
    v_lshlrev_b32 v3, 2, v3
    v_add_u32 v3, s57, v3                     ; c_out = 4n + t
    s_lshl_b32 s58, s55, 6
    v_add_u32 v4, s58, v2
    v_lshlrev_b32 v4, 1, v4
    s_cmp_lt_u32 s55, 2
    s_cselect_b32 s59, 0, 128
    s_cselect_b32 s62, s62, s64
    s_cselect_b32 s63, s63, s65
    s_sub_u32 s58, s58, s59
    v_add_u32 v5, s58, v2
    v_lshlrev_b32 v5, 7, v5
    v_lshl_add_u32 v5, v3, 1, v5
    s_lshl_b32 s54, s53, 10
    s_add_u32 s54, s54, {WS_W}
    v_lshlrev_b32 v6, 4, v0
    s_add_u32 s50, s6, s54
    s_addc_u32 s51, s7, 0
    global_load_dwordx2 v[8:9], v4, s[60:61]
    global_load_dwordx2 v[10:11], v4, s[60:61] offset:16""")
    for e in range(8):
        row = (e // 4) * 8 + e % 4
        A(f"    global_load_ushort v{12+e}, v5, s[62:63] offset:{row*128}")
    A("    s_mov_b32 s56, 0xffff0000\n    s_waitcnt vmcnt(0)")
    for e in range(8):
        src = 8 + e // 2
        A(f"    v_lshlrev_b32 v{20+e}, 16, v{src}" if e % 2 == 0 else f"    v_and_b32 v{20+e}, s56, v{src}")
        A(f"    v_lshlrev_b32 v{12+e}, 16, v{12+e}")
        A(f"    v_mul_f32 v{12+e}, v{12+e}, v{20+e}")
    for q in range(4):
        A(f"    v_cvt_pk_bf16_f32 v{28+q}, v{12+2*q}, v{13+2*q}")
    A(f"""    global_store_dwordx4 v6, v[28:31], s[50:51] sc1
L_h2:
    v_lshlrev_b32 v1, 7, v0
    s_mov_b32 s10, {SPIN}
    global_load_dword v41, v40, s[66:67] sc1
    s_barrier                                 ; B2
    s_branch L_hchk
L_hpoll:
    global_load_dword v41, v40, s[66:67] sc1
    s_sub_u32 s10, s10, 1
    s_cbranch_scc1 L_end
L_hchk:
    s_waitcnt vmcnt(0)
    v_cmp_eq_u32 vcc, 0, v41
    s_cbranch_vccnz L_hpoll
    v_mov_b32 v42, {L_NONCE}
    ds_write_b32 v42, v41""")
    if o.get('mall', 1):
        A(f"""    s_mul_i32 s10, s2, {160*128}
    buffer_load_dword v32, v1, s[12:15], s10 offen
    s_add_u32 s10, s10, 8192
    buffer_load_dword v33, v1, s[12:15], s10 offen
    s_add_u32 s10, s10, 4096
    buffer_load_dword v34, v1, s[12:15], s10 offen""")
    A("""    s_waitcnt lgkmcnt(0)
    s_barrier                                 ; B3
    s_barrier                                 ; B4
    s_endpgm""")


def gen(o):
    A = Asm()
    A(HDR.rstrip('\n'))
    ex = o.get('extra')
    if ex == 'lead':
        A("; @launch kernel=e_kernel grid=(1,1,1) block=(64,1,1) lds=0")
    if ex == 'leadbig':
        A(f"; @launch kernel=e_kernel grid=(250,1,1) block=(704,1,1) lds={L_END}")
    if ex:
        A(f"; @launch kernel={NAME} grid=({NCH},1,1) block=(704,1,1) lds={L_END}")
    else:
        A(f"; @launch grid=({NCH},1,1) block=(704,1,1) lds={L_END}")
    if ex == 'trail':
        A("; @launch kernel=e_kernel grid=(1,1,1) block=(64,1,1) lds=0")
    A('.amdgcn_target "amdgcn-amd-amdhsa--gfx950"\n.text')
    gen_body(A, o)
    ts = o.get('ts') or []
    if ex and ex != 'list':
        A(".globl e_kernel\n.p2align 8\n.type e_kernel,@function\ne_kernel:\n    s_endpgm")
    A(f""".section .rodata,"a"
.p2align 6
.amdhsa_kernel {NAME}
  .amdhsa_next_free_vgpr 164
  .amdhsa_next_free_sgpr {102 if ts else 72}
  .amdhsa_accum_offset 164
  .amdhsa_group_segment_fixed_size 0
  .amdhsa_kernarg_size 96
  .amdhsa_user_sgpr_count 2
  .amdhsa_user_sgpr_kernarg_segment_ptr 1
  .amdhsa_system_sgpr_workgroup_id_x 1
.end_amdhsa_kernel""")
    if ex and ex != 'list':
        A(""".p2align 6
.amdhsa_kernel e_kernel
  .amdhsa_next_free_vgpr 8
  .amdhsa_next_free_sgpr 16
  .amdhsa_accum_offset 8
  .amdhsa_group_segment_fixed_size 0
  .amdhsa_kernarg_size 96
  .amdhsa_user_sgpr_count 2
  .amdhsa_user_sgpr_kernarg_segment_ptr 1
  .amdhsa_system_sgpr_workgroup_id_x 1
.end_amdhsa_kernel""")
    out = Asm()
    names = []
    for line in A.L:
        if line.startswith(';TS '):
            nm = line.split()[1]
            if (ts == 1 or nm in ts) and len(names) < 11:
                k = len(names)
                out(f"    s_memrealtime s[{74+2*k}:{75+2*k}]")
                names.append(nm)
        elif line.startswith(';CLK'):
            if ts:
                k = int(line.split()[1])
                out(f"    s_memtime s[{98+2*k}:{99+2*k}]")
        elif line.startswith(';TSOUT'):
            if ts:
                n = len(names)
                out(f"""    s_waitcnt vmcnt(0)
    s_memrealtime s[{74+2*n}:{75+2*n}]
    s_waitcnt lgkmcnt(0)
    s_mul_i32 s72, s2, 10
    s_add_u32 s72, s72, s3
    s_lshl_b32 s72, s72, 6
    s_add_u32 s72, s72, {WS_TS}
    s_add_u32 s6, s6, s72
    s_addc_u32 s7, s7, 0
    v_mov_b32 v0, 0
    s_mov_b64 exec, 1
    s_sub_u32 s98, s100, s98
    v_mov_b32 v1, s98
    global_store_dword v0, v1, s[6:7] offset:60""")
                for k in range(n + 1):
                    out(f"""    v_mov_b32 v1, s{74+2*k}
    global_store_dword v0, v1, s[6:7] offset:{4*k}""")
                if o.get('enc'):
                    k = (names + ['end']).index(o['enc'])
                    out(f"""    s_add_u32 s72, s2, s3
    s_cmp_lg_u32 s72, 0
    s_cbranch_scc1 L_end
    s_sub_u32 s72, s{74+2*k}, s74
    s_mul_i32 s72, s72, 20
L_enc:
    s_memrealtime s[98:99]
    s_waitcnt lgkmcnt(0)
    s_sub_u32 s98, s98, s{74+2*n}
    s_cmp_lt_u32 s98, s72
    s_cbranch_scc1 L_enc""")
                if o.get('dbg'):
                    out("""    s_load_dwordx2 s[72:73], s[0:1], 80
    s_waitcnt lgkmcnt(0)
    s_not_b32 s98, s74
    v_mov_b32 v1, s98
    global_atomic_umax v0, v1, s[72:73] offset:4""")
                    for k in range(n + 1):
                        out(f"""    v_mov_b32 v1, s{74+2*k}
    global_atomic_umax v0, v1, s[72:73] offset:{8+4*k}""")
                names.append('end')
        else:
            out.L.append(line)
    global TSNAMES
    TSNAMES = names
    return out.text()


if __name__ == '__main__':
    o = eval(sys.argv[2]) if len(sys.argv) > 2 else {}
    open(sys.argv[1], 'w').write(gen(o))
```

```python
import sys

NAME = 'gather_scatter__tensor_product_equiv_equiformer__graph_kernel'
HDR = """; gather_scatter tensor product (equiformer) -- one launch, 250 co-resident workgroups of 11 waves
"""

NCH = 250
CH = 2560
RECB = CH * 12
WS_INB = 0x800000
WS_W = 0x900000
WS_NONCE = 0x910000
WS_TS = 0x1000000
SPIN = 30000

L_CNT = 0
L_FLAG = 512
L_NONCE = 520
L_BASE = 576
L_W = 2048
L_C1 = 2048
L_B1 = 3072
L_ST = 4096
L_KEY = L_W + 40960
CAP = 8320
L_COEF = L_KEY + CAP * 4
L_END = L_COEF + CAP * 8


class Asm:
    def __init__(self):
        self.L = []
    def __call__(self, s):
        for line in s.strip('\n').split('\n'):
            self.L.append(line)
    def text(self):
        return '\n'.join(self.L) + '\n'


def gen_body(A, o):
    NP = 7
    ACC = 96
    RA = lambda p: 8 + 4*p
    RB = lambda p: 36 + 4*p
    TB = lambda p: 64 + p
    MA = lambda p: 40 + 2*p
    MB = lambda p: 54 + 2*p
    PF = o.get('pf', 6500)
    A(f"""
.globl {NAME}
.p2align 8
.type {NAME},@function
{NAME}:
    s_cmp_ge_u32 s2, {NCH}
    s_cbranch_scc1 L_end
;TS start
    s_load_dwordx4 s[40:43], s[0:1], 8
    s_load_dwordx4 s[44:47], s[0:1], 24
    s_load_dwordx2 s[6:7], s[0:1], 88         ; ws
    s_load_dwordx2 s[4:5], s[0:1], 0          ; x
    s_load_dwordx2 s[8:9], s[0:1], 72         ; out
    v_lshrrev_b32 v1, 6, v0
    v_lshlrev_b32 v2, 3, v0
    v_readfirstlane_b32 s3, v1                ; wave
    v_mul_u32_u24 v3, 24, v0
    v_lshlrev_b32 v1, 4, v0
    s_cmp_eq_u32 s3, 10
    s_cbranch_scc1 L_help
    s_mul_i32 s54, s2, {CH*4}
    s_mul_i32 s55, s2, {CH*2}
    s_mul_i32 s56, s2, {CH*6}
    s_mul_i32 s57, s2, {RECB}
    s_waitcnt lgkmcnt(0)
    s_add_u32 s46, s46, s54
    s_addc_u32 s47, s47, 0
    global_load_dwordx4 v[4:7], v1, s[46:47]  ; dst
    s_add_u32 s44, s44, s54
    s_addc_u32 s45, s45, 0
    global_load_dwordx4 v[8:11], v1, s[44:45] ; src
    s_add_u32 s42, s42, s55
    s_addc_u32 s43, s43, 0
    global_load_dwordx2 v[12:13], v2, s[42:43] ; e_attr
    s_add_u32 s40, s40, s56
    s_addc_u32 s41, s41, 0
    global_load_dwordx4 v[14:17], v3, s[40:41] ; rhat
    global_load_dwordx2 v[18:19], v3, s[40:41] offset:16
    v_mov_b32 v44, 0
    v_lshlrev_b32 v45, 2, v0
    ds_write_b32 v45, v44
    ds_write_b32 v45, v44 offset:1024
    s_add_u32 s48, s6, s57
    s_addc_u32 s49, s7, 0
    s_lshl_b32 s57, s2, 3
    s_add_u32 s57, s57, {WS_INB}
    s_add_u32 s50, s6, s57
    s_addc_u32 s51, s7, 0
    s_mov_b32 s12, s4                         ; x descriptor
    s_mov_b32 s13, s5
    s_mov_b32 s14, 5120000
    s_mov_b32 s15, 0x20000
    s_lshl_b32 s57, s2, 11
    s_add_u32 s57, s57, {WS_INB}
    s_add_u32 s16, s6, s57
    s_addc_u32 s17, s7, 0
    s_mov_b32 s18, {NCH*8}
    s_mov_b32 s19, 0x20000
    s_mov_b32 s20, s6
    s_mov_b32 s21, s7
    s_mov_b32 s22, {NCH*RECB}
    s_mov_b32 s23, 0x20000
    s_add_u32 s24, s6, {WS_W}
    s_addc_u32 s25, s7, 0
    s_mov_b32 s26, 40960
    s_mov_b32 s27, 0x20000
    s_mov_b32 s54, 52429
    s_mov_b32 s55, 6711
    s_mov_b32 s56, 0xffff0000
    s_movk_i32 s57, {L_ST}
    v_mov_b32 v46, 1
    v_and_b32 v0, 63, v0
    v_lshlrev_b32 v47, 4, v0                  ; lane*16
    s_waitcnt lgkmcnt(0)
    s_barrier                                 ; B1""")
    for i in range(64):
        A(f"    v_mov_b32 v{ACC+i}, 0")
    A("    s_waitcnt vmcnt(4)\n;TS dst")
    for i in range(4):
        A(f"""    v_mul_u32_u24 v{20+i}, s54, v{4+i}
    v_lshrrev_b32 v{20+i}, 21, v{20+i}          ; bucket""")
    for i in range(4):
        A(f"""    v_mul_u32_u24 v{48+i}, 40, v{20+i}
    v_lshlrev_b32 v{20+i}, 2, v{20+i}
    ds_add_rtn_u32 v{24+i}, v{20+i}, v46 offset:{L_C1}""")
    for i in range(4):
        A(f"    v_sub_u32 v{4+i}, v{4+i}, v{48+i}")
    A("""    s_waitcnt lgkmcnt(0)
    s_barrier                                 ; B2
;TS hist1""")
    A(f"""    ds_read_b128 v[48:51], v47 offset:{L_C1}
    v_add_u32 v2, {CH*4}, v1
    v_add_u32 v3, {CH*8}, v1
    s_waitcnt lgkmcnt(0)
    v_add_u32 v52, v48, v49
    v_add_u32 v53, v52, v50
    v_add_u32 v54, v53, v51
    v_mov_b32 v55, v54
    s_nop 1
    v_add_u32_dpp v55, v55, v55 row_shr:1 row_mask:0xf bank_mask:0xf
    s_nop 1
    v_add_u32_dpp v55, v55, v55 row_shr:2 row_mask:0xf bank_mask:0xf
    s_nop 1
    v_add_u32_dpp v55, v55, v55 row_shr:4 row_mask:0xf bank_mask:0xf
    s_nop 1
    v_add_u32_dpp v55, v55, v55 row_shr:8 row_mask:0xf bank_mask:0xf
    s_nop 1
    v_add_u32_dpp v55, v55, v55 row_bcast:15 row_mask:0xa bank_mask:0xf
    s_nop 1
    v_add_u32_dpp v55, v55, v55 row_bcast:31 row_mask:0xc bank_mask:0xf
    v_sub_u32 v56, v55, v54
    v_add_u32 v57, v56, v48
    v_add_u32 v58, v56, v52
    v_add_u32 v59, v56, v53
    ds_write_b128 v47, v[56:59] offset:{L_B1}
    v_lshl_or_b32 v60, v48, 12, v56
    v_lshl_or_b32 v61, v49, 12, v57
    v_lshl_or_b32 v62, v50, 12, v58
    v_lshl_or_b32 v63, v51, 12, v59
    s_waitcnt lgkmcnt(0)""")
    for i in range(4):
        A(f"    ds_read_b32 v{64+i}, v{20+i} offset:{L_B1}")
    A("    s_waitcnt vmcnt(3)")
    for i in range(4):
        k = 30 + 4*i
        A(f"""    v_mul_u32_u24 v48, s55, v{8+i}
    v_lshrrev_b32 v48, 23, v48
    v_lshrrev_b32 v49, 2, v{4+i}
    v_lshl_add_u32 v48, v49, 3, v48
    v_lshlrev_b32 v{k}, 9, v{8+i}
    v_lshl_or_b32 v{k}, v48, 2, v{k}
    v_lshl_or_b32 v{k}, v{4+i}, 30, v{k}""")
    A("    s_waitcnt lgkmcnt(0)")
    for i in range(4):
        A(f"""    v_add_u32 v{64+i}, v{64+i}, v{24+i}
    v_mad_u32_u24 v{64+i}, v{64+i}, 12, s57
    ds_write_b32 v{64+i}, v{30+4*i} offset:8""")
    A("    s_waitcnt vmcnt(0)\n;TS loads")
    for i in range(4):
        src = 12 + i // 2
        A(f"    v_lshlrev_b32 v{68+i}, 16, v{src}" if i % 2 == 0 else f"    v_and_b32 v{68+i}, s56, v{src}")
    for i in range(4):
        for j in range(3*i, 3*i+3):
            src = 14 + j // 2
            A(f"    v_lshlrev_b32 v{72+j}, 16, v{src}" if j % 2 == 0 else f"    v_and_b32 v{72+j}, s56, v{src}")
            A(f"    v_mul_f32 v{72+j}, v{68+i}, v{72+j}")
        r = 28 + 4*i
        A(f"""    v_cvt_pk_bf16_f32 v{r}, v{68+i}, v{72+3*i}
    v_cvt_pk_bf16_f32 v{r+1}, v{73+3*i}, v{74+3*i}
    ds_write2_b32 v{64+i}, v{r}, v{r+1} offset0:0 offset1:1""")
    A(f"""    v_mov_b32 v44, {L_NONCE}
    s_waitcnt lgkmcnt(0)
    s_barrier                                 ; B3
;TS staged
    ds_read_b128 v[28:31], v1 offset:{L_ST}
    ds_read_b128 v[32:35], v1 offset:{L_ST+CH*4}
    ds_read_b128 v[36:39], v1 offset:{L_ST+CH*8}
    ds_read_b32 v44, v44
    s_waitcnt lgkmcnt(3)
    global_store_dwordx4 v1, v[28:31], s[48:49] {o.get('st','sc1')}
    s_waitcnt lgkmcnt(2)
    global_store_dwordx4 v2, v[32:35], s[48:49] {o.get('st','sc1')}
    s_waitcnt lgkmcnt(1)
    global_store_dwordx4 v3, v[36:39], s[48:49] {o.get('st','sc1')}
    s_cmp_eq_u32 s3, 1
    s_cselect_b64 s[58:59], -1, 0
    s_cmp_eq_u32 s3, 2
    s_cselect_b64 s[60:61], -1, 0
    s_cmp_eq_u32 s3, 3
    s_cselect_b64 s[62:63], -1, 0
    v_cndmask_b32 v60, v60, v61, s[58:59]
    v_cndmask_b32 v60, v60, v62, s[60:61]
    v_cndmask_b32 v60, v60, v63, s[62:63]
    v_lshlrev_b32 v62, 13, v0
    s_lshl_b32 s58, s3, 11
    v_add_u32 v62, s58, v62
    s_mul_i32 s58, s3, 25
    v_add_u32 v45, s58, v0
    v_lshlrev_b32 v45, 3, v45
    v_lshrrev_b32 v2, 4, v0
    v_add_u32 v4, s58, v2
    s_mov_b32 s10, {RECB}
    v_mul_lo_u32 v4, v4, s10
    v_and_b32 v5, 15, v0
    v_mad_u32_u24 v4, v5, 12, v4
    v_lshlrev_b32 v2, 2, v2
    s_mov_b32 s33, 0
    s_waitcnt lgkmcnt(0)
    v_readfirstlane_b32 s70, v44
    s_and_b32 s71, s70, 0xff000000
    s_xor_b32 s71, s71, 0xa5000000
    v_or_b32 v60, s71, v60
    v_mov_b32 v61, s70
    s_waitcnt vmcnt(0)
    s_barrier                                 ; B4
;TS drained
    s_cmp_ge_u32 s3, 4
    s_cbranch_scc1 L_nopub
    global_store_dwordx2 v62, v[60:61], s[50:51] sc1
L_nopub:
    s_mov_b32 s10, {SPIN}
    s_mov_b64 exec, 0x1ffffff
L_poll:
{'    s_sleep ' + str(o['sleep']) if o.get('sleep') else ''}
    buffer_load_dwordx2 v[6:7], v45, s[16:19], 0 offen sc1
    s_sub_u32 s10, s10, 1
    s_cbranch_scc1 L_end
    s_waitcnt vmcnt(0)
    v_xor_b32 v3, s71, v6
    v_xor_b32 v7, s70, v7
    v_lshrrev_b32 v6, 24, v3
    v_or_b32 v6, v6, v7
    v_cmp_ne_u32 vcc, 0, v6
    s_cbranch_vccnz L_poll
    s_not_b64 exec, exec
    v_mov_b32 v3, 0
    s_mov_b64 exec, -1
;TS polled
L_round:
    s_nop 0""")
    for p in range(NP):
        A(f"    ds_bpermute_b32 v{TB(p)}, v2, v3 offset:{16*p}")
    A(f"""    v_mov_b32 v72, 0x40000000
    v_add_u32 v73, 16, v5
    v_mov_b32 v74, 0
    s_add_u32 s34, s33, 32
    s_movk_i32 s11, 0xfff""")
    for p in range(NP):
        A(f"""    s_waitcnt lgkmcnt({NP-1-p})
    v_lshrrev_b32 v75, 12, v{TB(p)}
    v_and_b32 v76, s11, v{TB(p)}
    v_cmp_lt_u32 s[{MA(p)}:{MA(p)+1}], v5, v75
    v_cmp_lt_u32 s[{MB(p)}:{MB(p)+1}], v73, v75
    v_mad_u32_u24 v{TB(p)}, v76, 12, v4
    v_max_u32 v74, v74, v75
    v_cndmask_b32 v76, v72, v{TB(p)}, s[{MA(p)}:{MA(p)+1}]
    s_mov_b32 s10, {p*4*RECB}
    buffer_load_dwordx3 v[{RA(p)}:{RA(p)+2}], v76, s[20:23], s10 offen sc1""")
    for p in range(NP):
        A(f"""    s_cmp_eq_u64 s[{MB(p)}:{MB(p)+1}], 0
    s_cbranch_scc1 L_nb{p}
    v_cndmask_b32 v76, v72, v{TB(p)}, s[{MB(p)}:{MB(p)+1}]
    s_mov_b32 s10, {p*4*RECB}
    buffer_load_dwordx3 v[{RB(p)}:{RB(p)+2}], v76, s[20:23], s10 offen offset:192 sc1
L_nb{p}:""")
    NPF = 0
    if PF:
        NPF = (PF * 4 + 31*640 - 1) // (31*640)
        A(f"""    s_lshr_b32 s10, s2, 3
    s_min_u32 s10, s10, 30
    s_mul_i32 s11, s3, 31
    s_add_u32 s10, s10, s11
    s_lshl_b32 s10, s10, 13
    v_lshlrev_b32 v76, 7, v0
    s_mov_b32 s14, {PF*512}""")
        for i in range(NPF):
            A(f"    buffer_load_dword v{160+i}, v76, s[12:15], s10 offen")
            if i + 1 < NPF:
                A(f"    s_add_u32 s10, s10, {310*8192}")
        A("    s_mov_b32 s14, 5120000")
    A(f"""    v_cmp_lt_u32 vcc, s34, v74
    v_mov_b32 v6, 1
    v_mov_b32 v7, {L_FLAG}
    s_and_saveexec_b64 s[36:37], vcc
    ds_write_b32 v7, v6
    s_mov_b64 exec, -1
    s_movk_i32 s11, 0x1fc
    s_waitcnt vmcnt({NPF})
;TS recs""")
    for p in range(NP):
        A(f"""    v_and_b32 v{TB(p)}, s11, v{RA(p)+2}
    s_mov_b64 exec, s[{MA(p)}:{MA(p)+1}]
    ds_add_rtn_u32 v{RA(p)+3}, v{TB(p)}, v6
    s_mov_b64 exec, -1""")
    for p in range(NP):
        A(f"""    s_cmp_eq_u64 s[{MB(p)}:{MB(p)+1}], 0
    s_cbranch_scc1 L_nc{p}
    v_and_b32 v76, s11, v{RB(p)+2}
    s_mov_b64 exec, s[{MB(p)}:{MB(p)+1}]
    ds_add_rtn_u32 v{RB(p)+3}, v76, v6
    s_mov_b64 exec, -1
L_nc{p}:""")
    A(f"""    v_and_b32 v72, 15, v0
    v_lshlrev_b32 v73, 5, v72
    v_lshlrev_b32 v77, 4, v0
    s_lshl_b32 s10, s3, 12
    s_add_u32 m0, s10, {L_W}
    s_waitcnt lgkmcnt(0)
    s_barrier                                 ; B5
;TS hist2
    ds_read_b128 v[84:87], v73
    ds_read_b128 v[80:83], v73 offset:16
    ds_read_b32 v75, v7
    buffer_load_dwordx4 v77, s[24:27], s10 offen sc1 lds
    buffer_load_dwordx4 v77, s[24:27], s10 offen offset:1024 sc1 lds
    buffer_load_dwordx4 v77, s[24:27], s10 offen offset:2048 sc1 lds
    buffer_load_dwordx4 v77, s[24:27], s10 offen offset:3072 sc1 lds
    s_waitcnt lgkmcnt(2)
    v_add_u32 v85, v84, v85                   ; p2
    v_add_u32 v86, v85, v86                   ; p3
    v_add_u32 v87, v86, v87                   ; p4
    s_waitcnt lgkmcnt(1)
    v_add_u32 v88, v87, v80                   ; p5
    v_add_u32 v89, v88, v81                   ; p6
    v_add_u32 v90, v89, v82                   ; p7
    v_add_u32 v91, v90, v83
    v_add_u32 v92, 31, v91
    v_and_b32 v92, 0xffffffe0, v92
    v_mov_b32 v93, v92
    v_cmp_gt_u32 vcc, 10, v72
    s_nop 0
    v_add_u32_dpp v93, v93, v93 row_shr:1 row_mask:0xf bank_mask:0xf
    v_cndmask_b32 v94, -1, v92, vcc
    s_nop 0
    v_add_u32_dpp v93, v93, v93 row_shr:2 row_mask:0xf bank_mask:0xf
    v_min_u32_dpp v94, v94, v94 row_shr:1 row_mask:0xf bank_mask:0xf
    s_nop 0
    v_add_u32_dpp v93, v93, v93 row_shr:4 row_mask:0xf bank_mask:0xf
    v_min_u32_dpp v94, v94, v94 row_shr:2 row_mask:0xf bank_mask:0xf
    s_nop 0
    v_add_u32_dpp v93, v93, v93 row_shr:8 row_mask:0xf bank_mask:0xf
    v_min_u32_dpp v94, v94, v94 row_shr:4 row_mask:0xf bank_mask:0xf
    v_sub_u32 v93, v93, v92
    v_add_u32 v77, v93, v84
    v_min_u32_dpp v94, v94, v94 row_shr:8 row_mask:0xf bank_mask:0xf
    v_mov_b32 v76, v93
    v_add_u32 v78, v93, v85
    v_add_u32 v79, v93, v86
    v_add_u32 v80, v93, v87
    v_add_u32 v81, v93, v88
    v_add_u32 v82, v93, v89
    v_add_u32 v83, v93, v90
    ds_write_b128 v73, v[76:79] offset:{L_BASE}
    ds_write_b128 v73, v[80:83] offset:{L_BASE+16}
    v_readlane_b32 s28, v93, s3
    v_readlane_b32 s29, v91, s3
    v_readlane_b32 s30, v92, s3
    v_readlane_b32 s31, v94, 15               ; smallest padded count
    s_waitcnt lgkmcnt(2)
    v_readfirstlane_b32 s35, v75
    s_mov_b32 s10, {L_COEF}
    s_waitcnt lgkmcnt(0)""")
    for p in range(NP):
        A(f"    ds_read_b32 v{TB(p)}, v{TB(p)} offset:{L_BASE}")
    A(f"""    v_add_u32 v76, s29, v0
    v_cmp_gt_u32 vcc, s30, v76
    v_add_u32 v76, s28, v76
    v_lshlrev_b32 v77, 2, v76
    v_lshl_add_u32 v76, v76, 3, s10
    v_mov_b32 v78, 0
    v_mov_b32 v79, 0
    v_mov_b32 v80, 0x800000""")
    for p in range(NP):
        A(f"""    s_waitcnt lgkmcnt({NP-1-p})
    v_add_u32 v{TB(p)}, v{TB(p)}, v{RA(p)+3}
    v_lshl_add_u32 v{RA(p)+3}, v{TB(p)}, 3, s10
    v_lshlrev_b32 v{TB(p)}, 2, v{TB(p)}""")
    for p in range(NP):
        A(f"""    s_mov_b64 exec, s[{MA(p)}:{MA(p)+1}]
    ds_write_b64 v{RA(p)+3}, v[{RA(p)}:{RA(p)+1}]
    ds_write_b32 v{TB(p)}, v{RA(p)+2} offset:{L_KEY}""")
    A(f"""    s_mov_b64 exec, vcc
    ds_write_b64 v76, v[78:79]
    ds_write_b32 v77, v80 offset:{L_KEY}
    s_mov_b64 exec, -1""")
    for p in range(NP):
        A(f"""    s_cmp_eq_u64 s[{MB(p)}:{MB(p)+1}], 0
    s_cbranch_scc1 L_nd{p}
    v_and_b32 v76, s11, v{RB(p)+2}
    ds_read_b32 v76, v76 offset:{L_BASE}
    s_waitcnt lgkmcnt(0)
    v_add_u32 v76, v76, v{RB(p)+3}
    v_lshl_add_u32 v77, v76, 3, s10
    v_lshlrev_b32 v76, 2, v76
    s_mov_b64 exec, s[{MB(p)}:{MB(p)+1}]
    ds_write_b64 v77, v[{RB(p)}:{RB(p)+1}]
    ds_write_b32 v76, v{RB(p)+2} offset:{L_KEY}
    s_mov_b64 exec, -1
L_nd{p}:""")
    NBM = o.get('nbm', 3)
    A(f"""    v_and_b32 v1, 15, v0
    v_lshrrev_b32 v31, 4, v0
    v_lshlrev_b32 v31, 3, v31
    v_add_u32 v31, s28, v31
    v_lshrrev_b32 v7, 2, v1
    v_add_u32 v7, v7, v31
    v_lshl_add_u32 v30, v7, 3, s10
    v_lshl_or_b32 v30, v0, 30, v30
    v_lshlrev_b32 v6, 2, v31
    v_lshlrev_b32 v7, 2, v7
    v_add_u32 v7, {L_KEY}, v7
    v_lshlrev_b32 v1, 4, v1
    s_lshr_b32 s30, s30, 5
    s_lshr_b32 s31, s31, 5
    s_max_u32 s31, s31, {NBM}
    s_sub_u32 s31, s31, {NBM}
    s_mov_b32 s28, 0x00fffe00
    s_mov_b32 s29, 0xc0000000
    s_mov_b32 s38, 0x05040100
    s_mov_b32 s39, 0x07060302
    s_waitcnt lgkmcnt(0)
    s_barrier                                 ; B6
;TS sorted
;CLK 0
    s_cmp_lg_u32 s30, 0
    s_cbranch_scc1 L_go
    s_waitcnt vmcnt(0)
    s_barrier
    s_branch L_done
L_go:""")

    def read_keys():
        A(f"""    ds_read_b128 v[8:11], v6 offset:{L_KEY}
    ds_read_b128 v[12:15], v6 offset:{L_KEY+16}
    ds_read2_b32 v[28:29], v7 offset0:0 offset1:4
    v_add_u32 v6, 128, v6
    v_add_u32 v7, 128, v7""")
    def mk_addr():
        for e in range(8):
            A(f"    v_and_or_b32 v{8+e}, v{8+e}, s28, v1")
        A("""    v_bitop3_b32 v28, v28, s29, v30 bitop3:0x6a
    v_bitop3_b32 v29, v29, s29, v30 bitop3:0x6a
    v_add_u32 v30, 256, v30""")
    def issue(h):
        for e in range(8):
            r = 32 + h*32 + e*4
            A(f"    buffer_load_dwordx4 v[{r}:{r+3}], v{8+e}, s[12:15], 0 offen offset:{h*256}")
    def read_b():
        A("""    ds_read_b64_tr_b16 v[16:17], v28
    ds_read_b64_tr_b16 v[18:19], v29 offset:32""")
    def half(h):
        D = 32 + h*32
        def perms(j):
            t = 20 + (j % 2) * 4
            sel = 's38' if j % 2 == 0 else 's39'
            for q in range(4):
                A(f"    v_perm_b32 v{t+q}, v{D + (2*q+1)*4 + j//2}, v{D + 2*q*4 + j//2}, {sel}")
        def mfma(j):
            t = 20 + (j % 2) * 4
            a = ACC + (h*8 + j) * 4
            A(f"    v_mfma_f32_16x16x32_bf16 v[{a}:{a+3}], v[{t}:{t+3}], v[16:19], v[{a}:{a+3}]")
        perms(0)
        for j in range(8):
            if j + 1 < 8:
                perms(j + 1)
            else:
                A("    s_nop 1")
            mfma(j)

    read_keys()
    A("    s_waitcnt lgkmcnt(0)")
    mk_addr()
    issue(0); issue(1)
    read_b()
    read_keys()
    A("""    s_waitcnt vmcnt(16)
    s_barrier                                 ; B7
    s_sub_u32 s30, s30, 1
    s_cmp_eq_u32 s30, 0
    s_cbranch_scc1 L_last
L_loop:
    s_waitcnt lgkmcnt(0)""")
    mk_addr()
    A("    s_waitcnt vmcnt(8)")
    half(0)
    issue(0)
    A("""    s_cmp_eq_u32 s31, 0
    s_cbranch_scc1 L_nobar
    s_sub_u32 s31, s31, 1
    s_barrier
L_nobar:
    s_waitcnt vmcnt(8)""")
    half(1)
    issue(1)
    read_b()
    read_keys()
    A("""    s_sub_u32 s30, s30, 1
    s_cmp_lg_u32 s30, 0
    s_cbranch_scc1 L_loop
L_last:
    s_waitcnt vmcnt(8) lgkmcnt(0)""")
    half(0)
    A("    s_waitcnt vmcnt(0)")
    half(1)
    A(f"""L_done:
    s_cmp_eq_u32 s35, 0
    s_cbranch_scc1 L_epi
    s_barrier                                 ; every wave is done with this round's lists
    v_mov_b32 v6, 0
    v_lshlrev_b32 v7, 2, v0
    ds_write_b32 v7, v6
    ds_write_b32 v7, v6 offset:256
    ds_write_b32 v7, v6 offset:264
    s_add_u32 s33, s33, 32
    v_add_u32 v5, 32, v5
    v_add_u32 v4, {32*12}, v4
    s_waitcnt lgkmcnt(0)
    s_barrier
    s_branch L_round
L_epi:
;TS main
;CLK 1""")
    WB = 64
    A("    v_lshlrev_b32 v1, 4, v0")
    order = [(p, u, t) for p in (0, 2, 1, 3, 4) for u in range(2) for t in range(4)]
    fr = lambda put: put[0]*8 + put[1]*4 + put[2]
    def wread_i(n):
        f = fr(order[n]); r = WB + (n % 8) * 4
        A(f"    ds_read_b128 v[{r}:{r+3}], v1 offset:{L_W + f*1024}")
    for n in range(8):
        wread_i(n)
    A("""    v_and_b32 v2, 3, v0
    v_cmp_eq_u32 s[40:41], 0, v2
    v_cmp_eq_u32 s[42:43], 1, v2
    v_cmp_eq_u32 s[44:45], 2, v2
    v_cmp_eq_u32 s[46:47], 3, v2
    s_or_b64 s[48:49], s[40:41], s[42:43]
    s_or_b64 s[50:51], s[40:41], s[44:45]
    s_or_b64 s[52:53], s[40:41], s[46:47]
    v_cndmask_b32 v3, 0, 1.0, s[48:49]        ; b1
    v_cndmask_b32 v4, 0, 1.0, s[50:51]        ; b2
    v_cndmask_b32 v5, 0, 1.0, s[52:53]        ; b3
    v_cndmask_b32 v6, 0, 1.0, s[44:45]
    v_cndmask_b32 v7, 0, 1.0, s[46:47]
    v_cndmask_b32 v32, 0, 1.0, s[42:43]
    v_cndmask_b32 v6, v6, -1.0, s[46:47]      ; c1
    v_cndmask_b32 v7, v7, -1.0, s[42:43]      ; c2
    v_cndmask_b32 v2, v32, -1.0, s[44:45]     ; c3""")
    acc = lambda h, j, r: ACC + (h*8 + j)*4 + r
    for h in range(2):
        for j in range(4):
            for r in range(4):
                A(f"    v_permlane32_swap_b32 v{acc(h,j,r)}, v{acc(h,j+4,r)}")
    PA, PB, PC = 8, 16, 24
    T = lambda c, r, j: acc(c // 2, j + 4*(c % 2), r)
    for u in range(2):
        for q in range(4):
            r = 2*u + q // 2; j = (q % 2) * 2
            A(f"    v_cvt_pk_bf16_f32 v{PA+u*4+q}, v{T(0,r,j)}, v{T(0,r,j+1)}")
    dp = {1: 'quad_perm:[1,0,3,2]', 2: 'quad_perm:[2,3,0,1]', 3: 'quad_perm:[3,2,1,0]'}
    for u in range(2):
        for q in range(4):
            r = 2*u + q // 2; j = (q % 2) * 2
            for (dst, k) in ((32, (3, 4, 5)), (34, (6, 7, 2))):
                for c in (1, 2, 3):
                    for d in range(2):
                        op = 'v_mul_f32_dpp' if c == 1 else 'v_fmac_f32_dpp'
                        A(f"    {op} v{dst+d}, v{T(c,r,j+d)}, v{k[c-1]} {dp[c]} row_mask:0xf bank_mask:0xf")
            A(f"    v_cvt_pk_bf16_f32 v{PB+u*4+q}, v32, v33")
            A(f"    v_cvt_pk_bf16_f32 v{PC+u*4+q}, v34, v35")
    D0, D1 = 32, 48
    A("    s_nop 1")
    seen = set()
    for n, (p, u, t) in enumerate(order):
        P = {0: PA, 2: PA, 1: PB, 3: PB, 4: PC}[p] + u*4
        D = (D0 if p < 2 else D1) + t*4
        w = WB + (n % 8) * 4
        c = f"v[{D}:{D+3}]" if D in seen else "0"
        seen.add(D)
        A(f"    s_waitcnt lgkmcnt({min(7, len(order)-1-n)})")
        A(f"    v_mfma_f32_16x16x32_bf16 v[{D}:{D+3}], v[{P}:{P+3}], v[{w}:{w+3}], {c}")
        if n + 8 < len(order):
            wread_i(n + 8)
    A(f"""    s_mul_i32 s10, s2, 40
    s_lshl_b32 s11, s3, 2
    s_add_u32 s10, s10, s11
    s_lshl_b32 s10, s10, 9
    s_add_u32 s8, s8, s10
    s_addc_u32 s9, s9, 0
    v_lshrrev_b32 v2, 4, v0
    v_and_b32 v3, 15, v0
    v_lshlrev_b32 v2, 9, v2
    v_lshl_add_u32 v2, v3, 3, v2
    s_mov_b32 s10, 0xbfb8aa3b                 ; -log2(e)""")
    for t in range(4):
        A(f"    v_mul_f32 v{8+t}, s10, v{D0+t*4}")
    for t in range(4):
        A(f"    v_exp_f32 v{8+t}, v{8+t}")
    A(f"""    v_cvt_pk_bf16_f32 v12, v{D0}, v{D0+4}
    v_cvt_pk_bf16_f32 v13, v{D0+8}, v{D0+12}""")
    for t in range(4):
        A(f"    v_add_f32 v{8+t}, 1.0, v{8+t}")
    A("    global_store_dwordx2 v2, v[12:13], s[8:9]")
    for t in range(4):
        A(f"    v_rcp_f32 v{8+t}, v{8+t}")
    A("    s_nop 0")
    for i in range(1, 4):
        for t in range(4):
            A(f"    v_mul_f32 v{D1+t*4+i}, v{D1+t*4+i}, v{8+t}")
        A(f"""    v_cvt_pk_bf16_f32 v{12+2*i}, v{D1+i}, v{D1+4+i}
    v_cvt_pk_bf16_f32 v{13+2*i}, v{D1+8+i}, v{D1+12+i}
    global_store_dwordx2 v2, v[{12+2*i}:{13+2*i}], s[8:9] offset:{i*128}""")
    A(""";TSOUT
L_end:
    s_endpgm""")

    TOUCH = f"""    v_lshlrev_b32 v1, 7, v0
    s_mul_i32 s10, s2, {160*128}
    buffer_load_dword v32, v1, s[12:15], s10 offen
    s_add_u32 s10, s10, 8192
    buffer_load_dword v33, v1, s[12:15], s10 offen
    s_add_u32 s10, s10, 4096
    buffer_load_dword v34, v1, s[12:15], s10 offen"""
    A(f"""L_help:
    s_load_dwordx4 s[60:63], s[0:1], 40
    s_load_dwordx2 s[64:65], s[0:1], 56       ; w_si1
    s_load_dwordx2 s[66:67], s[0:1], 80
    v_and_b32 v0, 63, v0
    v_mov_b32 v40, 0
    s_barrier                                 ; B1
    s_waitcnt lgkmcnt(0)
    s_mov_b32 s12, s4                         ; x descriptor
    s_mov_b32 s13, s5
    s_mov_b32 s14, 5120000
    s_mov_b32 s15, 0x20000
{TOUCH if o.get('mall') == 2 else ''}
    s_cmp_lg_u32 s2, 0
    s_cbranch_scc1 L_h1
    s_add_u32 s48, s6, {WS_NONCE}
    s_addc_u32 s49, s7, 0
    global_load_dword v41, v40, s[48:49] sc1
    s_mov_b32 s10, 1664525
    s_waitcnt vmcnt(0)
    v_mul_lo_u32 v41, v41, s10
    v_add_u32 v41, 0x3c6ef35f, v41
    v_max_u32 v41, 1, v41
    global_store_dword v40, v41, s[66:67] sc1
    global_store_dword v40, v41, s[48:49] sc1
L_h1:
    s_sub_u32 s53, s2, 1
    s_cmp_ge_u32 s53, 40
    s_cbranch_scc1 L_h2
    s_lshr_b32 s55, s53, 3
    s_bfe_u32 s56, s53, 0x10002
    s_and_b32 s57, s53, 3
    v_lshrrev_b32 v1, 4, v0
    v_and_b32 v2, 1, v1
    v_lshlrev_b32 v2, 5, v2
    v_lshrrev_b32 v1, 1, v1
    v_lshl_add_u32 v2, v1, 2, v2
    s_lshl_b32 s56, s56, 4
    v_add_u32 v2, s56, v2                     ; ch0 = 32*(g&1) + 4*(g>>1) + 16*u
    v_and_b32 v3, 15, v0
    v_lshlrev_b32 v3, 2, v3
    v_add_u32 v3, s57, v3                     ; c_out = 4n + t
    s_lshl_b32 s58, s55, 6
    v_add_u32 v4, s58, v2
    v_lshlrev_b32 v4, 1, v4
    s_cmp_lt_u32 s55, 2
    s_cselect_b32 s59, 0, 128
    s_cselect_b32 s62, s62, s64
    s_cselect_b32 s63, s63, s65
    s_sub_u32 s58, s58, s59
    v_add_u32 v5, s58, v2
    v_lshlrev_b32 v5, 7, v5
    v_lshl_add_u32 v5, v3, 1, v5
    s_lshl_b32 s54, s53, 10
    s_add_u32 s54, s54, {WS_W}
    v_lshlrev_b32 v6, 4, v0
    s_add_u32 s50, s6, s54
    s_addc_u32 s51, s7, 0
    global_load_dwordx2 v[8:9], v4, s[60:61]
    global_load_dwordx2 v[10:11], v4, s[60:61] offset:16""")
    for e in range(8):
        row = (e // 4) * 8 + e % 4
        A(f"    global_load_ushort v{12+e}, v5, s[62:63] offset:{row*128}")
    A("    s_mov_b32 s56, 0xffff0000\n    s_waitcnt vmcnt(0)")
    for e in range(8):
        src = 8 + e // 2
        A(f"    v_lshlrev_b32 v{20+e}, 16, v{src}" if e % 2 == 0 else f"    v_and_b32 v{20+e}, s56, v{src}")
        A(f"    v_lshlrev_b32 v{12+e}, 16, v{12+e}")
        A(f"    v_mul_f32 v{12+e}, v{12+e}, v{20+e}")
    for q in range(4):
        A(f"    v_cvt_pk_bf16_f32 v{28+q}, v{12+2*q}, v{13+2*q}")
    A(f"""    global_store_dwordx4 v6, v[28:31], s[50:51] sc1
L_h2:
    v_lshlrev_b32 v1, 7, v0
    s_mov_b32 s10, {SPIN}
    global_load_dword v41, v40, s[66:67] sc1
    s_barrier                                 ; B2
    s_branch L_hchk
L_hpoll:
    global_load_dword v41, v40, s[66:67] sc1
    s_sub_u32 s10, s10, 1
    s_cbranch_scc1 L_end
L_hchk:
    s_waitcnt vmcnt(0)
    v_cmp_eq_u32 vcc, 0, v41
    s_cbranch_vccnz L_hpoll
    v_mov_b32 v42, {L_NONCE}
    ds_write_b32 v42, v41""")
    if o.get('mall', 1) == 1:
        A(TOUCH)
    A("""    s_waitcnt lgkmcnt(0)
    s_barrier                                 ; B3
    s_barrier                                 ; B4""")
    if o.get('mall') == 3:
        A(TOUCH)
    A("    s_endpgm")


def gen(o):
    A = Asm()
    A(HDR.rstrip('\n'))
    ex = o.get('extra')
    if ex == 'lead':
        A("; @launch kernel=e_kernel grid=(1,1,1) block=(64,1,1) lds=0")
    if ex == 'leadbig':
        A(f"; @launch kernel=e_kernel grid=(250,1,1) block=(704,1,1) lds={L_END}")
    if ex:
        A(f"; @launch kernel={NAME} grid=({NCH},1,1) block=(704,1,1) lds={L_END}")
    else:
        A(f"; @launch grid=({NCH},1,1) block=(704,1,1) lds={L_END}")
    if ex == 'trail':
        A("; @launch kernel=e_kernel grid=(1,1,1) block=(64,1,1) lds=0")
    A('.amdgcn_target "amdgcn-amd-amdhsa--gfx950"\n.text')
    gen_body(A, o)
    ts = o.get('ts') or []
    if ex and ex != 'list':
        A(".globl e_kernel\n.p2align 8\n.type e_kernel,@function\ne_kernel:\n    s_endpgm")
    A(f""".section .rodata,"a"
.p2align 6
.amdhsa_kernel {NAME}
  .amdhsa_next_free_vgpr 164
  .amdhsa_next_free_sgpr {102 if ts else 72}
  .amdhsa_accum_offset 164
  .amdhsa_group_segment_fixed_size 0
  .amdhsa_kernarg_size 96
  .amdhsa_user_sgpr_count 2
  .amdhsa_user_sgpr_kernarg_segment_ptr 1
  .amdhsa_system_sgpr_workgroup_id_x 1
.end_amdhsa_kernel""")
    if ex and ex != 'list':
        A(""".p2align 6
.amdhsa_kernel e_kernel
  .amdhsa_next_free_vgpr 8
  .amdhsa_next_free_sgpr 16
  .amdhsa_accum_offset 8
  .amdhsa_group_segment_fixed_size 0
  .amdhsa_kernarg_size 96
  .amdhsa_user_sgpr_count 2
  .amdhsa_user_sgpr_kernarg_segment_ptr 1
  .amdhsa_system_sgpr_workgroup_id_x 1
.end_amdhsa_kernel""")
    out = Asm()
    names = []
    for line in A.L:
        if line.startswith(';TS '):
            nm = line.split()[1]
            if (ts == 1 or nm in ts) and len(names) < 11:
                k = len(names)
                out(f"    s_memrealtime s[{74+2*k}:{75+2*k}]")
                names.append(nm)
        elif line.startswith(';CLK'):
            if ts:
                k = int(line.split()[1])
                out(f"    s_memtime s[{98+2*k}:{99+2*k}]")
        elif line.startswith(';TSOUT'):
            if ts:
                n = len(names)
                out(f"""    s_waitcnt vmcnt(0)
    s_memrealtime s[{74+2*n}:{75+2*n}]
    s_waitcnt lgkmcnt(0)
    s_mul_i32 s72, s2, 10
    s_add_u32 s72, s72, s3
    s_lshl_b32 s72, s72, 6
    s_add_u32 s72, s72, {WS_TS}
    s_add_u32 s6, s6, s72
    s_addc_u32 s7, s7, 0
    v_mov_b32 v0, 0
    s_mov_b64 exec, 1
    s_sub_u32 s98, s100, s98
    v_mov_b32 v1, s98
    global_store_dword v0, v1, s[6:7] offset:60""")
                for k in range(n + 1):
                    out(f"""    v_mov_b32 v1, s{74+2*k}
    global_store_dword v0, v1, s[6:7] offset:{4*k}""")
                if o.get('enc'):
                    k = (names + ['end']).index(o['enc'])
                    out(f"""    s_add_u32 s72, s2, s3
    s_cmp_lg_u32 s72, 0
    s_cbranch_scc1 L_end
    s_sub_u32 s72, s{74+2*k}, s74
    s_mul_i32 s72, s72, 20
L_enc:
    s_memrealtime s[98:99]
    s_waitcnt lgkmcnt(0)
    s_sub_u32 s98, s98, s{74+2*n}
    s_cmp_lt_u32 s98, s72
    s_cbranch_scc1 L_enc""")
                if o.get('gmax'):
                    k = (names + ['end']).index(o['gmax'])
                    out(f"""    s_cmp_lg_u32 s3, 9
    s_cbranch_scc1 L_end
    s_load_dwordx2 s[72:73], s[0:1], 80
    s_waitcnt lgkmcnt(0)
    s_not_b32 s98, s74
    v_mov_b32 v1, s98
    global_atomic_umax v0, v1, s[72:73] offset:128
    v_mov_b32 v1, s{74+2*k}
    global_atomic_umax v0, v1, s[72:73] offset:132
    s_cmp_lg_u32 s2, 0
    s_cbranch_scc1 L_end
L_g1:
    s_memrealtime s[98:99]
    s_waitcnt lgkmcnt(0)
    s_sub_u32 s98, s98, s74
    s_cmp_lt_u32 s98, 5000
    s_cbranch_scc1 L_g1
    global_load_dwordx2 v[2:3], v0, s[72:73] offset:128 sc1
    s_waitcnt vmcnt(0)
    v_readfirstlane_b32 s100, v2
    v_readfirstlane_b32 s101, v3
    s_not_b32 s100, s100
    s_sub_u32 s100, s101, s100
    s_mul_i32 s100, s100, 20
    s_add_u32 s100, s100, 5100
L_g2:
    s_memrealtime s[98:99]
    s_waitcnt lgkmcnt(0)
    s_sub_u32 s98, s98, s74
    s_cmp_lt_u32 s98, s100
    s_cbranch_scc1 L_g2""")
                if o.get('fix'):
                    out(f"""    s_add_u32 s72, s2, s3
    s_cmp_lg_u32 s72, 0
    s_cbranch_scc1 L_end
L_fix:
    s_memrealtime s[98:99]
    s_waitcnt lgkmcnt(0)
    s_sub_u32 s98, s98, s74
    s_cmp_lt_u32 s98, {o['fix']*100}
    s_cbranch_scc1 L_fix""")
                if o.get('dbg'):
                    out("""    s_load_dwordx2 s[72:73], s[0:1], 80
    s_waitcnt lgkmcnt(0)
    s_not_b32 s98, s74
    v_mov_b32 v1, s98
    global_atomic_umax v0, v1, s[72:73] offset:4""")
                    for k in range(n + 1):
                        out(f"""    v_mov_b32 v1, s{74+2*k}
    global_atomic_umax v0, v1, s[72:73] offset:{8+4*k}""")
                names.append('end')
        else:
            out.L.append(line)
    global TSNAMES
    TSNAMES = names
    return out.text()


if __name__ == '__main__':
    o = eval(sys.argv[2]) if len(sys.argv) > 2 else {}
    open(sys.argv[1], 'w').write(gen(o))
```

```python
import sys

NAME = 'gather_scatter__tensor_product_equiv_equiformer__graph_kernel'
HDR = """; gather_scatter tensor product (equiformer) -- one launch, 256 co-resident workgroups of 12 waves
"""

NCH = 256
NW = 12
CH = 2500
RECB = 30720
SEGW = 22
WS_INB = 0x800000
WS_W = 0x900000
WS_NONCE = 0x910000
WS_TS = 0x1000000
SPIN = 30000

L_FLAG = 512
L_NONCE = 520
L_BASE = 576
L_LUT = 1088
L_W = 2048
L_C1 = 2048
L_B1 = 3072
L_ST = 4096
L_KEY = L_W + 49152
CAP = 6016
L_COEF = L_KEY + CAP * 4
L_END = L_COEF + CAP * 8


class Asm:
    def __init__(self):
        self.L = []
    def __call__(self, s):
        for line in s.strip('\n').split('\n'):
            self.L.append(line)
    def text(self):
        return '\n'.join(self.L) + '\n'


def gen_body(A, o):
    NP = 7
    ACC = 96
    RA = lambda p: 32 + 4*p
    KA = lambda p: 60 + p
    BS = lambda p: 67 + p
    TA = lambda p: 74 + p
    TC = lambda p: 81 + p
    NB = o.get('nb', 3)
    PF = o.get('pf', 0)
    NPF = (PF * 4 + 384*64 - 1) // (384*64)
    PFC = ''
    if PF:
        per = (PF * 4 + 384*NPF - 1) // (384*NPF)
        PFC = f"""    s_lshr_b32 s10, s2, 3
    s_lshl_b32 s33, s3, 5
    s_add_u32 s10, s10, s33
    s_mul_i32 s10, s10, {per*128}
    v_lshlrev_b32 v20, 7, v0
"""
        if per < 64: PFC += f"    s_bfm_b64 exec, {per}, 0\n"
        for k in range(NPF):
            PFC += "    buffer_load_dword v21, v20, s[12:15], s10 offen\n"
            if k + 1 < NPF: PFC += f"    s_add_u32 s10, s10, {384*per*128}\n"
        PFC += "    s_mov_b64 exec, -1"
    ROLLS = ''
    if o.get('roll'):
        ROLLS = f"""    s_mov_b32 s40, s4
    s_or_b32 s41, s5, 0x800000
    s_mov_b32 s42, 40000
    s_mov_b32 s43, 0x20000
    s_lshr_b32 s33, s2, 3
    s_lshl_b32 s34, s3, 5
    s_add_u32 s33, s33, s34
    s_mul_i32 s33, s33, {13*128}
    s_add_u32 s34, s33, {7*640000}
    s_add_u32 s33, s33, {o['roll']*640000}"""
    POLL0 = ''
    if o.get('poll0'):
        POLL0 = f"""    s_sub_u32 s59, s59, 1
    s_bfm_b64 exec, 1, s59
L_poll0:
    buffer_load_dwordx2 v[6:7], v45, s[16:19], 0 offen sc1
    s_sub_u32 s10, s10, 1
    s_cbranch_scc1 L_end
    s_waitcnt vmcnt(0)
    v_cmp_ne_u32 vcc, s70, v7
    s_cbranch_vccnz L_poll0"""

    WDMA = f"""    s_lshl_b32 s33, s3, 12
    s_add_u32 m0, s33, {L_W}
    v_lshlrev_b32 v20, 4, v0
    buffer_load_dwordx4 v20, s[24:27], s33 offen sc1 lds
    buffer_load_dwordx4 v20, s[24:27], s33 offen offset:1024 sc1 lds
    buffer_load_dwordx4 v20, s[24:27], s33 offen offset:2048 sc1 lds
    buffer_load_dwordx4 v20, s[24:27], s33 offen offset:3072 sc1 lds"""

    def setup():
        A(f"""    s_mov_b32 s12, s4                         ; x descriptor
    s_mov_b32 s13, s5
    s_mov_b32 s14, 5120000
    s_mov_b32 s15, 0x20000
    s_and_b32 s68, s2, 7
    s_lshl_b32 s68, s68, 5
    s_lshr_b32 s69, s2, 3
    s_add_u32 s69, s69, s68
    s_lshl_b32 s68, s69, 3
    s_add_u32 s68, s68, {WS_INB}
    s_add_u32 s16, s6, s68
    s_addc_u32 s17, s7, 0
    s_mov_b32 s18, {NCH*2048}
    s_mov_b32 s19, 0x20000
    s_mov_b32 s20, s6
    s_mov_b32 s21, s7
    s_mov_b32 s22, {NCH*RECB}
    s_mov_b32 s23, 0x20000
    s_add_u32 s24, s6, {WS_W}
    s_addc_u32 s25, s7, 0
    s_mov_b32 s26, 40960
    s_mov_b32 s27, 0x20000""")

    def consts():
        for i in range(64):
            A(f"    v_mov_b32 v{ACC+i}, 0")
        A("""    v_and_b32 v166, 3, v0
    v_cmp_eq_u32 s[58:59], 0, v166
    v_cmp_eq_u32 s[60:61], 1, v166
    v_cmp_eq_u32 s[62:63], 2, v166
    v_cmp_eq_u32 s[64:65], 3, v166
    v_bfrev_b32 v166, 4                       ; 0x20000000
    v_cndmask_b32 v163, 0, 1.0, s[62:63]
    v_cndmask_b32 v164, 0, 1.0, s[64:65]
    v_cndmask_b32 v165, 0, 1.0, s[60:61]
    v_cndmask_b32 v160, v165, 1.0, s[58:59]   ; b1
    v_cndmask_b32 v161, v163, 1.0, s[58:59]   ; b2
    v_cndmask_b32 v162, v164, 1.0, s[58:59]   ; b3
    v_cndmask_b32 v163, v163, -1.0, s[64:65]  ; c1
    v_cndmask_b32 v164, v164, -1.0, s[60:61]  ; c2
    v_cndmask_b32 v165, v165, -1.0, s[62:63]  ; c3""")

    A(f"""
.globl {NAME}
.p2align 8
.type {NAME},@function
{NAME}:
    s_cmp_ge_u32 s2, {NCH}
    s_cbranch_scc1 L_end
;TS start
    s_load_dwordx4 s[40:43], s[0:1], 8
    s_load_dwordx4 s[44:47], s[0:1], 24
    s_load_dwordx2 s[6:7], s[0:1], 88         ; ws
    s_load_dwordx2 s[4:5], s[0:1], 0          ; x
    s_load_dwordx2 s[8:9], s[0:1], 72         ; out
    v_lshrrev_b32 v1, 6, v0
    v_lshlrev_b32 v2, 3, v0
    v_readfirstlane_b32 s3, v1                ; wave
    v_mul_u32_u24 v3, 24, v0
    v_lshlrev_b32 v1, 4, v0
    v_cmp_gt_u32 vcc, {CH//4}, v0
    s_cmp_ge_u32 s3, 10
    s_cbranch_scc1 L_help
    s_mul_i32 s54, s2, {CH*4}
    s_mul_i32 s55, s2, {CH*2}
    s_mul_i32 s56, s2, {CH*6}
    s_mul_i32 s57, s2, {RECB}
    s_mov_b64 exec, vcc
    s_waitcnt lgkmcnt(0)
    s_add_u32 s46, s46, s54
    s_addc_u32 s47, s47, 0
    global_load_dwordx4 v[4:7], v1, s[46:47]  ; dst
    s_add_u32 s44, s44, s54
    s_addc_u32 s45, s45, 0
    global_load_dwordx4 v[8:11], v1, s[44:45] ; src
    s_add_u32 s42, s42, s55
    s_addc_u32 s43, s43, 0
    global_load_dwordx2 v[12:13], v2, s[42:43] ; e_attr
    s_add_u32 s40, s40, s56
    s_addc_u32 s41, s41, 0
    global_load_dwordx4 v[14:17], v3, s[40:41] ; rhat
    global_load_dwordx2 v[18:19], v3, s[40:41] offset:16
    s_add_u32 s48, s6, s57
    s_addc_u32 s49, s7, 0
    s_mov_b32 s54, 214749
    s_mov_b32 s55, 6711
    s_mov_b32 s56, 0xffff0000
    s_movk_i32 s57, {L_ST}
    s_movk_i32 s58, 625
    v_mov_b32 v46, 1
    s_barrier                                 ; B1
    s_waitcnt vmcnt(4)
;TS dst""")
    for i in range(4):
        A(f"""    v_mul_u32_u24 v{20+i}, s54, v{4+i}
    v_lshrrev_b32 v{20+i}, 23, v{20+i}          ; bucket
    v_mad_u32_u24 v{48+i}, v{20+i}, s58, 15
    v_lshlrev_b32 v{20+i}, 2, v{20+i}
    ds_add_rtn_u32 v{24+i}, v{20+i}, v46 offset:{L_C1}""")
    for i in range(4):
        A(f"""    v_lshrrev_b32 v{48+i}, 4, v{48+i}
    v_sub_u32 v{4+i}, v{4+i}, v{48+i}
    v_lshlrev_b32 v{4+i}, 2, v{4+i}""")
    A("""    s_waitcnt lgkmcnt(0)
    s_barrier                                 ; B2
;TS hist1""")
    for i in range(4):
        A(f"    ds_read_b32 v{4+i}, v{4+i} offset:{L_LUT}")
    A("    s_waitcnt vmcnt(3)")
    for i in range(4):
        k = 30 + 4*i
        A(f"""    v_mul_u32_u24 v48, s55, v{8+i}
    v_lshrrev_b32 v48, 21, v48
    v_and_b32 v48, 28, v48
    v_lshl_or_b32 v{k}, v{8+i}, 9, v48""")
    A("    s_waitcnt vmcnt(0)\n;TS loads")
    for i in range(4):
        src = 12 + i // 2
        A(f"    v_lshlrev_b32 v{68+i}, 16, v{src}" if i % 2 == 0 else f"    v_and_b32 v{68+i}, s56, v{src}")
    for i in range(4):
        for j in range(3*i, 3*i+3):
            src = 14 + j // 2
            A(f"    v_lshlrev_b32 v{72+j}, 16, v{src}" if j % 2 == 0 else f"    v_and_b32 v{72+j}, s56, v{src}")
            A(f"    v_mul_f32 v{72+j}, v{68+i}, v{72+j}")
        r = 28 + 4*i
        A(f"""    v_cvt_pk_bf16_f32 v{r}, v{68+i}, v{72+3*i}
    v_cvt_pk_bf16_f32 v{r+1}, v{73+3*i}, v{74+3*i}""")
    A("    s_waitcnt lgkmcnt(0)")
    for i in range(4):
        A(f"    v_or_b32 v{30+4*i}, v{30+4*i}, v{4+i}")
    A("    s_barrier")
    for i in range(4):
        A(f"    ds_read_b32 v{64+i}, v{20+i} offset:{L_B1}")
    for i in range(4):
        A(f"""    s_waitcnt lgkmcnt({3-i + 2*i})
    v_add_u32 v{64+i}, v{64+i}, v{24+i}
    v_mad_u32_u24 v{64+i}, v{64+i}, 12, s57
    ds_write2_b32 v{64+i}, v{28+4*i}, v{29+4*i} offset0:0 offset1:1
    ds_write_b32 v{64+i}, v{30+4*i} offset:8""")
    A(f"""    s_waitcnt lgkmcnt(0)
    s_barrier                                 ; B3
;TS staged
    s_mov_b64 exec, -1
    ds_read_b128 v[28:31], v1 offset:{L_ST}
    ds_read_b128 v[32:35], v1 offset:{L_ST+10240}
    ds_read_b128 v[36:39], v1 offset:{L_ST+20480}
    v_add_u32 v2, 10240, v1
    v_add_u32 v3, 20480, v1
    v_and_b32 v0, 63, v0
    s_waitcnt lgkmcnt(2)
    global_store_dwordx4 v1, v[28:31], s[48:49] sc1
    s_waitcnt lgkmcnt(1)
    global_store_dwordx4 v2, v[32:35], s[48:49] sc1
    s_waitcnt lgkmcnt(0)
    global_store_dwordx4 v3, v[36:39], s[48:49] sc1
L_common:
    v_mov_b32 v44, {L_NONCE}
    ds_read_b32 v44, v44""")
    setup()
    consts()
    A(f"""
    s_mul_i32 s58, s3, {SEGW}
    s_sub_u32 s59, {NCH}, s58
    s_min_u32 s59, s59, {SEGW}
    s_bfm_b64 s[60:61], s59, 0
    v_add_u32 v45, s58, v0
    s_mov_b32 s10, {RECB}
    v_mul_lo_u32 v46, v45, s10
    v_lshlrev_b32 v45, 11, v45
    v_lshrrev_b32 v4, 4, v0
    v_lshlrev_b32 v167, 3, v4
    v_lshlrev_b32 v4, 2, v4
    v_and_b32 v5, 15, v0
    v_lshlrev_b32 v1, 4, v5
    v_add_u32 v5, 1, v5
    v_mov_b32 v2, 0
    s_waitcnt lgkmcnt(0)
    v_readfirstlane_b32 s70, v44
    s_and_b32 s71, s70, 0xff000000
    s_xor_b32 s71, s71, 0xa5000000
    s_cmp_lt_u32 s3, 10
    s_cbranch_scc1 L_drain
    v_lshl_or_b32 v56, v58, 12, v56
    v_lshl_or_b32 v58, v59, 12, v57
    v_or_b32 v56, s71, v56
    v_or_b32 v58, s71, v58
    v_mov_b32 v57, s70
    v_mov_b32 v59, s70
    s_waitcnt vmcnt({3 if o.get('mall') == 1 else 0})
    s_barrier                                 ; B4
    global_store_dwordx4 v62, v[56:59], s[50:51] sc1
{TOUCH if o.get('mall') == 3 else ''}
    s_branch L_nopub
L_drain:
    s_waitcnt vmcnt(0)
    s_barrier                                 ; B4
L_nopub:
;TS drained
    s_mov_b32 s10, {SPIN}
{POLL0}
    s_mov_b64 exec, s[60:61]
L_poll:
    buffer_load_dwordx2 v[6:7], v45, s[16:19], 0 offen sc1
    s_sub_u32 s10, s10, 1
    s_cbranch_scc1 L_end
    s_waitcnt vmcnt(0)
    v_xor_b32 v2, s71, v6
    v_xor_b32 v7, s70, v7
    v_lshrrev_b32 v6, 24, v2
    v_or_b32 v6, v6, v7
    v_cmp_ne_u32 vcc, 0, v6
    s_and_b64 exec, exec, vcc
    s_cbranch_scc1 L_poll
    s_mov_b64 exec, -1
;TS polled
    v_and_b32 v3, 0xfff, v2
    v_lshrrev_b32 v2, 12, v2
    v_mad_u32_u24 v3, v3, 12, v46
L_round:
    v_mad_u32_u24 v31, v5, 12, -12
    v_cmp_lt_u32 vcc, 16, v2""")
    for p in range(NP - 1):
        A(f"""    ds_bpermute_b32 v{TA(p)}, v4, v3 offset:{16*p}
    ds_bpermute_b32 v{TC(p)}, v4, v2 offset:{16*p}""")
    A("    s_mov_b64 s[36:37], vcc")
    def pick4():
        for q in range(4):
            A(f"""    s_ff1_i32_b64 s11, s[36:37]
    s_bitset0_b64 s[36:37], s11
    s_lshl_b32 s11, s11, 2
    s_and_b32 s11, s11, 0xfc""")
            A("    s_mov_b32 s10, s11" if q == 0 else f"    s_lshl_b32 s11, s11, {8*q}\n    s_or_b32 s10, s10, s11")
    pick4()
    A("""    v_bfe_u32 v6, s10, v167, 8
    s_cmp_lg_u64 s[36:37], 0
    s_cselect_b32 s32, 1, 0
    s_cbranch_scc0 L_no8""")
    pick4()
    A(f"""    v_bfe_u32 v13, s10, v167, 8
    s_brev_b32 s11, 1
    ds_bpermute_b32 v14, v13, v3
    ds_bpermute_b32 v15, v13, v2
    s_waitcnt lgkmcnt(0)
    v_add_u32 v15, -16, v15
    v_sub_u32 v15, v15, v5
    v_add_u32 v14, v14, v31
    v_and_or_b32 v14, v15, s11, v14
    buffer_load_dwordx3 v[8:10], v14, s[20:23], 0 offen offset:192 sc1
L_no8:
    s_xor_b64 s[36:37], s[36:37], vcc
    s_brev_b32 s11, 1
    ds_bpermute_b32 v{TA(6)}, v6, v3
    ds_bpermute_b32 v{TC(6)}, v6, v2""")
    for p in range(NP):
        off = ' offset:192' if p == NP - 1 else ''
        A(f"    s_waitcnt lgkmcnt({2*(NP-1-p)})")
        if p == NP - 1:
            A(f"    v_add_u32 v{TC(p)}, -16, v{TC(p)}")
        A(f"""    v_sub_u32 v{TC(p)}, v{TC(p)}, v5
    v_add_u32 v{TA(p)}, v{TA(p)}, v31
    v_and_or_b32 v{TA(p)}, v{TC(p)}, s11, v{TA(p)}
    buffer_load_dwordx3 v[{RA(p)}:{RA(p)+2}], v{TA(p)}, s[20:23], 0 offen{off} sc1""")
    A(WDMA)
    A(f"""    v_cndmask_b32 v6, 16, 32, s[36:37]
    v_sub_u32 v2, v2, v6
    v_mad_u32_u24 v3, v6, 12, v3
    v_max_i32 v2, 0, v2
    v_mov_b32 v7, {L_FLAG}
    v_cmp_lt_u32 vcc, 0, v2
    v_mov_b32 v6, 4
    s_and_saveexec_b64 s[36:37], vcc
    ds_write_b32 v7, v6
    s_mov_b64 exec, -1
    s_mov_b32 s11, 0x200001fc
    v_and_b32 v90, 15, v0
    v_lshrrev_b32 v28, 4, v0
    v_lshlrev_b32 v28, 5, v28
    v_and_b32 v29, 12, v0
    v_add_u32 v29, v28, v29
    s_mov_b32 s10, {L_COEF | 0x20000000}
    v_lshl_add_u32 v30, v29, 1, s10
    v_lshl_or_b32 v30, v0, 30, v30
    v_lshlrev_b32 v90, 5, v90
""")
    for p in range(NP):
        A(f"""    s_waitcnt vmcnt({NP-1-p + 4})
    v_bitop3_b32 v{KA(p)}, v{RA(p)+2}, s11, v166 bitop3:0x6a
    ds_add_rtn_u32 v{RA(p)+3}, v{KA(p)}, v6""")
    A(f"""    s_cmp_eq_u32 s32, 0
    s_cbranch_scc1 L_no8a
    v_bitop3_b32 v12, v10, s11, v166 bitop3:0x6a
    ds_add_rtn_u32 v11, v12, v6
L_no8a:
;TS recs
    s_waitcnt lgkmcnt(0)
    s_barrier                                 ; B5
;TS hist2
    ds_read_b128 v[76:79], v90
    ds_read_b128 v[80:83], v90 offset:16
    ds_read_b32 v75, v7
{PFC}
    s_mov_b32 s10, {L_COEF}
    s_waitcnt lgkmcnt(2)
    v_add_u32 v84, -4, v76
    v_add3_u32 v85, v84, v77, -4
    v_add3_u32 v86, v85, v78, -4
    v_add3_u32 v87, v86, v79, -4
    s_waitcnt lgkmcnt(1)
    v_add3_u32 v88, v87, v80, -4
    v_add3_u32 v89, v88, v81, -4
    v_add3_u32 v92, v89, v82, -4
    v_add3_u32 v93, v92, v83, 28
    v_add_u32 v94, 0x7f, v93
    v_and_b32 v94, 0xffffff80, v94
    v_mov_b32 v95, v94
    v_lshlrev_b32 v74, 2, v0
    s_waitcnt lgkmcnt(0)
    v_add_u32_dpp v95, v95, v95 row_shr:1 row_mask:0xf bank_mask:0xf
    v_readlane_b32 s29, v93, s3
    v_readlane_b32 s30, v94, s3
    v_add_u32_dpp v95, v95, v95 row_shr:2 row_mask:0xf bank_mask:0xf
    v_readfirstlane_b32 s35, v75
    v_add_u32 v74, s29, v74
    v_add_u32_dpp v95, v95, v95 row_shr:4 row_mask:0xf bank_mask:0xf
    v_cmp_gt_u32 vcc, s30, v74
    v_mov_b32 v75, 0x800000
    v_add_u32_dpp v95, v95, v95 row_shr:8 row_mask:0xf bank_mask:0xf
    v_sub_u32 v95, v95, v94
    v_sub_u32 v76, v95, v90
    v_readlane_b32 s28, v95, s3
    v_add_u32 v77, v76, v84
    v_add_u32 v78, v76, v85
    v_add_u32 v79, v76, v86
    v_add_u32 v80, v76, v87
    v_add_u32 v81, v76, v88
    v_add_u32 v82, v76, v89
    v_add_u32 v83, v76, v92
    v_add_u32 v74, s28, v74
    s_mov_b64 exec, 0xfff
    ds_write_b128 v90, v[76:79] offset:{L_BASE}
    ds_write_b128 v90, v[80:83] offset:{L_BASE+16}
    s_mov_b64 exec, vcc
    ds_write_b32 v74, v75 offset:{L_KEY}
    s_mov_b64 exec, -1
    s_waitcnt lgkmcnt(0)
;TS scan2""")
    for p in range(NP):
        A(f"    ds_read_b32 v{BS(p)}, v{KA(p)} offset:{L_BASE}")
    A(f"""    s_lshr_b32 s30, s30, 7
    s_add_u32 s29, s28, {L_KEY}
    s_lshl_b32 s28, s28, 1
    v_add_u32 v6, s29, v28
    v_add_u32 v7, s29, v29
    v_add_u32 v30, s28, v30""")
    for p in range(NP):
        A(f"""    s_waitcnt lgkmcnt({NP-1-p + 2*p})
    v_add3_u32 v{BS(p)}, v{BS(p)}, v{RA(p)+3}, v{KA(p)}
    v_lshl_add_u32 v{KA(p)}, v{BS(p)}, 1, s10
    ds_write_b32 v{BS(p)}, v{RA(p)+2} offset:{L_KEY}
    ds_write_b64 v{KA(p)}, v[{RA(p)}:{RA(p)+1}]""")
    A(f"""    s_cmp_eq_u32 s32, 0
    s_cbranch_scc1 L_no8b
    ds_read_b32 v13, v12 offset:{L_BASE}
    s_waitcnt lgkmcnt(0)
    v_add3_u32 v13, v13, v11, v12
    v_lshl_add_u32 v12, v13, 1, s10
    ds_write_b32 v13, v10 offset:{L_KEY}
    ds_write_b64 v12, v[8:9]
L_no8b:
    s_mov_b32 s31, {NB}
    s_mov_b32 s28, 0x00fffe00
    s_mov_b32 s29, 0xe0000000
    s_mov_b32 s38, 0x05040100
    s_mov_b32 s39, 0x07060302
{ROLLS}
    s_waitcnt vmcnt({NPF}) lgkmcnt(0)
    s_barrier                                 ; B6
;TS sorted
;CLK 0
    s_cmp_lg_u32 s30, 0
    s_cbranch_scc0 L_done
""")
    PR = o.get('prio', 1)
    if PR == 1:
        A("""    s_cmp_lt_u32 s3, 4
    s_cbranch_scc1 L_p0
    s_setprio 1
    s_cmp_lt_u32 s3, 8
    s_cbranch_scc1 L_p0
    s_setprio 2
L_p0:""")
    if PR == 2:
        A("""    s_mul_i32 s10, s3, 43
    s_lshr_b32 s10, s10, 7
    s_mul_i32 s10, s10, 3
    s_cmp_lg_u32 s10, s3
    s_cbranch_scc1 L_p0
    s_setprio 1
L_p0:""")

    def read_keys():
        A(f"""    ds_read_b128 v[8:11], v6
    ds_read_b128 v[12:15], v6 offset:16
    ds_read2_b32 v[28:29], v7 offset0:0 offset1:4
    v_add_u32 v6, 128, v6
    v_add_u32 v7, 128, v7""")
    def mk_addr():
        for e in range(8):
            A(f"    v_and_or_b32 v{8+e}, v{8+e}, s28, v1")
        A("""    v_bitop3_b32 v28, v28, s29, v30 bitop3:0x6a
    v_bitop3_b32 v29, v29, s29, v30 bitop3:0x6a
    v_add_u32 v30, 256, v30""")
    def issue(h):
        for e in range(8):
            r = 32 + h*32 + e*4
            A(f"    buffer_load_dwordx4 v[{r}:{r+3}], v{8+e}, s[12:15], 0 offen offset:{h*256}")
    ROLL = o.get('roll', 0)
    def roll():
        if ROLL:
            A(f"""    s_min_u32 s33, s33, s34
    s_mov_b64 exec, 0x3fff
    buffer_load_dword v31, v0, s[40:43], s33 idxen
    s_mov_b64 exec, -1
    s_add_u32 s33, s33, 640000""")
    def read_b():
        A("""    ds_read_b64_tr_b16 v[16:17], v28
    ds_read_b64_tr_b16 v[18:19], v29 offset:32""")
    def half(h):
        D = 32 + h*32
        def perms(j):
            t = 20 + (j % 2) * 4
            sel = 's38' if j % 2 == 0 else 's39'
            for q in range(4):
                A(f"    v_perm_b32 v{t+q}, v{D + (2*q+1)*4 + j//2}, v{D + 2*q*4 + j//2}, {sel}")
        def mfma(j):
            t = 20 + (j % 2) * 4
            a = ACC + (h*8 + j) * 4
            A(f"    v_mfma_f32_16x16x32_bf16 v[{a}:{a+3}], v[{t}:{t+3}], v[16:19], v[{a}:{a+3}]")
        perms(0)
        for j in range(8):
            if j + 1 < 8:
                perms(j + 1)
            else:
                A("    s_nop 1")
            mfma(j)

    read_keys()
    A("    s_waitcnt lgkmcnt(0)")
    mk_addr()
    issue(0); issue(1)
    roll()
    read_b()
    read_keys()
    A("""    s_sub_u32 s30, s30, 1
    s_cmp_eq_u32 s30, 0
    s_cbranch_scc1 L_last
L_loop:
    s_waitcnt lgkmcnt(0)""")
    mk_addr()
    A(f"    s_waitcnt vmcnt({8 + (1 if ROLL else 0)})")
    half(0)
    issue(0)
    A("""    s_cmp_eq_u32 s31, 0
    s_cbranch_scc1 L_nobar
    s_sub_u32 s31, s31, 1
    s_barrier
L_nobar:""")
    A(f"    s_waitcnt vmcnt({8 + (1 if ROLL else 0)})")
    half(1)
    issue(1)
    roll()
    read_b()
    read_keys()
    A("""    s_sub_u32 s30, s30, 1
    s_cmp_lg_u32 s30, 0
    s_cbranch_scc1 L_loop
L_last:""")
    A(f"    s_waitcnt vmcnt({8 + (1 if ROLL else 0)}) lgkmcnt(0)")
    half(0)
    A("    s_waitcnt vmcnt(0)")
    half(1)
    A(f"""L_done:
    s_cmp_eq_u32 s31, 0
    s_cbranch_scc1 L_paid
    s_sub_u32 s31, s31, 1
    s_barrier
    s_branch L_done
L_paid:
    s_waitcnt vmcnt(0)
    s_setprio {o.get('eprio', 0)}
    s_cmp_eq_u32 s35, 0
    s_cbranch_scc1 L_epi
    s_barrier
    v_mov_b32 v6, 0
    v_lshlrev_b32 v7, 2, v0
    ds_write_b32 v7, v6
    ds_write_b32 v7, v6 offset:256
    ds_write_b32 v7, v6 offset:264
    s_waitcnt lgkmcnt(0)
    s_barrier
    s_branch L_round
L_epi:
;TS main
;CLK 1""")
    WB = 64
    A("    v_lshlrev_b32 v1, 4, v0")
    order = [(p, u, t) for p in (0, 2) for u in range(2) for t in range(4)]
    order += [(p, 0, t) for p in (1, 3, 4) for t in range(4)] + [(p, 1, t) for p in (1, 3, 4) for t in range(4)]
    fr = lambda put: put[0]*8 + put[1]*4 + put[2]
    def wread_i(n):
        f = fr(order[n]); r = WB + (n % 8) * 4
        A(f"    ds_read_b128 v[{r}:{r+3}], v1 offset:{L_W + f*1024}")
    for n in range(8):
        wread_i(n)
    acc = lambda h, j, r: ACC + (h*8 + j)*4 + r
    PA, PB, PC = 8, 16, 24
    D0, D1 = 32, 48
    T = lambda c, r, j: acc(c // 2, j + 4*(c % 2), r)
    dp = {1: 'quad_perm:[1,0,3,2]', 2: 'quad_perm:[2,3,0,1]', 3: 'quad_perm:[3,2,1,0]'}
    A("    s_nop 2")
    for j in range(4):
        for r in range(4):
            A(f"    v_permlane32_swap_b32 v{acc(0,j,r)}, v{acc(0,j+4,r)}")
    for u in range(2):
        for q in range(4):
            r = 2*u + q // 2; j = (q % 2) * 2
            A(f"    v_cvt_pk_bf16_f32 v{PA+u*4+q}, v{T(0,r,j)}, v{T(0,r,j+1)}")
    valu = []
    for r in range(4):
        for j in range(4):
            valu.append(f"    v_permlane32_swap_b32 v{acc(1,j,r)}, v{acc(1,j+4,r)}")
    marks = {}
    for u in range(2):
        for q in range(4):
            r = 2*u + q // 2; j = (q % 2) * 2
            for (dst, k) in ((2, (160, 161, 162)), (4, (163, 164, 165))):
                for c in (1, 2, 3):
                    for d in range(2):
                        op = 'v_mul_f32_dpp' if c == 1 else 'v_fmac_f32_dpp'
                        valu.append(f"    {op} v{dst+d}, v{T(c,r,j+d)}, v{k[c-1]} {dp[c]} row_mask:0xf bank_mask:0xf")
            valu.append(f"    v_cvt_pk_bf16_f32 v{PB+u*4+q}, v2, v3")
            valu.append(f"    v_cvt_pk_bf16_f32 v{PC+u*4+q}, v4, v5")
        marks[u] = len(valu)
    seen = set()
    pos = 0
    def emit_valu(upto):
        nonlocal pos
        while pos < min(upto, len(valu)):
            A(valu[pos]); pos += 1
    for n, (p, u, t) in enumerate(order):
        if n < 16:
            emit_valu((n + 1) * marks[0] // 16)
        elif n < 28:
            emit_valu(marks[0] + (2 if n == 16 else 0) + (n - 15) * (marks[1] - marks[0]) // 12)
        elif n == 28:
            A("    s_nop 1")
        P = {0: PA, 2: PA, 1: PB, 3: PB, 4: PC}[p] + u*4
        D = (D0 if p < 2 else D1) + t*4
        w = WB + (n % 8) * 4
        c = f"v[{D}:{D+3}]" if D in seen else "0"
        seen.add(D)
        A(f"    s_waitcnt lgkmcnt({min(7, len(order)-1-n)})")
        A(f"    v_mfma_f32_16x16x32_bf16 v[{D}:{D+3}], v[{P}:{P+3}], v[{w}:{w+3}], {c}")
        if n + 8 < len(order):
            wread_i(n + 8)
        if n == 31:
            A(f"""    s_mul_i32 s10, s69, 625
    s_add_u32 s28, s10, 640
    s_add_u32 s10, s10, 15
    s_lshr_b32 s10, s10, 4
    s_lshr_b32 s28, s28, 4
    s_mul_i32 s11, s3, 10
    s_add_u32 s29, s11, 12
    s_add_u32 s11, s11, 2
    s_mul_i32 s11, s11, 43691
    s_mul_i32 s29, s29, 43691
    s_lshr_b32 s11, s11, 17
    s_lshr_b32 s29, s29, 17
    s_add_u32 s29, s29, s10
    s_add_u32 s10, s10, s11
    s_min_u32 s28, s28, s29
    s_sub_u32 s28, s28, s10
    s_lshl_b32 s28, s28, 4
    s_lshl_b32 s10, s10, 9
    s_add_u32 s8, s8, s10
    s_addc_u32 s9, s9, 0""")
    assert pos == len(valu)
    ST = o.get('ost', '')
    A(f"""    v_lshrrev_b32 v2, 4, v0
    v_and_b32 v3, 15, v0
    v_lshlrev_b32 v2, 9, v2
    v_lshl_add_u32 v2, v3, 3, v2
    v_cmp_gt_u32 vcc, s28, v0
    s_mov_b32 s10, 0xbfb8aa3b                 ; -log2(e)""")
    for t in range(4):
        A(f"    v_mul_f32 v{8+t}, s10, v{D0+t*4}")
    for t in range(4):
        A(f"    v_exp_f32 v{8+t}, v{8+t}")
    A(f"""    s_and_b64 exec, exec, vcc
    s_cbranch_execz L_fin
    v_cvt_pk_bf16_f32 v12, v{D0}, v{D0+4}
    v_cvt_pk_bf16_f32 v13, v{D0+8}, v{D0+12}""")
    for t in range(4):
        A(f"    v_add_f32 v{8+t}, 1.0, v{8+t}")
    A(f"    global_store_dwordx2 v2, v[12:13], s[8:9] {ST}")
    for t in range(4):
        A(f"    v_rcp_f32 v{8+t}, v{8+t}")
    A("    s_nop 0")
    for i in range(1, 4):
        for t in range(4):
            A(f"    v_mul_f32 v{D1+t*4+i}, v{D1+t*4+i}, v{8+t}")
        A(f"""    v_cvt_pk_bf16_f32 v{12+2*i}, v{D1+i}, v{D1+4+i}
    v_cvt_pk_bf16_f32 v{13+2*i}, v{D1+8+i}, v{D1+12+i}
    global_store_dwordx2 v2, v[{12+2*i}:{13+2*i}], s[8:9] offset:{i*128} {ST}""")
    A("""L_fin:
;TSOUT
L_end:
    s_endpgm""")

    A(f"""L_help:
    v_and_b32 v0, 63, v0
    s_cmp_eq_u32 s3, 11
    s_cbranch_scc1 L_h11
    v_mov_b32 v4, 0
    v_mov_b32 v5, 0
    v_mov_b32 v6, 0
    v_mov_b32 v7, 0
    v_lshlrev_b32 v47, 4, v0
    ds_write_b128 v47, v[4:7]
    ds_write_b128 v47, v[4:7] offset:{L_C1}
    v_mul_u32_u24 v8, 1229, v0
    v_lshrrev_b32 v8, 12, v8
    v_mul_u32_u24 v9, 10, v8
    v_add_u32 v9, 2, v9
    v_mul_u32_u24 v9, 43691, v9
    v_lshrrev_b32 v9, 17, v9
    v_sub_u32 v9, v0, v9
    v_lshlrev_b32 v8, 5, v8
    v_lshl_or_b32 v8, v9, 30, v8
    v_or_b32 v8, 0x20000000, v8
    v_lshlrev_b32 v9, 2, v0
    ds_write_b32 v9, v8 offset:{L_LUT}
    s_waitcnt lgkmcnt(0)
    s_barrier                                 ; B1
{XSRD + TOUCH.replace('v47', 'v40') if o.get('mall') == 4 else ''}
    s_barrier                                 ; B2
    ds_read_b128 v[48:51], v47 offset:{L_C1}
    s_waitcnt lgkmcnt(0)
    v_add_u32 v52, v48, v49
    v_add_u32 v53, v52, v50
    v_add_u32 v54, v53, v51
    v_mov_b32 v55, v54
    s_nop 1
    v_add_u32_dpp v55, v55, v55 row_shr:1 row_mask:0xf bank_mask:0xf
    s_nop 1
    v_add_u32_dpp v55, v55, v55 row_shr:2 row_mask:0xf bank_mask:0xf
    s_nop 1
    v_add_u32_dpp v55, v55, v55 row_shr:4 row_mask:0xf bank_mask:0xf
    s_nop 1
    v_add_u32_dpp v55, v55, v55 row_shr:8 row_mask:0xf bank_mask:0xf
    s_nop 1
    v_add_u32_dpp v55, v55, v55 row_bcast:15 row_mask:0xa bank_mask:0xf
    s_nop 1
    v_add_u32_dpp v55, v55, v55 row_bcast:31 row_mask:0xc bank_mask:0xf
    v_sub_u32 v56, v55, v54
    v_add_u32 v57, v56, v48
    v_add_u32 v58, v56, v52
    v_add_u32 v59, v56, v53
    ds_write_b128 v47, v[56:59] offset:{L_B1}
    s_waitcnt lgkmcnt(0)
    s_barrier                                 ; B2b
L_h3:
    s_and_b32 s58, s3, 1
    s_lshl_b32 s58, s58, 9
    v_lshl_add_u32 v62, v0, 3, s58
    ds_read_b64 v[56:57], v62 offset:{L_B1}
    ds_read_b64 v[58:59], v62 offset:{L_C1}
    v_lshlrev_b32 v62, 1, v62
    s_lshl_b32 s57, s2, 11
    s_add_u32 s57, s57, {WS_INB}
    s_add_u32 s50, s6, s57
    s_addc_u32 s51, s7, 0
    s_waitcnt lgkmcnt(0)
    s_barrier                                 ; B3
;TSX staged
    s_branch L_common
L_h11:
    s_load_dwordx4 s[60:63], s[0:1], 40
    s_load_dwordx2 s[64:65], s[0:1], 56       ; w_si1
    s_load_dwordx2 s[66:67], s[0:1], 80
    v_mov_b32 v40, 0
    s_barrier                                 ; B1
    s_waitcnt lgkmcnt(0)""")
    A(f"""    s_cmp_lg_u32 s2, 0
    s_cbranch_scc1 L_h1
    s_memrealtime s[48:49]
    s_waitcnt lgkmcnt(0)
    s_or_b32 s48, s48, 1
    v_mov_b32 v41, s48
    global_store_dword v40, v41, s[66:67] sc1
L_h1:""")
    A(f"""    s_mov_b32 s52, 0
    s_mul_i32 s53, s2, 2979
    s_lshr_b32 s53, s53, 16                   ; w = id / 22
    s_mul_i32 s54, s53, 22
    s_sub_u32 s54, s2, s54
    s_sub_u32 s54, s54, 1
    s_cmp_ge_u32 s54, 4
    s_cbranch_scc1 L_h2
    s_lshl_b32 s53, s53, 2
    s_add_u32 s53, s53, s54
    s_cmp_ge_u32 s53, 40
    s_cbranch_scc1 L_h2
    s_lshr_b32 s55, s53, 3                    ; fragment f = p*8 + u*4 + t
    s_bfe_u32 s56, s53, 0x10002
    s_and_b32 s57, s53, 3
    v_lshrrev_b32 v1, 4, v0
    v_and_b32 v2, 1, v1
    v_lshlrev_b32 v2, 5, v2
    v_lshrrev_b32 v1, 1, v1
    v_lshl_add_u32 v2, v1, 2, v2
    s_lshl_b32 s56, s56, 4
    v_add_u32 v2, s56, v2                     ; ch0 = 32*(g&1) + 4*(g>>1) + 16*u
    v_and_b32 v3, 15, v0
    v_lshlrev_b32 v3, 2, v3
    v_add_u32 v3, s57, v3                     ; c_out = 4n + t
    s_lshl_b32 s58, s55, 6
    v_add_u32 v4, s58, v2
    v_lshlrev_b32 v4, 1, v4
    s_cmp_lt_u32 s55, 2
    s_cselect_b32 s59, 0, 128
    s_cselect_b32 s62, s62, s64
    s_cselect_b32 s63, s63, s65
    s_sub_u32 s58, s58, s59
    v_add_u32 v5, s58, v2
    v_lshlrev_b32 v5, 7, v5
    v_lshl_add_u32 v5, v3, 1, v5
    s_lshl_b32 s54, s53, 10
    s_add_u32 s54, s54, {WS_W}
    v_lshlrev_b32 v6, 4, v0
    s_add_u32 s50, s6, s54
    s_addc_u32 s51, s7, 0
    global_load_dwordx2 v[8:9], v4, s[60:61]
    global_load_dwordx2 v[10:11], v4, s[60:61] offset:16""")
    for e in range(8):
        row = (e // 4) * 8 + e % 4
        A(f"    global_load_ushort v{12+e}, v5, s[62:63] offset:{row*128}")
    A(f"""    s_mov_b32 s52, 1
L_h2:
    s_mov_b32 s10, {SPIN}
    s_mov_b32 s56, 0xffff0000
    s_barrier                                 ; B2
    global_load_dword v41, v40, s[66:67] sc1
    s_barrier                                 ; B2b
    s_cmp_eq_u32 s52, 0
    s_cbranch_scc1 L_hchk
    s_waitcnt vmcnt(1)""")
    for e in range(8):
        src = 8 + e // 2
        A(f"    v_lshlrev_b32 v{20+e}, 16, v{src}" if e % 2 == 0 else f"    v_and_b32 v{20+e}, s56, v{src}")
        A(f"    v_lshlrev_b32 v{12+e}, 16, v{12+e}")
        A(f"    v_mul_f32 v{12+e}, v{12+e}, v{20+e}")
    for q in range(4):
        A(f"    v_cvt_pk_bf16_f32 v{28+q}, v{12+2*q}, v{13+2*q}")
    A(f"""    global_store_dwordx4 v6, v[28:31], s[50:51] sc1
    s_waitcnt vmcnt(1)
    s_branch L_hchk1
L_hpoll:
    global_load_dword v41, v40, s[66:67] sc1
    s_sub_u32 s10, s10, 1
    s_cbranch_scc1 L_end
L_hchk:
    s_waitcnt vmcnt(0)
L_hchk1:
    v_cmp_eq_u32 vcc, 0, v41
    s_cbranch_vccnz L_hpoll
    v_mov_b32 v42, {L_NONCE}
    ds_write_b32 v42, v41""")
    if o.get('mall') == 2:
        A("""    s_mov_b32 s12, s4
    s_mov_b32 s13, s5
    s_mov_b32 s14, 5120000
    s_mov_b32 s15, 0x20000""")
        A(TOUCH)
    A("    s_branch L_h3")


TOUCH = f"""    v_lshlrev_b32 v43, 7, v0
    s_mul_i32 s10, s2, 20000
    s_and_b32 s11, s3, 1
    s_mul_i32 s11, s11, 11904
    s_add_u32 s10, s10, s11
    buffer_load_dword v47, v43, s[12:15], s10 offen
    s_add_u32 s10, s10, 4096
    buffer_load_dword v47, v43, s[12:15], s10 offen"""


XSRD = """    s_mov_b32 s12, s4
    s_mov_b32 s13, s5
    s_mov_b32 s14, 5120000
    s_mov_b32 s15, 0x20000
"""


def gen(o):
    global TOUCH
    if o.get('mall') in (2, 4):
        TOUCH = f"""    v_lshlrev_b32 v43, 7, v0
    s_mul_i32 s10, s2, 20000
    buffer_load_dword v47, v43, s[12:15], s10 offen
    s_add_u32 s10, s10, 8192
    buffer_load_dword v47, v43, s[12:15], s10 offen
    s_add_u32 s10, s10, 3712
    buffer_load_dword v47, v43, s[12:15], s10 offen"""
    else:
        TOUCH = f"""    v_lshlrev_b32 v43, 7, v0
    s_mul_i32 s10, s2, 20000
    s_and_b32 s11, s3, 1
    s_mul_i32 s11, s11, 10000
    s_add_u32 s10, s10, s11
    buffer_load_dword v47, v43, s[12:15], s10 offen
    s_add_u32 s10, s10, 1920
    buffer_load_dword v47, v43, s[12:15], s10 offen"""
    A = Asm()
    A(HDR.rstrip('\n'))
    A(f"; @launch grid=({NCH},1,1) block=({NW*64},1,1) lds={L_END}")
    A('.amdgcn_target "amdgcn-amd-amdhsa--gfx950"\n.text')
    gen_body(A, o)
    ts = o.get('ts') or []
    A(f""".section .rodata,"a"
.p2align 6
.amdhsa_kernel {NAME}
  .amdhsa_next_free_vgpr 168
  .amdhsa_next_free_sgpr {102 if ts else 72}
  .amdhsa_accum_offset 168
  .amdhsa_group_segment_fixed_size 0
  .amdhsa_kernarg_size 96
  .amdhsa_user_sgpr_count 2
  .amdhsa_user_sgpr_kernarg_segment_ptr 1
  .amdhsa_system_sgpr_workgroup_id_x 1
.end_amdhsa_kernel""")
    out = Asm()
    names = []
    for line in A.L:
        if line.startswith(';TS '):
            nm = line.split()[1]
            if (ts == 1 or nm in ts) and len(names) < 11:
                k = len(names)
                out(f"    s_memrealtime s[{74+2*k}:{75+2*k}]")
                names.append(nm)
        elif line.startswith(';TSX'):
            if ts:
                for nm in ('dst', 'hist1', 'loads', 'staged'):
                    if nm in names:
                        k = names.index(nm)
                        out(f"    s_memrealtime s[{74+2*k}:{75+2*k}]")
        elif line.startswith(';CLK'):
            if ts:
                k = int(line.split()[1])
                out(f"    s_memtime s[{98+2*k}:{99+2*k}]")
        elif line.startswith(';TSOUT'):
            if ts:
                n = len(names)
                out(f"""    s_waitcnt vmcnt(0)
    s_memrealtime s[{74+2*n}:{75+2*n}]
    s_waitcnt lgkmcnt(0)
    s_mul_i32 s72, s2, {NW}
    s_add_u32 s72, s72, s3
    s_lshl_b32 s72, s72, 6
    s_add_u32 s72, s72, {WS_TS}
    s_add_u32 s6, s6, s72
    s_addc_u32 s7, s7, 0
    s_mov_b64 exec, 1
    v_mov_b32 v0, 0
    s_sub_u32 s98, s100, s98
    v_mov_b32 v1, s98
    global_store_dword v0, v1, s[6:7] offset:60""")
                for k in range(n + 1):
                    out(f"""    v_mov_b32 v1, s{74+2*k}
    global_store_dword v0, v1, s[6:7] offset:{4*k}""")
                names.append('end')
        elif line.strip():
            out.L.append(line)
    global TSNAMES
    TSNAMES = names
    return out.text()


if __name__ == '__main__':
    o = eval(sys.argv[2]) if len(sys.argv) > 2 else {}
    open(sys.argv[1], 'w').write(gen(o))
```

```python
import sys

NAME = 'gather_scatter__tensor_product_equiv_equiformer__graph_kernel'
HDR = """; gather_scatter tensor product (equiformer) -- one launch, 256 co-resident workgroups of 12 waves
"""

NCH = 256
NW = 12
CH = 2500
RECB = 30720
SEGW = 22
WS_INB = 0x800000
WS_W = 0x900000
WS_NONCE = 0x910000
WS_TS = 0x1000000
SPIN = 30000

L_FLAG = 512
L_NONCE = 520
L_BASE = 576
L_LUT = 1088
L_W = 2048
L_C1 = 2048
L_B1 = 3072
L_ST = 4096
L_KEY = L_W + 49152
CAP = 6016
L_COEF = L_KEY + CAP * 4
L_END = L_COEF + CAP * 8


class Asm:
    def __init__(self):
        self.L = []
    def __call__(self, s):
        for line in s.strip('\n').split('\n'):
            self.L.append(line)
    def text(self):
        return '\n'.join(self.L) + '\n'


def epilogue1(A, o, ACC):
    WB = 64
    A("    v_lshlrev_b32 v1, 4, v0")
    order = [(p, u, t) for p in (0, 2) for u in range(2) for t in range(4)]
    order += [(p, 0, t) for p in (1, 3, 4) for t in range(4)] + [(p, 1, t) for p in (1, 3, 4) for t in range(4)]
    fr = lambda put: put[0]*8 + put[1]*4 + put[2]
    def wread_i(n):
        f = fr(order[n]); r = WB + (n % 8) * 4
        A(f"    ds_read_b128 v[{r}:{r+3}], v1 offset:{L_W + f*1024}")
    for n in range(8):
        wread_i(n)
    acc = lambda h, j, r: ACC + (h*8 + j)*4 + r
    PA, PB, PC = 8, 16, 24
    D0, D1 = 32, 48
    T = lambda c, r, j: acc(c // 2, j + 4*(c % 2), r)
    dp = {1: 'quad_perm:[1,0,3,2]', 2: 'quad_perm:[2,3,0,1]', 3: 'quad_perm:[3,2,1,0]'}
    A("    s_nop 2")
    for j in range(4):
        for r in range(4):
            A(f"    v_permlane32_swap_b32 v{acc(0,j,r)}, v{acc(0,j+4,r)}")
    for u in range(2):
        for q in range(4):
            r = 2*u + q // 2; j = (q % 2) * 2
            A(f"    v_cvt_pk_bf16_f32 v{PA+u*4+q}, v{T(0,r,j)}, v{T(0,r,j+1)}")
    valu = []
    for r in range(4):
        for j in range(4):
            valu.append(f"    v_permlane32_swap_b32 v{acc(1,j,r)}, v{acc(1,j+4,r)}")
    marks = {}
    for u in range(2):
        for q in range(4):
            r = 2*u + q // 2; j = (q % 2) * 2
            for (dst, k) in ((2, (160, 161, 162)), (4, (163, 164, 165))):
                for c in (1, 2, 3):
                    for d in range(2):
                        op = 'v_mul_f32_dpp' if c == 1 else 'v_fmac_f32_dpp'
                        valu.append(f"    {op} v{dst+d}, v{T(c,r,j+d)}, v{k[c-1]} {dp[c]} row_mask:0xf bank_mask:0xf")
            valu.append(f"    v_cvt_pk_bf16_f32 v{PB+u*4+q}, v2, v3")
            valu.append(f"    v_cvt_pk_bf16_f32 v{PC+u*4+q}, v4, v5")
        marks[u] = len(valu)
    seen = set()
    pos = 0
    def emit_valu(upto):
        nonlocal pos
        while pos < min(upto, len(valu)):
            A(valu[pos]); pos += 1
    for n, (p, u, t) in enumerate(order):
        if n < 16:
            emit_valu((n + 1) * marks[0] // 16)
        elif n < 28:
            emit_valu(marks[0] + (2 if n == 16 else 0) + (n - 15) * (marks[1] - marks[0]) // 12)
        elif n == 28:
            A("    s_nop 1")
        P = {0: PA, 2: PA, 1: PB, 3: PB, 4: PC}[p] + u*4
        D = (D0 if p < 2 else D1) + t*4
        w = WB + (n % 8) * 4
        c = f"v[{D}:{D+3}]" if D in seen else "0"
        seen.add(D)
        A(f"    s_waitcnt lgkmcnt({min(7, len(order)-1-n)})")
        A(f"    v_mfma_f32_16x16x32_bf16 v[{D}:{D+3}], v[{P}:{P+3}], v[{w}:{w+3}], {c}")
        if n + 8 < len(order):
            wread_i(n + 8)
        if n == 31:
            A(f"""    s_mul_i32 s10, s69, 625
    s_add_u32 s28, s10, 640
    s_add_u32 s10, s10, 15
    s_lshr_b32 s10, s10, 4
    s_lshr_b32 s28, s28, 4
    s_mul_i32 s11, s3, 10
    s_add_u32 s29, s11, 12
    s_add_u32 s11, s11, 2
    s_mul_i32 s11, s11, 43691
    s_mul_i32 s29, s29, 43691
    s_lshr_b32 s11, s11, 17
    s_lshr_b32 s29, s29, 17
    s_add_u32 s29, s29, s10
    s_add_u32 s10, s10, s11
    s_min_u32 s28, s28, s29
    s_sub_u32 s28, s28, s10
    s_lshl_b32 s28, s28, 4
    s_lshl_b32 s10, s10, 9
    s_add_u32 s8, s8, s10
    s_addc_u32 s9, s9, 0""")
    assert pos == len(valu)
    ST = o.get('ost', '')
    A(f"""    v_lshrrev_b32 v2, 4, v0
    v_and_b32 v3, 15, v0
    v_lshlrev_b32 v2, 9, v2
    v_lshl_add_u32 v2, v3, 3, v2
    v_cmp_gt_u32 vcc, s28, v0
    s_mov_b32 s10, 0xbfb8aa3b                 ; -log2(e)""")
    for t in range(4):
        A(f"    v_mul_f32 v{8+t}, s10, v{D0+t*4}")
    for t in range(4):
        A(f"    v_exp_f32 v{8+t}, v{8+t}")
    A(f"""    s_and_b64 exec, exec, vcc
    s_cbranch_execz L_fin
    v_cvt_pk_bf16_f32 v12, v{D0}, v{D0+4}
    v_cvt_pk_bf16_f32 v13, v{D0+8}, v{D0+12}""")
    for t in range(4):
        A(f"    v_add_f32 v{8+t}, 1.0, v{8+t}")
    A(f"    global_store_dwordx2 v2, v[12:13], s[8:9] {ST}")
    for t in range(4):
        A(f"    v_rcp_f32 v{8+t}, v{8+t}")
    A("    s_nop 0")
    for i in range(1, 4):
        for t in range(4):
            A(f"    v_mul_f32 v{D1+t*4+i}, v{D1+t*4+i}, v{8+t}")
        A(f"""    v_cvt_pk_bf16_f32 v{12+2*i}, v{D1+i}, v{D1+4+i}
    v_cvt_pk_bf16_f32 v{13+2*i}, v{D1+8+i}, v{D1+12+i}
    global_store_dwordx2 v2, v[{12+2*i}:{13+2*i}], s[8:9] offset:{i*128} {ST}""")

def epilogue2(A, o, ACC):
    order = [(p, u, t) for p in (0, 2) for u in range(2) for t in range(4)]
    order += [(p, u, t) for (p, u) in ((1, 0), (3, 0), (1, 1), (3, 1), (4, 0), (4, 1)) for t in range(4)]
    ring = [2, 8, 12, 28, 104, 108]
    fr = lambda put: put[0]*8 + put[1]*4 + put[2]
    def wread(n):
        r = ring[n % 6]
        return f"    ds_read_b128 v[{r}:{r+3}], v1 offset:{L_W + fr(order[n])*1024}"
    acc = lambda h, j, r: ACC + (h*8 + j)*4 + r
    PA, PB, PC = 96, 64, 72
    D0, D1 = 32, 48
    T = lambda c, r, j: acc(c // 2, j + 4*(c % 2), r)
    dp = {1: 'quad_perm:[1,0,3,2]', 2: 'quad_perm:[2,3,0,1]', 3: 'quad_perm:[3,2,1,0]'}
    seen = set()
    def mm(n, wait=True):
        p, u, t = order[n]
        P = {0: PA, 2: PA, 1: PB, 3: PB, 4: PC}[p] + u*4
        D = (D0 if p < 2 else D1) + t*4
        w = ring[n % 6]
        c = f"v[{D}:{D+3}]" if D in seen else "0"
        seen.add(D)
        L = []
        if wait:
            L.append(f"    s_waitcnt lgkmcnt({min(5, len(order)-1-n)})")
        L.append(f"    v_mfma_f32_16x16x32_bf16 v[{D}:{D+3}], v[{P}:{P+3}], v[{w}:{w+3}], {c}")
        if n + 6 < len(order):
            L.append(wread(n + 6))
        return L
    A("""    s_cmp_lg_u32 s37, 0
    s_cbranch_scc1 L_epiB
    s_mov_b32 s36, 2
L_epiA:
    s_mov_b32 s37, 1
    v_lshlrev_b32 v1, 4, v0""")
    for n in range(4):
        A(wread(n))
    A("""    s_mul_i32 s10, s69, 625
    s_add_u32 s28, s10, 640
    s_add_u32 s10, s10, 15
    s_lshr_b32 s10, s10, 4
    s_lshr_b32 s28, s28, 4
    s_mul_i32 s11, s3, 10
    s_add_u32 s29, s11, 12
    s_add_u32 s11, s11, 2
    s_mul_i32 s11, s11, 43691
    s_mul_i32 s29, s29, 43691
    s_lshr_b32 s11, s11, 17
    s_lshr_b32 s29, s29, 17
    s_add_u32 s29, s29, s10
    s_add_u32 s10, s10, s11
    s_min_u32 s28, s28, s29
    s_sub_u32 s28, s28, s10
    s_lshl_b32 s28, s28, 4
    s_lshl_b32 s10, s10, 9
    s_add_u32 s8, s8, s10
    s_addc_u32 s9, s9, 0
    v_cmp_gt_u32 s[40:41], s28, v0
    v_lshrrev_b32 v6, 4, v0
    v_and_b32 v7, 15, v0
    v_lshlrev_b32 v6, 9, v6
    v_lshl_add_u32 v6, v7, 3, v6
    s_mov_b32 s10, 0xbfb8aa3b                 ; -log2(e)""")
    for j in range(4):
        for r in range(4):
            A(f"    v_permlane32_swap_b32 v{acc(0,j,r)}, v{acc(0,j+4,r)}")
    for (u, q) in ((0, 0), (1, 0), (0, 2), (1, 2), (0, 1), (0, 3), (1, 1), (1, 3)):
        r = 2*u + q // 2; j = (q % 2) * 2
        A(f"    v_cvt_pk_bf16_f32 v{PA+u*4+q}, v{T(0,r,j)}, v{T(0,r,j+1)}")
    A(wread(4)); A(wread(5))
    for n in range(16):
        for l in mm(n): A(l)
    A("""    s_cmp_eq_u32 s36, 0
    s_cbranch_scc1 L_lastB""")
    if o.get('short'):
        A("""    s_cmp_eq_u32 s36, 1
    s_cbranch_scc1 L_shortB""")
    A("L_epiB:")
    for j in range(4):
        for r in range(4):
            A(f"    v_permlane32_swap_b32 v{acc(1,j,r)}, v{acc(1,j+4,r)}")
    def combo(P, k, u):
        L = []
        for q in range(4):
            r = 2*u + q // 2; j = (q % 2) * 2
            t0 = 80 + 2*(q % 2)
            for c in (1, 2, 3):
                for d in range(2):
                    op = 'v_mul_f32_dpp' if c == 1 else 'v_fmac_f32_dpp'
                    L.append(f"    {op} v{t0+d}, v{T(c,r,j+d)}, v{k[c-1]} {dp[c]} row_mask:0xf bank_mask:0xf")
            L.append(f"    v_cvt_pk_bf16_f32 v{P+u*4+q}, v{t0}, v{t0+1}")
        return L
    def weave(valu, ns):
        step = (len(valu) - 2) / len(ns)
        pos = 0
        for i, n in enumerate(ns):
            upto = 2 + int(i * step)
            while pos < upto:
                A(valu[pos]); pos += 1
            for l in mm(n): A(l)
        while pos < len(valu):
            A(valu[pos]); pos += 1
    kb, kc = (160, 161, 162), (163, 164, 165)
    for l in combo(PB, kb, 0): A(l)
    weave(combo(PB, kb, 1), range(16, 24))
    weave(combo(PC, kc, 0), range(24, 32))
    ST = o.get('ost', '')
    sig = [f"    v_mul_f32 v{84+t}, s10, v{D0+t*4}" for t in range(4)]
    sig += [f"    v_exp_f32 v{84+t}, v{84+t}" for t in range(4)]
    sig += [f"    v_cvt_pk_bf16_f32 v88, v{D0}, v{D0+4}", f"    v_cvt_pk_bf16_f32 v89, v{D0+8}, v{D0+12}"]
    sig += [f"    v_add_f32 v{84+t}, 1.0, v{84+t}" for t in range(4)]
    weave(combo(PC, kc, 1), range(32, 36))
    for l in sig[:2]: A(l)
    rest = sig[2:]
    for i, n in enumerate(range(36, 40)):
        for l in mm(n): A(l)
        for l in rest[3*i:3*i+3]: A(l)
    A("    s_mov_b64 exec, s[40:41]")
    for t in range(4):
        A(f"    v_rcp_f32 v{84+t}, v{84+t}")
    A(f"    global_store_dwordx2 v6, v[88:89], s[8:9] {ST}")
    A("    s_nop 0")
    for i in range(1, 4):
        for t in range(4):
            A(f"    v_mul_f32 v{D1+t*4+i}, v{D1+t*4+i}, v{84+t}")
        A(f"""    v_cvt_pk_bf16_f32 v{88+2*i}, v{D1+i}, v{D1+4+i}
    v_cvt_pk_bf16_f32 v{89+2*i}, v{D1+8+i}, v{D1+12+i}
    global_store_dwordx2 v6, v[{88+2*i}:{89+2*i}], s[8:9] offset:{i*128} {ST}""")


def epilogue3(A, o, ACC):
    order = [(p, u, t) for p in (0, 2) for u in range(2) for t in range(4)]
    order += [(p, u, t) for (p, u) in ((1, 0), (3, 0), (1, 1), (3, 1), (4, 0), (4, 1)) for t in range(4)]
    fr = lambda put: put[0]*8 + put[1]*4 + put[2]
    def wread(n):
        r = 64 + (n % 8) * 4
        return f"    ds_read_b128 v[{r}:{r+3}], v1 offset:{L_W + fr(order[n])*1024}"
    acc = lambda h, j, r: ACC + (h*8 + j)*4 + r
    PA, PB, PC = 8, 16, 24
    D0, D1 = 32, 48
    T = lambda c, r, j: acc(c // 2, j + 4*(c % 2), r)
    dp = {1: 'quad_perm:[1,0,3,2]', 2: 'quad_perm:[2,3,0,1]', 3: 'quad_perm:[3,2,1,0]'}
    seen = set()
    def mm(n):
        p, u, t = order[n]
        P = {0: PA, 2: PA, 1: PB, 3: PB, 4: PC}[p] + u*4
        D = (D0 if p < 2 else D1) + t*4
        w = 64 + (n % 8) * 4
        c = f"v[{D}:{D+3}]" if D in seen else "0"
        seen.add(D)
        L = []
        if n % 4 == 0:
            L.append(f"    s_waitcnt lgkmcnt({min(4, len(order)-4-n)})")
        L.append(f"    v_mfma_f32_16x16x32_bf16 v[{D}:{D+3}], v[{P}:{P+3}], v[{w}:{w+3}], {c}")
        if n + 8 < len(order):
            L.append(wread(n + 8))
        return L
    A("    v_lshlrev_b32 v1, 4, v0")
    for n in range(8):
        A(wread(n))
    swaps = lambda h: [f"    v_permlane32_swap_b32 v{acc(h,j,r)}, v{acc(h,j+4,r)}" for j in range(4) for r in range(4)]
    salu = """    s_mul_i32 s10, s69, 625
    s_add_u32 s28, s10, 640
    s_add_u32 s10, s10, 15
    s_lshr_b32 s10, s10, 4                    ; first node of the bucket
    s_lshr_b32 s28, s28, 4                    ; first node of the next one
    s_mul_i32 s11, s3, 10
    s_add_u32 s29, s11, 12
    s_add_u32 s11, s11, 2
    s_mul_i32 s11, s11, 43691
    s_mul_i32 s29, s29, 43691
    s_lshr_b32 s11, s11, 17
    s_lshr_b32 s29, s29, 17
    s_add_u32 s29, s29, s10
    s_add_u32 s10, s10, s11                   ; first node of this wave
    s_min_u32 s28, s28, s29
    s_sub_u32 s28, s28, s10                   ; nodes of this wave""".split("\n")
    for a, b in zip(swaps(0), salu):
        A(a); A(b)
    for u in range(2):
        for q in range(4):
            r = 2*u + q // 2; j = (q % 2) * 2
            A(f"    v_cvt_pk_bf16_f32 v{PA+u*4+q}, v{T(0,r,j)}, v{T(0,r,j+1)}")
    def combo(P, k, u):
        L = []
        for q in range(4):
            r = 2*u + q // 2; j = (q % 2) * 2
            t0 = 2 + 2*(q % 2)
            for c in (1, 2, 3):
                for d in range(2):
                    op = 'v_mul_f32_dpp' if c == 1 else 'v_fmac_f32_dpp'
                    L.append(f"    {op} v{t0+d}, v{T(c,r,j+d)}, v{k[c-1]} {dp[c]} row_mask:0xf bank_mask:0xf")
            L.append(f"    v_cvt_pk_bf16_f32 v{P+u*4+q}, v{t0}, v{t0+1}")
        return L
    def weave(valu, ns):
        step = (len(valu) - 2) / len(ns)
        pos = 0
        for i, n in enumerate(ns):
            upto = 2 + int(i * step)
            while pos < upto:
                A(valu[pos]); pos += 1
            for l in mm(n): A(l)
        while pos < len(valu):
            A(valu[pos]); pos += 1
    kb, kc = (160, 161, 162), (163, 164, 165)
    weave(swaps(1) + combo(PB, kb, 0), range(0, 16))
    weave(combo(PB, kb, 1), range(16, 24))
    weave(combo(PC, kc, 0), range(24, 32))
    weave(combo(PC, kc, 1), range(32, 36))
    ST = o.get('ost', '')
    A("""    s_lshl_b32 s28, s28, 4
    s_lshl_b32 s10, s10, 9
    s_add_u32 s8, s8, s10
    s_addc_u32 s9, s9, 0
    s_mov_b32 s10, 0xbfb8aa3b                 ; -log2(e)""")
    G, O = 8, 12
    sig = [f"    v_mul_f32 v{G+t}, s10, v{D0+t*4}" for t in range(4)]
    sig += [f"    v_exp_f32 v{G+t}, v{G+t}" for t in range(4)]
    sig += ["    v_cmp_gt_u32 vcc, s28, v0", "    v_lshrrev_b32 v6, 4, v0", "    v_and_b32 v7, 15, v0"]
    sig += [f"    v_add_f32 v{G+t}, 1.0, v{G+t}" for t in range(4)]
    sig += ["    v_lshlrev_b32 v6, 9, v6"]
    for i, n in enumerate(range(36, 40)):
        for l in mm(n): A(l)
        for l in sig[4*i:4*i+4]: A(l)
    A("    v_lshl_add_u32 v6, v7, 3, v6")
    A("    s_mov_b64 exec, vcc")
    for t in range(4):
        A(f"    v_rcp_f32 v{G+t}, v{G+t}")
    A(f"""    v_cvt_pk_bf16_f32 v{O}, v{D0}, v{D0+4}
    v_cvt_pk_bf16_f32 v{O+1}, v{D0+8}, v{D0+12}
    global_store_dwordx2 v6, v[{O}:{O+1}], s[8:9] {ST}""")
    for i in range(1, 4):
        for t in range(4):
            A(f"    v_mul_f32 v{D1+t*4+i}, v{D1+t*4+i}, v{G+t}")
        A(f"""    v_cvt_pk_bf16_f32 v{O+2*i}, v{D1+i}, v{D1+4+i}
    v_cvt_pk_bf16_f32 v{O+1+2*i}, v{D1+8+i}, v{D1+12+i}
    global_store_dwordx2 v6, v[{O+2*i}:{O+1+2*i}], s[8:9] offset:{i*128} {ST}""")


def gen_body(A, o):
    NP = 7
    ACC = 96
    RA = lambda p: 32 + 4*p
    KA = lambda p: 60 + p
    BS = lambda p: 67 + p
    TA = lambda p: 74 + p
    TC = lambda p: 81 + p
    NB = o.get('nb', 3)
    PF = o.get('pf', 0)
    NPF = (PF * 4 + 384*64 - 1) // (384*64)
    PFC = ''
    if PF:
        per = (PF * 4 + 384*NPF - 1) // (384*NPF)
        PFC = f"""    s_lshr_b32 s10, s2, 3
    s_lshl_b32 s33, s3, 5
    s_add_u32 s10, s10, s33
    s_mul_i32 s10, s10, {per*128}
    v_lshlrev_b32 v20, 7, v0
"""
        if per < 64: PFC += f"    s_bfm_b64 exec, {per}, 0\n"
        for k in range(NPF):
            PFC += "    buffer_load_dword v21, v20, s[12:15], s10 offen\n"
            if k + 1 < NPF: PFC += f"    s_add_u32 s10, s10, {384*per*128}\n"
        if o.get('mall') == 5:
            per2 = ((10000 - PF) * 4 + 3071) // 3072
            PFC += f"""    s_mul_i32 s10, s2, 12
    s_add_u32 s10, s10, s3
    s_mul_i32 s10, s10, {per2*128}
    s_add_u32 s10, s10, {PF*512}
    s_bfm_b64 exec, {per2}, 0
    buffer_load_dword v21, v20, s[12:15], s10 offen
"""
            NPF += 1
        PFC += "    s_mov_b64 exec, -1"
    ROLLS = ''
    if o.get('roll'):
        ROLLS = f"""    s_mov_b32 s40, s4
    s_or_b32 s41, s5, 0x800000
    s_mov_b32 s42, 40000
    s_mov_b32 s43, 0x20000
    s_lshr_b32 s33, s2, 3
    s_lshl_b32 s34, s3, 5
    s_add_u32 s33, s33, s34
    s_mul_i32 s33, s33, {13*128}
    s_add_u32 s34, s33, {7*640000}
    s_add_u32 s33, s33, {o['roll']*640000}"""
    FULL = """    buffer_load_dwordx2 v[6:7], v45, s[16:19], 0 offen sc1
    s_sub_u32 s10, s10, 1
    s_cbranch_scc1 L_end
    s_waitcnt vmcnt(0)
    v_xor_b32 v2, s71, v6
    v_xor_b32 v7, s70, v7
    v_lshrrev_b32 v6, 24, v2
    v_or_b32 v6, v6, v7
    v_cmp_ne_u32 vcc, 0, v6
"""
    ONE = """L_poll0:
    buffer_load_dwordx2 v[6:7], v45, s[16:19], 0 offen sc1
    s_sub_u32 s10, s10, 1
    s_cbranch_scc1 L_end
    s_waitcnt vmcnt(0)
    v_cmp_ne_u32 vcc, s70, v7
    s_cbranch_vccnz L_poll0
"""
    pm = o.get('poll0', 0)
    if pm in (0, 1):
        POLL = ''
        if pm == 1:
            POLL = """    s_sub_u32 s59, s59, 1
    s_bfm_b64 exec, 1, s59                    ; first wait for the wave's last producer alone
""" + ONE
        POLL += "    s_mov_b64 exec, s[60:61]\nL_poll:\n" + FULL + """    s_and_b64 exec, exec, vcc
    s_cbranch_scc1 L_poll
    s_mov_b64 exec, -1"""
    else:
        POLL = ''
        if pm == 3:
            POLL = "    s_branch L_poll1\n"
        POLL += "L_poll:\n    s_mov_b64 exec, s[60:61]\n" + FULL + """    s_and_b64 s[60:61], exec, vcc
    s_cbranch_scc0 L_polled
L_poll1:
    s_flbit_i32_b64 s59, s[60:61]
    s_sub_u32 s59, 63, s59
    s_bfm_b64 exec, 1, s59
""" + ONE + """    s_branch L_poll
L_polled:
    s_mov_b64 exec, -1"""
    if o.get('mall') in (6, 7):
        assert pm == 1
        lo = o.get('mlo', 0)
        per2 = ((10000 - lo) * 4 + 3071) // 3072
        T6 = f"""    s_mul_i32 s11, s2, 12
    s_add_u32 s11, s11, s3
    s_mul_i32 s11, s11, {per2*128}
    s_add_u32 s11, s11, {lo*512}
    v_lshlrev_b32 v20, 7, v0
    s_mov_b64 s[36:37], exec
    s_bfm_b64 exec, {per2}, 0
    buffer_load_dword v21, v20, s[12:15], s11 offen
    s_mov_b64 exec, s[36:37]
"""
        T6 = T6.replace("    v_lshlrev_b32 v20, 7, v0\n    s_mov_b64 s[36:37], exec\n    s_bfm_b64 exec, %d, 0\n" % per2,
                        "    s_mov_b64 s[36:37], exec\n    s_bfm_b64 exec, %d, 0\n    v_lshlrev_b32 v20, 7, v0\n" % per2)
        LD = "    buffer_load_dwordx2 v[6:7], v45, s[16:19], 0 offen sc1\n"
        if o['mall'] == 6:
            first = LD + T6 + "    s_waitcnt vmcnt(1)\n    v_cmp_ne_u32 vcc, s70, v7\n    s_cbranch_vccz L_poll0d\n"
            POLL = POLL.replace("L_poll0:\n", first + "L_poll0:\n").replace("    s_mov_b64 exec, s[60:61]\n", "L_poll0d:\n    s_mov_b64 exec, s[60:61]\n")
        else:
            first = LD + "    s_mov_b32 s72, 0\n    s_waitcnt vmcnt(0)\n    v_cmp_ne_u32 vcc, s70, v7\n    s_cbranch_vccz L_poll0d\n    s_mov_b32 s72, 1\n" + T6
            POLL = POLL.replace("L_poll0:\n", first + "L_poll0:\n").replace("    s_mov_b64 exec, s[60:61]\n", "L_poll0d:\n    s_mov_b64 exec, s[60:61]\n")
            PFC = PFC + "\n    s_cmp_eq_u32 s72, 1\n    s_cbranch_scc1 L_t7\n" + T6 + "    s_mov_b32 s72, 1\nL_t7:"
    POLL = POLL.replace('offen sc1', 'offen ' + o.get('pfl', 'sc1'))
    if pm in (4, 5):
        AT = """    v_mov_b32 v6, 0
    v_mov_b32 v7, 0
    buffer_atomic_add_x2 v[6:7], v45, s[16:19], 0 offen sc0 sc1
"""
        LD = "    buffer_load_dwordx2 v[6:7], v45, s[16:19], 0 offen sc1\n"
        POLL = """    s_sub_u32 s59, s59, 1
    s_bfm_b64 exec, 1, s59                    ; first wait for the wave's last producer alone
""" + ONE.replace(LD, AT) + "    s_mov_b64 exec, s[60:61]\n"
        if pm == 4:
            POLL += "L_poll:\n" + FULL + """    s_and_b64 exec, exec, vcc
    s_cbranch_scc1 L_poll
    s_mov_b64 exec, -1"""
        else:
            POLL += FULL + """    s_and_b64 exec, exec, vcc
    s_cbranch_scc0 L_polled
L_poll:
""" + FULL.replace(LD, AT) + """    s_and_b64 exec, exec, vcc
    s_cbranch_scc1 L_poll
L_polled:
    s_mov_b64 exec, -1"""

    INMAP = "    s_mov_b32 s53, s2"
    if o.get('inmap'):
        INMAP = """    s_and_b32 s53, s2, 7
    s_lshl_b32 s53, s53, 5
    s_lshr_b32 s54, s2, 3
    s_add_u32 s53, s53, s54"""
    PRE = ''
    if o.get('pre'):
        PRE = f"""    s_lshl_b32 s57, s2, 11
    s_add_u32 s57, s57, {WS_INB}
    s_add_u32 s50, s6, s57
    s_addc_u32 s51, s7, 0
"""
        if o['pre'] == 1:
            PRE += """    global_store_dwordx4 v47, v[4:7], s[50:51] sc1
    global_store_dwordx4 v47, v[4:7], s[50:51] offset:1024 sc1"""
        else:
            PRE += """    global_load_dwordx4 v[36:39], v47, s[50:51] sc1
    global_load_dwordx4 v[36:39], v47, s[50:51] offset:1024 sc1"""
    WDMA = f"""    s_lshl_b32 s33, s3, 12
    s_add_u32 m0, s33, {L_W}
    v_lshlrev_b32 v20, 4, v0
    buffer_load_dwordx4 v20, s[24:27], s33 offen sc1 lds
    buffer_load_dwordx4 v20, s[24:27], s33 offen offset:1024 sc1 lds
    buffer_load_dwordx4 v20, s[24:27], s33 offen offset:2048 sc1 lds
    buffer_load_dwordx4 v20, s[24:27], s33 offen offset:3072 sc1 lds"""

    def setup():
        A(f"""    s_mov_b32 s12, s4                         ; x descriptor
    s_mov_b32 s13, s5
    s_mov_b32 s14, 5120000
    s_mov_b32 s15, 0x20000
    s_and_b32 s68, s2, 7
    s_lshl_b32 s68, s68, 5
    s_lshr_b32 s69, s2, 3
    s_add_u32 s69, s69, s68
    s_lshl_b32 s68, s69, 3
    s_add_u32 s68, s68, {WS_INB}
    s_add_u32 s16, s6, s68
    s_addc_u32 s17, s7, 0
    s_mov_b32 s18, {NCH*2048}
    s_mov_b32 s19, 0x20000
    s_mov_b32 s20, s6
    s_mov_b32 s21, s7
    s_mov_b32 s22, {NCH*RECB}
    s_mov_b32 s23, 0x20000
    s_add_u32 s24, s6, {WS_W}
    s_addc_u32 s25, s7, 0
    s_mov_b32 s26, 40960
    s_mov_b32 s27, 0x20000""")

    def consts():
        for i in range(64):
            A(f"    v_mov_b32 v{ACC+i}, 0")
        A("""    v_and_b32 v166, 3, v0
    v_cmp_eq_u32 s[58:59], 0, v166
    v_cmp_eq_u32 s[60:61], 1, v166
    v_cmp_eq_u32 s[62:63], 2, v166
    v_cmp_eq_u32 s[64:65], 3, v166
    v_bfrev_b32 v166, 4                       ; 0x20000000
    v_cndmask_b32 v163, 0, 1.0, s[62:63]
    v_cndmask_b32 v164, 0, 1.0, s[64:65]
    v_cndmask_b32 v165, 0, 1.0, s[60:61]
    v_cndmask_b32 v160, v165, 1.0, s[58:59]   ; b1
    v_cndmask_b32 v161, v163, 1.0, s[58:59]   ; b2
    v_cndmask_b32 v162, v164, 1.0, s[58:59]   ; b3
    v_cndmask_b32 v163, v163, -1.0, s[64:65]  ; c1
    v_cndmask_b32 v164, v164, -1.0, s[60:61]  ; c2
    v_cndmask_b32 v165, v165, -1.0, s[62:63]  ; c3""")

    A(f"""
.globl {NAME}
.p2align 8
.type {NAME},@function
{NAME}:
    s_cmp_ge_u32 s2, {NCH}
    s_cbranch_scc1 L_end
;TS start
    s_load_dwordx4 s[40:43], s[0:1], 8
    s_load_dwordx4 s[44:47], s[0:1], 24
    s_load_dwordx2 s[6:7], s[0:1], 88         ; ws
    s_load_dwordx2 s[4:5], s[0:1], 0          ; x
    s_load_dwordx2 s[8:9], s[0:1], 72         ; out
    v_lshrrev_b32 v1, 6, v0
    v_lshlrev_b32 v2, 3, v0
    v_readfirstlane_b32 s3, v1                ; wave
    v_mul_u32_u24 v3, 24, v0
    v_lshlrev_b32 v1, 4, v0
    v_cmp_gt_u32 vcc, {CH//4}, v0
    s_mov_b32 s73, 0
    s_cmp_ge_u32 s3, 10
    s_cbranch_scc1 L_help
{INMAP}
    s_mul_i32 s54, s53, {CH*4}
    s_mul_i32 s55, s53, {CH*2}
    s_mul_i32 s56, s53, {CH*6}
    s_mul_i32 s57, s2, {RECB}
    s_mov_b64 exec, vcc
    s_waitcnt lgkmcnt(0)
    s_add_u32 s46, s46, s54
    s_addc_u32 s47, s47, 0
    global_load_dwordx4 v[4:7], v1, s[46:47] {o.get('ifl', '')}  ; dst
    s_add_u32 s44, s44, s54
    s_addc_u32 s45, s45, 0
    global_load_dwordx4 v[8:11], v1, s[44:45] {o.get('ifl', '')} ; src
    s_add_u32 s42, s42, s55
    s_addc_u32 s43, s43, 0
    global_load_dwordx2 v[12:13], v2, s[42:43] {o.get('ifl', '')} ; e_attr
    s_add_u32 s40, s40, s56
    s_addc_u32 s41, s41, 0
    global_load_dwordx4 v[14:17], v3, s[40:41] {o.get('ifl', '')} ; rhat
    global_load_dwordx2 v[18:19], v3, s[40:41] offset:16 {o.get('ifl', '')}
    s_add_u32 s48, s6, s57
    s_addc_u32 s49, s7, 0
    s_mov_b32 s54, 214749
    s_mov_b32 s55, 6711
    s_mov_b32 s56, 0xffff0000
    s_movk_i32 s57, {L_ST}
    s_movk_i32 s58, 625
    v_mov_b32 v46, 1
    s_barrier                                 ; B1
    s_waitcnt vmcnt(4)
;TS dst""")
    for i in range(4):
        A(f"""    v_mul_u32_u24 v{20+i}, s54, v{4+i}
    v_lshrrev_b32 v{20+i}, 23, v{20+i}          ; bucket
    v_mad_u32_u24 v{48+i}, v{20+i}, s58, 15
    v_lshlrev_b32 v{20+i}, 2, v{20+i}
    ds_add_rtn_u32 v{24+i}, v{20+i}, v46 offset:{L_C1}""")
    for i in range(4):
        A(f"""    v_lshrrev_b32 v{48+i}, 4, v{48+i}
    v_sub_u32 v{4+i}, v{4+i}, v{48+i}
    v_lshlrev_b32 v{4+i}, 2, v{4+i}""")
    A("""    s_waitcnt lgkmcnt(0)
    s_barrier                                 ; B2
;TS hist1""")
    for i in range(4):
        A(f"    ds_read_b32 v{4+i}, v{4+i} offset:{L_LUT}")
    A("    s_waitcnt vmcnt(3)")
    for i in range(4):
        k = 30 + 4*i
        A(f"""    v_mul_u32_u24 v48, s55, v{8+i}
    v_lshrrev_b32 v48, 21, v48
    v_and_b32 v48, 28, v48
    v_lshl_or_b32 v{k}, v{8+i}, 9, v48""")
    A("    s_waitcnt lgkmcnt(0)")
    for i in range(4):
        A(f"    v_or_b32 v{30+4*i}, v{30+4*i}, v{4+i}")
    A("    s_barrier")
    for i in range(4):
        A(f"    ds_read_b32 v{64+i}, v{20+i} offset:{L_B1}")
    for i in range(4):
        A(f"""    s_waitcnt lgkmcnt(3)
    v_add_u32 v{64+i}, v{64+i}, v{24+i}
    v_mad_u32_u24 v{64+i}, v{64+i}, 12, s57
    ds_write_b32 v{64+i}, v{30+4*i} offset:8""")
    A("    s_waitcnt vmcnt(2)")
    for i in range(4):
        src = 12 + i // 2
        A(f"    v_lshlrev_b32 v{68+i}, 16, v{src}" if i % 2 == 0 else f"    v_and_b32 v{68+i}, s56, v{src}")
    for i in range(4):
        if i == 0:
            A("    s_waitcnt vmcnt(1)")
        if i == 2:
            A("    s_waitcnt vmcnt(0)\n;TS loads")
        for j in range(3*i, 3*i+3):
            src = 14 + j // 2
            A(f"    v_lshlrev_b32 v{72+j}, 16, v{src}" if j % 2 == 0 else f"    v_and_b32 v{72+j}, s56, v{src}")
            A(f"    v_mul_f32 v{72+j}, v{68+i}, v{72+j}")
        r = 28 + 4*i
        A(f"""    v_cvt_pk_bf16_f32 v{r}, v{68+i}, v{72+3*i}
    v_cvt_pk_bf16_f32 v{r+1}, v{73+3*i}, v{74+3*i}
    ds_write2_b32 v{64+i}, v{r}, v{r+1} offset0:0 offset1:1""")
    A(f"""    s_waitcnt lgkmcnt(0)
    s_barrier                                 ; B3
;TS staged
    s_mov_b64 exec, -1
    ds_read_b128 v[28:31], v1 offset:{L_ST}
    ds_read_b128 v[32:35], v1 offset:{L_ST+10240}
    ds_read_b128 v[36:39], v1 offset:{L_ST+20480}
    v_add_u32 v2, 10240, v1
    v_add_u32 v3, 20480, v1
    v_and_b32 v0, 63, v0
    s_waitcnt lgkmcnt(2)
    global_store_dwordx4 v1, v[28:31], s[48:49] {o.get('rfl', 'sc1')}
    s_waitcnt lgkmcnt(1)
    global_store_dwordx4 v2, v[32:35], s[48:49] {o.get('rfl', 'sc1')}
    s_waitcnt lgkmcnt(0)
    global_store_dwordx4 v3, v[36:39], s[48:49] {o.get('rfl', 'sc1')}
L_common:
    v_mov_b32 v44, {L_NONCE}""")
    setup()
    consts()
    A(f"""
    s_mul_i32 s58, s3, {SEGW}
    s_sub_u32 s59, {NCH}, s58
    s_min_u32 s59, s59, {SEGW}
    s_bfm_b64 s[60:61], s59, 0
    v_add_u32 v45, s58, v0
    s_mov_b32 s10, {RECB}
    v_mul_lo_u32 v46, v45, s10
    v_lshlrev_b32 v45, 11, v45
    v_lshrrev_b32 v4, 4, v0
    v_lshlrev_b32 v167, 3, v4
    v_lshlrev_b32 v4, 2, v4
    v_and_b32 v5, 15, v0
    v_lshlrev_b32 v1, 4, v5
    v_add_u32 v5, 1, v5
    v_mov_b32 v2, 0
    s_cmp_eq_u32 s73, 0
    s_cbranch_scc1 L_drain
    s_mov_b32 s10, {SPIN}
    s_branch L_hchk
L_hpoll:
    global_load_dword v41, v40, s[66:67] sc1
    s_sub_u32 s10, s10, 1
    s_cbranch_scc1 L_end
L_hchk:
    s_waitcnt vmcnt(0)
    v_cmp_eq_u32 vcc, 0, v41
    s_cbranch_vccnz L_hpoll
    ds_write_b32 v44, v41
    v_and_b32 v42, 0xff000000, v41
    v_xor_b32 v42, 0xa5000000, v42
    v_lshl_or_b32 v48, v50, 12, v48
    v_lshl_or_b32 v50, v51, 12, v49
    v_lshl_or_b32 v52, v54, 12, v52
    v_lshl_or_b32 v54, v55, 12, v53
    v_or_b32 v48, v42, v48
    v_or_b32 v50, v42, v50
    v_or_b32 v52, v42, v52
    v_or_b32 v54, v42, v54
    v_mov_b32 v49, v41
    v_mov_b32 v51, v41
    v_mov_b32 v53, v41
    v_mov_b32 v55, v41
    s_waitcnt lgkmcnt(0)
    s_barrier                                 ; B4
    global_store_dwordx4 v62, v[48:51], s[50:51] {o.get('tfl', 'sc1')}
    global_store_dwordx4 v62, v[52:55], s[50:51] offset:1024 {o.get('tfl', 'sc1')}
    s_branch L_nopub
L_drain:
    s_waitcnt vmcnt(0)
    s_barrier                                 ; B4
L_nopub:
    ds_read_b32 v44, v44
    s_waitcnt lgkmcnt(0)
    v_readfirstlane_b32 s70, v44
    s_and_b32 s71, s70, 0xff000000
    s_xor_b32 s71, s71, 0xa5000000
;TS drained
    s_mov_b32 s10, {SPIN}
{POLL}
;TS polled
    v_and_b32 v3, 0xfff, v2
    v_lshrrev_b32 v2, 12, v2
    v_mad_u32_u24 v3, v3, 12, v46
L_round:
    v_mad_u32_u24 v31, v5, 12, -12
    v_cmp_lt_u32 vcc, 16, v2""")
    for p in range(NP - 1):
        A(f"""    ds_bpermute_b32 v{TA(p)}, v4, v3 offset:{16*p}
    ds_bpermute_b32 v{TC(p)}, v4, v2 offset:{16*p}""")
    A("    s_mov_b64 s[36:37], vcc")
    def pick4():
        for q in range(4):
            A(f"""    s_ff1_i32_b64 s11, s[36:37]
    s_bitset0_b64 s[36:37], s11
    s_lshl_b32 s11, s11, 2
    s_and_b32 s11, s11, 0xfc""")
            A("    s_mov_b32 s10, s11" if q == 0 else f"    s_lshl_b32 s11, s11, {8*q}\n    s_or_b32 s10, s10, s11")
    pick4()
    A("""    v_bfe_u32 v6, s10, v167, 8
    s_cmp_lg_u64 s[36:37], 0
    s_cselect_b32 s32, 1, 0
    s_cbranch_scc0 L_no8""")
    pick4()
    A(f"""    v_bfe_u32 v13, s10, v167, 8
    s_brev_b32 s11, 1
    ds_bpermute_b32 v14, v13, v3
    ds_bpermute_b32 v15, v13, v2
    s_waitcnt lgkmcnt(0)
    v_add_u32 v15, -16, v15
    v_sub_u32 v15, v15, v5
    v_add_u32 v14, v14, v31
    v_and_or_b32 v14, v15, s11, v14
    buffer_load_dwordx3 v[8:10], v14, s[20:23], 0 offen offset:192 sc1
L_no8:
    s_xor_b64 s[36:37], s[36:37], vcc
    s_brev_b32 s11, 1
    ds_bpermute_b32 v{TA(6)}, v6, v3
    ds_bpermute_b32 v{TC(6)}, v6, v2""")
    for p in range(NP):
        off = ' offset:192' if p == NP - 1 else ''
        A(f"    s_waitcnt lgkmcnt({2*(NP-1-p)})")
        if p == NP - 1:
            A(f"    v_add_u32 v{TC(p)}, -16, v{TC(p)}")
        A(f"""    v_sub_u32 v{TC(p)}, v{TC(p)}, v5
    v_add_u32 v{TA(p)}, v{TA(p)}, v31
    v_and_or_b32 v{TA(p)}, v{TC(p)}, s11, v{TA(p)}
    buffer_load_dwordx3 v[{RA(p)}:{RA(p)+2}], v{TA(p)}, s[20:23], 0 offen{off} sc1""")
    WP = o.get('wpos', 0)
    if WP == 0:
        A(WDMA)
    A(f"""    v_cndmask_b32 v6, 16, 32, s[36:37]
    v_sub_u32 v2, v2, v6
    v_mad_u32_u24 v3, v6, 12, v3
    v_max_i32 v2, 0, v2
    v_mov_b32 v7, {L_FLAG}
    v_cmp_lt_u32 vcc, 0, v2
    v_mov_b32 v6, 4
    s_and_saveexec_b64 s[36:37], vcc
    ds_write_b32 v7, v6
    s_mov_b64 exec, -1
    s_mov_b32 s11, 0x200001fc
    v_and_b32 v90, 15, v0
    v_lshrrev_b32 v28, 4, v0
    v_lshlrev_b32 v28, 5, v28
    v_and_b32 v29, 12, v0
    v_add_u32 v29, v28, v29
    s_mov_b32 s10, {L_COEF | 0x20000000}
    v_lshl_add_u32 v30, v29, 1, s10
    v_lshl_or_b32 v30, v0, 30, v30
    v_lshlrev_b32 v90, 5, v90
""")
    for p in range(NP):
        A(f"""    s_waitcnt vmcnt({NP-1-p + (4 if WP == 0 else 0)})
    v_bitop3_b32 v{KA(p)}, v{RA(p)+2}, s11, v166 bitop3:0x6a
    ds_add_rtn_u32 v{RA(p)+3}, v{KA(p)}, v6""")
    A(f"""    s_cmp_eq_u32 s32, 0
    s_cbranch_scc1 L_no8a
    v_bitop3_b32 v12, v10, s11, v166 bitop3:0x6a
    ds_add_rtn_u32 v11, v12, v6
L_no8a:
{WDMA if WP == 2 else ''}
;TS recs
    s_waitcnt lgkmcnt(0)
    s_barrier                                 ; B5
;TS hist2
    ds_read_b128 v[76:79], v90
    ds_read_b128 v[80:83], v90 offset:16
    ds_read_b32 v75, v7
{WDMA if WP == 3 else ''}
{PFC}
    s_mov_b32 s10, {L_COEF}
    s_waitcnt lgkmcnt(2)
    v_add_u32 v84, -4, v76                    ; running prefix minus the counter's own offset
    v_add3_u32 v85, v84, v77, -4
    v_add3_u32 v86, v85, v78, -4
    v_add3_u32 v87, v86, v79, -4
    s_waitcnt lgkmcnt(1)
    v_add3_u32 v88, v87, v80, -4
    v_add3_u32 v89, v88, v81, -4
    v_add3_u32 v92, v89, v82, -4
    v_add3_u32 v93, v92, v83, 28
    v_add_u32 v94, 0x7f, v93
    v_and_b32 v94, 0xffffff80, v94
    v_mov_b32 v95, v94
    v_lshlrev_b32 v74, 2, v0
    s_waitcnt lgkmcnt(0)
    v_add_u32_dpp v95, v95, v95 row_shr:1 row_mask:0xf bank_mask:0xf
    v_readlane_b32 s29, v93, s3
    v_readlane_b32 s30, v94, s3
    v_add_u32_dpp v95, v95, v95 row_shr:2 row_mask:0xf bank_mask:0xf
    v_readfirstlane_b32 s35, v75
    v_add_u32 v74, s29, v74
    v_add_u32_dpp v95, v95, v95 row_shr:4 row_mask:0xf bank_mask:0xf
    v_cmp_gt_u32 vcc, s30, v74
    v_mov_b32 v75, 0x800000
    v_add_u32_dpp v95, v95, v95 row_shr:8 row_mask:0xf bank_mask:0xf
    v_sub_u32 v95, v95, v94
    v_sub_u32 v76, v95, v90
    v_readlane_b32 s28, v95, s3
    v_add_u32 v77, v76, v84
    v_add_u32 v78, v76, v85
    v_add_u32 v79, v76, v86
    v_add_u32 v80, v76, v87
    v_add_u32 v81, v76, v88
    v_add_u32 v82, v76, v89
    v_add_u32 v83, v76, v92
    v_add_u32 v74, s28, v74
    s_mov_b64 exec, 0xfff
    ds_write_b128 v90, v[76:79] offset:{L_BASE}
    ds_write_b128 v90, v[80:83] offset:{L_BASE+16}
    s_mov_b64 exec, vcc
    ds_write_b32 v74, v75 offset:{L_KEY}
    s_mov_b64 exec, -1
    s_waitcnt lgkmcnt(0)
;TS scan2""")
    for p in range(NP):
        A(f"    ds_read_b32 v{BS(p)}, v{KA(p)} offset:{L_BASE}")
    A(f"""    s_sub_u32 s34, s30, s29
    s_lshr_b32 s34, s34, 6
    s_lshr_b32 s30, s30, 7
    s_cmp_lt_u32 s30, 2
    s_cselect_b32 s34, 0, s34
    s_add_u32 s29, s28, {L_KEY}
    s_lshl_b32 s28, s28, 1
    v_add_u32 v6, s29, v28
    v_add_u32 v7, s29, v29
    v_add_u32 v30, s28, v30""")
    for p in range(NP):
        A(f"""    s_waitcnt lgkmcnt({NP-1-p + 2*p})
    v_add3_u32 v{BS(p)}, v{BS(p)}, v{RA(p)+3}, v{KA(p)}
    v_lshl_add_u32 v{KA(p)}, v{BS(p)}, 1, s10
    ds_write_b32 v{BS(p)}, v{RA(p)+2} offset:{L_KEY}
    ds_write_b64 v{KA(p)}, v[{RA(p)}:{RA(p)+1}]""")
    A(f"""    s_cmp_eq_u32 s32, 0
    s_cbranch_scc1 L_no8b
    ds_read_b32 v13, v12 offset:{L_BASE}
    s_waitcnt lgkmcnt(0)
    v_add3_u32 v13, v13, v11, v12
    v_lshl_add_u32 v12, v13, 1, s10
    ds_write_b32 v13, v10 offset:{L_KEY}
    ds_write_b64 v12, v[8:9]
L_no8b:
    s_mov_b32 s31, {NB}
    s_mov_b32 s28, 0x00fffe00
    s_mov_b32 s29, 0xe0000000
    s_mov_b32 s38, 0x05040100
    s_mov_b32 s39, 0x07060302
    s_mov_b32 s37, 0
{ROLLS}
    s_waitcnt vmcnt({NPF}) lgkmcnt(0)
    s_barrier                                 ; B6
;TS sorted
;CLK 0
    s_cmp_lg_u32 s30, 0
    s_cbranch_scc0 L_done
""")
    PR = o.get('prio', 1)
    if PR == 1:
        A("""    s_cmp_lt_u32 s3, 4
    s_cbranch_scc1 L_p0
    s_setprio 1
    s_cmp_lt_u32 s3, 8
    s_cbranch_scc1 L_p0
    s_setprio 2
L_p0:""")
    if PR == 2:
        A("""    s_mul_i32 s10, s3, 43
    s_lshr_b32 s10, s10, 7
    s_mul_i32 s10, s10, 3
    s_cmp_lg_u32 s10, s3
    s_cbranch_scc1 L_p0
    s_setprio 1
L_p0:""")

    def read_keys():
        A(f"""    ds_read_b128 v[8:11], v6
    ds_read_b128 v[12:15], v6 offset:16
    ds_read2_b32 v[28:29], v7 offset0:0 offset1:4
    v_add_u32 v6, 128, v6
    v_add_u32 v7, 128, v7""")
    def mk_addr():
        for e in range(8):
            A(f"    v_and_or_b32 v{8+e}, v{8+e}, s28, v1")
        A("""    v_bitop3_b32 v28, v28, s29, v30 bitop3:0x6a
    v_bitop3_b32 v29, v29, s29, v30 bitop3:0x6a
    v_add_u32 v30, 256, v30""")
    def issue(h, ne=8):
        for e in range(ne):
            r = 32 + h*32 + e*4
            A(f"    buffer_load_dwordx4 v[{r}:{r+3}], v{8+e}, s[12:15], 0 offen offset:{h*256}")
    ROLL = o.get('roll', 0)
    def roll():
        if ROLL:
            A(f"""    s_min_u32 s33, s33, s34
    s_mov_b64 exec, 0x3fff
    buffer_load_dword v31, v0, s[40:43], s33 idxen
    s_mov_b64 exec, -1
    s_add_u32 s33, s33, 640000""")
    def read_b():
        A("""    ds_read_b64_tr_b16 v[16:17], v28
    ds_read_b64_tr_b16 v[18:19], v29 offset:32""")
    def half(h, nq=4):
        D = 32 + h*32
        def perms(j):
            t = 20 + (j % 2) * 4
            sel = 's38' if j % 2 == 0 else 's39'
            for q in range(nq):
                A(f"    v_perm_b32 v{t+q}, v{D + (2*q+1)*4 + j//2}, v{D + 2*q*4 + j//2}, {sel}")
        def mfma(j):
            t = 20 + (j % 2) * 4
            a = ACC + (h*8 + j) * 4
            if nq == 4:
                A(f"    v_mfma_f32_16x16x32_bf16 v[{a}:{a+3}], v[{t}:{t+3}], v[16:19], v[{a}:{a+3}]")
            else:
                A(f"    v_mfma_f32_16x16x16_bf16 v[{a}:{a+3}], v[{t}:{t+1}], v[16:17], v[{a}:{a+3}]")
        perms(0)
        for j in range(8):
            if j + 1 < 8:
                perms(j + 1)
            else:
                A("    s_nop 1")
            mfma(j)

    read_keys()
    A("    s_waitcnt lgkmcnt(0)")
    mk_addr()
    issue(0); issue(1)
    roll()
    read_b()
    read_keys()
    SHORT = o.get('short', 0)
    EA = o.get('ea', 0)
    if SHORT:
        A("    s_sub_u32 s30, s30, s34")
    A("""    s_sub_u32 s30, s30, 1
    s_cmp_eq_u32 s30, 0
    s_cbranch_scc1 L_tail
L_loop:
;STEP
    s_waitcnt lgkmcnt(0)
;STEPW""")
    mk_addr()
    A(f"    s_waitcnt vmcnt({8 + (1 if ROLL else 0)})")
    half(0)
    issue(0)
    A("""    s_cmp_eq_u32 s31, 0
    s_cbranch_scc1 L_nobar
    s_sub_u32 s31, s31, 1
    s_barrier
L_nobar:""")
    A(f"    s_waitcnt vmcnt({8 + (1 if ROLL else 0)})")
    half(1)
    issue(1)
    roll()
    read_b()
    read_keys()
    A("""    s_sub_u32 s30, s30, 1
    s_cmp_lg_u32 s30, 0
    s_cbranch_scc1 L_loop
L_tail:""")
    if SHORT:
        assert not ROLL
        A("""    s_cmp_eq_u32 s34, 0
    s_cbranch_scc1 L_last
;STEP
    v_and_b32 v20, 48, v0
    v_add_u32 v21, 128, v20
    v_sub_u32 v6, v6, v21
    v_sub_u32 v7, v7, v21
    v_lshlrev_b32 v20, 1, v20
    v_sub_u32 v30, v30, v20
    s_waitcnt lgkmcnt(0)
;STEPW
    ds_read_b128 v[8:11], v6
    ds_read_b32 v28, v7
    s_waitcnt vmcnt(8)""")
        half(0)
        A("    s_waitcnt lgkmcnt(0)")
        for e in range(4):
            A(f"    v_and_or_b32 v{8+e}, v{8+e}, s28, v1")
        A("    v_bitop3_b32 v28, v28, s29, v30 bitop3:0x6a")
        issue(0, 4)
        A("""    s_cmp_eq_u32 s31, 0
    s_cbranch_scc1 L_nobar2
    s_sub_u32 s31, s31, 1
    s_barrier
L_nobar2:
    s_waitcnt vmcnt(4)""")
        half(1)
        issue(1, 4)
        A("""    ds_read_b64_tr_b16 v[16:17], v28
;STEP
    s_waitcnt vmcnt(4) lgkmcnt(0)
;STEPW""")
        half(0, 2)
        if EA:
            A("""    s_mov_b32 s36, 1
    s_cmp_eq_u32 s35, 0
    s_cbranch_scc1 L_epiA
L_shortB:""")
        A("    s_waitcnt vmcnt(0)")
        half(1, 2)
        A("    s_branch L_done")
    A("""L_last:
;STEP""")
    A(f"    s_waitcnt vmcnt({8 + (1 if ROLL else 0)}) lgkmcnt(0)\n;STEPW")
    half(0)
    if EA:
        A("""    s_mov_b32 s36, 0
    s_cmp_eq_u32 s35, 0
    s_cbranch_scc1 L_epiA
L_lastB:""")
    A("    s_waitcnt vmcnt(0)")
    half(1)
    A(f"""L_done:
    s_cmp_eq_u32 s31, 0
    s_cbranch_scc1 L_paid
    s_sub_u32 s31, s31, 1
    s_barrier
    s_branch L_done
L_paid:
    s_waitcnt vmcnt(0)
    s_setprio {o.get('eprio', 0)}
    s_cmp_eq_u32 s35, 0
    s_cbranch_scc1 L_epi
    s_barrier
    v_mov_b32 v6, 0
    v_lshlrev_b32 v7, 2, v0
    ds_write_b32 v7, v6
    ds_write_b32 v7, v6 offset:256
    ds_write_b32 v7, v6 offset:264
    s_waitcnt lgkmcnt(0)
    s_barrier
    s_branch L_round
L_epi:
;TS main
;CLK 1""")
    if o.get('epi') == 3:
        epilogue3(A, o, ACC)
    elif EA:
        epilogue2(A, o, ACC)
    else:
        epilogue1(A, o, ACC)
    A("""L_fin:
;TSOUT
L_end:
    s_endpgm""")

    A(f"""L_help:
    v_and_b32 v0, 63, v0
    s_cmp_eq_u32 s3, 11
    s_cbranch_scc1 L_h11
    v_mov_b32 v4, 0
    v_mov_b32 v5, 0
    v_mov_b32 v6, 0
    v_mov_b32 v7, 0
    v_lshlrev_b32 v47, 4, v0
    ds_write_b128 v47, v[4:7]
    ds_write_b128 v47, v[4:7] offset:{L_C1}
    v_mul_u32_u24 v8, 1229, v0
    v_lshrrev_b32 v8, 12, v8
    v_mul_u32_u24 v9, 10, v8
    v_add_u32 v9, 2, v9
    v_mul_u32_u24 v9, 43691, v9
    v_lshrrev_b32 v9, 17, v9
    v_sub_u32 v9, v0, v9
    v_lshlrev_b32 v8, 5, v8
    v_lshl_or_b32 v8, v9, 30, v8
    v_or_b32 v8, 0x20000000, v8
    v_lshlrev_b32 v9, 2, v0
    ds_write_b32 v9, v8 offset:{L_LUT}
    s_waitcnt lgkmcnt(0)
    s_barrier                                 ; B1
{PRE}
{XSRD + TOUCH.replace('v47', 'v40') if o.get('mall') == 4 else ''}
    s_barrier                                 ; B2
    ds_read_b128 v[48:51], v47 offset:{L_C1}
    s_waitcnt lgkmcnt(0)
    v_add_u32 v52, v48, v49
    v_add_u32 v53, v52, v50
    v_add_u32 v54, v53, v51
    v_mov_b32 v55, v54
    s_nop 1
    v_add_u32_dpp v55, v55, v55 row_shr:1 row_mask:0xf bank_mask:0xf
    s_nop 1
    v_add_u32_dpp v55, v55, v55 row_shr:2 row_mask:0xf bank_mask:0xf
    s_nop 1
    v_add_u32_dpp v55, v55, v55 row_shr:4 row_mask:0xf bank_mask:0xf
    s_nop 1
    v_add_u32_dpp v55, v55, v55 row_shr:8 row_mask:0xf bank_mask:0xf
    s_nop 1
    v_add_u32_dpp v55, v55, v55 row_bcast:15 row_mask:0xa bank_mask:0xf
    s_nop 1
    v_add_u32_dpp v55, v55, v55 row_bcast:31 row_mask:0xc bank_mask:0xf
    v_sub_u32 v56, v55, v54
    v_add_u32 v57, v56, v48
    v_add_u32 v58, v56, v52
    v_add_u32 v59, v56, v53
    ds_write_b128 v47, v[56:59] offset:{L_B1}
    s_waitcnt lgkmcnt(0)
    s_barrier                                 ; B2b
    s_barrier                                 ; B3
;TSX staged
    s_branch L_common
L_h11:
    s_mov_b32 s73, 1
    s_load_dwordx4 s[60:63], s[0:1], 40
    s_load_dwordx2 s[64:65], s[0:1], 56       ; w_si1
    s_load_dwordx2 s[66:67], s[0:1], 80
    v_mov_b32 v40, 0
    s_barrier                                 ; B1
    s_waitcnt lgkmcnt(0)""")
    A(f"""    s_cmp_lg_u32 s2, 0
    s_cbranch_scc1 L_h1
    s_memrealtime s[48:49]
    s_waitcnt lgkmcnt(0)
    s_or_b32 s48, s48, 1
    v_mov_b32 v41, s48
    global_store_dword v40, v41, s[66:67] sc1
L_h1:""")
    A(f"""    s_mov_b32 s52, 0
    s_mul_i32 s53, s2, 2979
    s_lshr_b32 s53, s53, 16                   ; w = id / 22
    s_mul_i32 s54, s53, 22
    s_sub_u32 s54, s2, s54
    s_sub_u32 s54, s54, 1
    s_cmp_ge_u32 s54, 4
    s_cbranch_scc1 L_h2
    s_lshl_b32 s53, s53, 2
    s_add_u32 s53, s53, s54
    s_cmp_ge_u32 s53, 40
    s_cbranch_scc1 L_h2
    s_lshr_b32 s55, s53, 3                    ; fragment f = p*8 + u*4 + t
    s_bfe_u32 s56, s53, 0x10002
    s_and_b32 s57, s53, 3
    v_lshrrev_b32 v1, 4, v0
    v_and_b32 v2, 1, v1
    v_lshlrev_b32 v2, 5, v2
    v_lshrrev_b32 v1, 1, v1
    v_lshl_add_u32 v2, v1, 2, v2
    s_lshl_b32 s56, s56, 4
    v_add_u32 v2, s56, v2                     ; ch0 = 32*(g&1) + 4*(g>>1) + 16*u
    v_and_b32 v3, 15, v0
    v_lshlrev_b32 v3, 2, v3
    v_add_u32 v3, s57, v3                     ; c_out = 4n + t
    s_lshl_b32 s58, s55, 6
    v_add_u32 v4, s58, v2
    v_lshlrev_b32 v4, 1, v4
    s_cmp_lt_u32 s55, 2
    s_cselect_b32 s59, 0, 128
    s_cselect_b32 s62, s62, s64
    s_cselect_b32 s63, s63, s65
    s_sub_u32 s58, s58, s59
    v_add_u32 v5, s58, v2
    v_lshlrev_b32 v5, 7, v5
    v_lshl_add_u32 v5, v3, 1, v5
    s_lshl_b32 s54, s53, 10
    s_add_u32 s54, s54, {WS_W}
    v_lshlrev_b32 v6, 4, v0
    s_add_u32 s50, s6, s54
    s_addc_u32 s51, s7, 0
    global_load_dwordx2 v[8:9], v4, s[60:61]
    global_load_dwordx2 v[10:11], v4, s[60:61] offset:16""")
    for e in range(8):
        row = (e // 4) * 8 + e % 4
        A(f"    global_load_ushort v{12+e}, v5, s[62:63] offset:{row*128}")
    A(f"""    s_mov_b32 s52, 1
L_h2:
    s_mov_b32 s56, 0xffff0000
    s_barrier                                 ; B2
    global_load_dword v41, v40, s[66:67] sc1
    s_barrier                                 ; B2b
    v_lshlrev_b32 v62, 3, v0
    ds_read_b64 v[48:49], v62 offset:{L_B1}
    ds_read_b64 v[50:51], v62 offset:{L_C1}
    ds_read_b64 v[52:53], v62 offset:{L_B1+512}
    ds_read_b64 v[54:55], v62 offset:{L_C1+512}
    v_lshlrev_b32 v62, 1, v62
    s_waitcnt lgkmcnt(0)
    s_barrier                                 ; B3
;TSX staged
    s_cmp_eq_u32 s52, 0
    s_cbranch_scc1 L_h3
    s_waitcnt vmcnt(1)""")
    for e in range(8):
        src = 8 + e // 2
        A(f"    v_lshlrev_b32 v{20+e}, 16, v{src}" if e % 2 == 0 else f"    v_and_b32 v{20+e}, s56, v{src}")
        A(f"    v_lshlrev_b32 v{12+e}, 16, v{12+e}")
        A(f"    v_mul_f32 v{12+e}, v{12+e}, v{20+e}")
    for q in range(4):
        A(f"    v_cvt_pk_bf16_f32 v{28+q}, v{12+2*q}, v{13+2*q}")
    A(f"""    global_store_dwordx4 v6, v[28:31], s[50:51] sc1
L_h3:
    s_lshl_b32 s57, s2, 11
    s_add_u32 s57, s57, {WS_INB}
    s_add_u32 s50, s6, s57
    s_addc_u32 s51, s7, 0
    s_branch L_common""")


TOUCH = f"""    v_lshlrev_b32 v43, 7, v0
    s_mul_i32 s10, s2, 20000
    s_and_b32 s11, s3, 1
    s_mul_i32 s11, s11, 11904
    s_add_u32 s10, s10, s11
    buffer_load_dword v47, v43, s[12:15], s10 offen
    s_add_u32 s10, s10, 4096
    buffer_load_dword v47, v43, s[12:15], s10 offen"""


XSRD = """    s_mov_b32 s12, s4
    s_mov_b32 s13, s5
    s_mov_b32 s14, 5120000
    s_mov_b32 s15, 0x20000
"""


def gen(o):
    global TOUCH
    if o.get('mall') in (2, 4):
        TOUCH = f"""    v_lshlrev_b32 v43, 7, v0
    s_mul_i32 s10, s2, 20000
    buffer_load_dword v47, v43, s[12:15], s10 offen
    s_add_u32 s10, s10, 8192
    buffer_load_dword v47, v43, s[12:15], s10 offen
    s_add_u32 s10, s10, 3712
    buffer_load_dword v47, v43, s[12:15], s10 offen"""
    else:
        TOUCH = f"""    v_lshlrev_b32 v43, 7, v0
    s_mul_i32 s10, s2, 20000
    s_and_b32 s11, s3, 1
    s_mul_i32 s11, s11, 10000
    s_add_u32 s10, s10, s11
    buffer_load_dword v47, v43, s[12:15], s10 offen
    s_add_u32 s10, s10, 1920
    buffer_load_dword v47, v43, s[12:15], s10 offen"""
    A = Asm()
    A(HDR.rstrip('\n'))
    A(f"; @launch grid=({NCH},1,1) block=({NW*64},1,1) lds={L_END}")
    A('.amdgcn_target "amdgcn-amd-amdhsa--gfx950"\n.text')
    gen_body(A, o)
    ts = o.get('ts') or []
    A(f""".section .rodata,"a"
.p2align 6
.amdhsa_kernel {NAME}
  .amdhsa_next_free_vgpr 168
  .amdhsa_next_free_sgpr {102 if ts else 74}
  .amdhsa_accum_offset 168
  .amdhsa_group_segment_fixed_size 0
  .amdhsa_kernarg_size 96
  .amdhsa_user_sgpr_count 2
  .amdhsa_user_sgpr_kernarg_segment_ptr 1
  .amdhsa_system_sgpr_workgroup_id_x 1
.end_amdhsa_kernel""")
    out = Asm()
    names = []
    for line in A.L:
        if line.startswith(';TS '):
            nm = line.split()[1]
            if (ts == 1 or nm in ts) and len(names) < 11:
                k = len(names)
                out(f"    s_memrealtime s[{74+2*k}:{75+2*k}]")
                names.append(nm)
        elif line.startswith(';TSX'):
            if ts:
                for nm in ('dst', 'hist1', 'loads', 'staged'):
                    if nm in names:
                        k = names.index(nm)
                        out(f"    s_memrealtime s[{74+2*k}:{75+2*k}]")
        elif line.startswith(';STEPW'):
            if o.get('steps'):
                out("    v_writelane_b32 v31, s96, m0\n    s_add_u32 m0, m0, 1")
        elif line.startswith(';STEP'):
            if o.get('steps'):
                out("    s_memrealtime s[96:97]")
        elif line.startswith(';CLK'):
            if o.get('steps') and line.endswith('0'):
                out("    s_mov_b32 m0, 0\n    v_mov_b32 v31, 0")
            if o.get('steps') and line.endswith('1'):
                out(f"""    s_mul_i32 s72, s2, {NW}
    s_add_u32 s72, s72, s3
    s_lshl_b32 s72, s72, 6
    s_add_u32 s72, s72, {WS_TS + 0x100000}
    s_add_u32 s96, s6, s72
    s_addc_u32 s97, s7, 0
    v_lshlrev_b32 v30, 2, v0
    s_mov_b64 exec, 0xffff
    global_store_dword v30, v31, s[96:97]
    s_mov_b64 exec, -1""")
            if ts:
                k = int(line.split()[1])
                out(f"    s_memtime s[{98+2*k}:{99+2*k}]")
        elif line.startswith(';TSOUT'):
            if ts:
                n = len(names)
                out(f"""    s_waitcnt vmcnt(0)
    s_memrealtime s[{74+2*n}:{75+2*n}]
    s_waitcnt lgkmcnt(0)
    s_mul_i32 s72, s2, {NW}
    s_add_u32 s72, s72, s3
    s_lshl_b32 s72, s72, 6
    s_add_u32 s72, s72, {WS_TS}
    s_add_u32 s6, s6, s72
    s_addc_u32 s7, s7, 0
    s_mov_b64 exec, 1
    v_mov_b32 v0, 0
    s_sub_u32 s98, s100, s98
    v_mov_b32 v1, s98
    global_store_dword v0, v1, s[6:7] offset:60""")
                for k in range(n + 1):
                    out(f"""    v_mov_b32 v1, s{74+2*k}
    global_store_dword v0, v1, s[6:7] offset:{4*k}""")
                names.append('end')
        elif line.strip():
            out.L.append(line)
    global TSNAMES
    TSNAMES = names
    return out.text()


if __name__ == '__main__':
    o = eval(sys.argv[2]) if len(sys.argv) > 2 else {}
    open(sys.argv[1], 'w').write(gen(o))
```

```python
import sys

NAME = 'gather_scatter__tensor_product_equiv_equiformer__graph_kernel'
HDR = """; gather_scatter tensor product (equiformer) -- one launch, 256 co-resident workgroups of 12 waves
"""

NCH = 256
NW = 12
CH = 2500
RECB = 30720
SEGW = 22
WS_INB = 0x800000
WS_W = 0x900000
WS_NONCE = 0x910000
WS_TS = 0x1000000
SPIN = 30000

L_FLAG = 512
L_NONCE = 520
L_BASE = 576
L_LUT = 1088
L_W = 2048
L_C1 = 2048
L_B1 = 3072
L_ST = 4096
L_KEY = L_W + 49152
CAP = 6016
L_COEF = L_KEY + CAP * 4
L_END = L_COEF + CAP * 8


class Asm:
    def __init__(self):
        self.L = []
    def __call__(self, s):
        for line in s.strip('\n').split('\n'):
            self.L.append(line)
    def text(self):
        return '\n'.join(self.L) + '\n'


def epilogue1(A, o, ACC):
    WB = 64
    A("    v_lshlrev_b32 v1, 4, v0")
    order = [(p, u, t) for p in (0, 2) for u in range(2) for t in range(4)]
    order += [(p, 0, t) for p in (1, 3, 4) for t in range(4)] + [(p, 1, t) for p in (1, 3, 4) for t in range(4)]
    fr = lambda put: put[0]*8 + put[1]*4 + put[2]
    def wread_i(n):
        f = fr(order[n]); r = WB + (n % 8) * 4
        A(f"    ds_read_b128 v[{r}:{r+3}], v1 offset:{L_W + f*1024}")
    for n in range(8):
        wread_i(n)
    acc = lambda h, j, r: ACC + (h*8 + j)*4 + r
    PA, PB, PC = 8, 16, 24
    D0, D1 = 32, 48
    T = lambda c, r, j: acc(c // 2, j + 4*(c % 2), r)
    dp = {1: 'quad_perm:[1,0,3,2]', 2: 'quad_perm:[2,3,0,1]', 3: 'quad_perm:[3,2,1,0]'}
    A("    s_nop 2")
    for j in range(4):
        for r in range(4):
            A(f"    v_permlane32_swap_b32 v{acc(0,j,r)}, v{acc(0,j+4,r)}")
    for u in range(2):
        for q in range(4):
            r = 2*u + q // 2; j = (q % 2) * 2
            A(f"    v_cvt_pk_bf16_f32 v{PA+u*4+q}, v{T(0,r,j)}, v{T(0,r,j+1)}")
    valu = []
    for r in range(4):
        for j in range(4):
            valu.append(f"    v_permlane32_swap_b32 v{acc(1,j,r)}, v{acc(1,j+4,r)}")
    marks = {}
    for u in range(2):
        for q in range(4):
            r = 2*u + q // 2; j = (q % 2) * 2
            for (dst, k) in ((2, (160, 161, 162)), (4, (163, 164, 165))):
                for c in (1, 2, 3):
                    for d in range(2):
                        op = 'v_mul_f32_dpp' if c == 1 else 'v_fmac_f32_dpp'
                        valu.append(f"    {op} v{dst+d}, v{T(c,r,j+d)}, v{k[c-1]} {dp[c]} row_mask:0xf bank_mask:0xf")
            valu.append(f"    v_cvt_pk_bf16_f32 v{PB+u*4+q}, v2, v3")
            valu.append(f"    v_cvt_pk_bf16_f32 v{PC+u*4+q}, v4, v5")
        marks[u] = len(valu)
    seen = set()
    pos = 0
    def emit_valu(upto):
        nonlocal pos
        while pos < min(upto, len(valu)):
            A(valu[pos]); pos += 1
    for n, (p, u, t) in enumerate(order):
        if n < 16:
            emit_valu((n + 1) * marks[0] // 16)
        elif n < 28:
            emit_valu(marks[0] + (2 if n == 16 else 0) + (n - 15) * (marks[1] - marks[0]) // 12)
        elif n == 28:
            A("    s_nop 1")
        P = {0: PA, 2: PA, 1: PB, 3: PB, 4: PC}[p] + u*4
        D = (D0 if p < 2 else D1) + t*4
        w = WB + (n % 8) * 4
        c = f"v[{D}:{D+3}]" if D in seen else "0"
        seen.add(D)
        A(f"    s_waitcnt lgkmcnt({min(7, len(order)-1-n)})")
        A(f"    v_mfma_f32_16x16x32_bf16 v[{D}:{D+3}], v[{P}:{P+3}], v[{w}:{w+3}], {c}")
        if n + 8 < len(order):
            wread_i(n + 8)
        if n == 31:
            A(f"""    s_mul_i32 s10, s69, 625
    s_add_u32 s28, s10, 640
    s_add_u32 s10, s10, 15
    s_lshr_b32 s10, s10, 4
    s_lshr_b32 s28, s28, 4
    s_mul_i32 s11, s3, 10
    s_add_u32 s29, s11, 12
    s_add_u32 s11, s11, 2
    s_mul_i32 s11, s11, 43691
    s_mul_i32 s29, s29, 43691
    s_lshr_b32 s11, s11, 17
    s_lshr_b32 s29, s29, 17
    s_add_u32 s29, s29, s10
    s_add_u32 s10, s10, s11
    s_min_u32 s28, s28, s29
    s_sub_u32 s28, s28, s10
    s_lshl_b32 s28, s28, 4
    s_lshl_b32 s10, s10, 9
    s_add_u32 s8, s8, s10
    s_addc_u32 s9, s9, 0""")
    assert pos == len(valu)
    ST = o.get('ost', '')
    A(f"""    v_lshrrev_b32 v2, 4, v0
    v_and_b32 v3, 15, v0
    v_lshlrev_b32 v2, 9, v2
    v_lshl_add_u32 v2, v3, 3, v2
    v_cmp_gt_u32 vcc, s28, v0
    s_mov_b32 s10, 0xbfb8aa3b                 ; -log2(e)""")
    for t in range(4):
        A(f"    v_mul_f32 v{8+t}, s10, v{D0+t*4}")
    for t in range(4):
        A(f"    v_exp_f32 v{8+t}, v{8+t}")
    A(f"""    s_and_b64 exec, exec, vcc
    s_cbranch_execz L_fin
    v_cvt_pk_bf16_f32 v12, v{D0}, v{D0+4}
    v_cvt_pk_bf16_f32 v13, v{D0+8}, v{D0+12}""")
    for t in range(4):
        A(f"    v_add_f32 v{8+t}, 1.0, v{8+t}")
    A(f"    global_store_dwordx2 v2, v[12:13], s[8:9] {ST}")
    for t in range(4):
        A(f"    v_rcp_f32 v{8+t}, v{8+t}")
    A("    s_nop 0")
    for i in range(1, 4):
        for t in range(4):
            A(f"    v_mul_f32 v{D1+t*4+i}, v{D1+t*4+i}, v{8+t}")
        A(f"""    v_cvt_pk_bf16_f32 v{12+2*i}, v{D1+i}, v{D1+4+i}
    v_cvt_pk_bf16_f32 v{13+2*i}, v{D1+8+i}, v{D1+12+i}
    global_store_dwordx2 v2, v[{12+2*i}:{13+2*i}], s[8:9] offset:{i*128} {ST}""")

def epilogue2(A, o, ACC):
    order = [(p, u, t) for p in (0, 2) for u in range(2) for t in range(4)]
    order += [(p, u, t) for (p, u) in ((1, 0), (3, 0), (1, 1), (3, 1), (4, 0), (4, 1)) for t in range(4)]
    ring = [2, 8, 12, 28, 104, 108]
    fr = lambda put: put[0]*8 + put[1]*4 + put[2]
    def wread(n):
        r = ring[n % 6]
        return f"    ds_read_b128 v[{r}:{r+3}], v1 offset:{L_W + fr(order[n])*1024}"
    acc = lambda h, j, r: ACC + (h*8 + j)*4 + r
    PA, PB, PC = 96, 64, 72
    D0, D1 = 32, 48
    T = lambda c, r, j: acc(c // 2, j + 4*(c % 2), r)
    dp = {1: 'quad_perm:[1,0,3,2]', 2: 'quad_perm:[2,3,0,1]', 3: 'quad_perm:[3,2,1,0]'}
    seen = set()
    def mm(n, wait=True):
        p, u, t = order[n]
        P = {0: PA, 2: PA, 1: PB, 3: PB, 4: PC}[p] + u*4
        D = (D0 if p < 2 else D1) + t*4
        w = ring[n % 6]
        c = f"v[{D}:{D+3}]" if D in seen else "0"
        seen.add(D)
        L = []
        if wait:
            L.append(f"    s_waitcnt lgkmcnt({min(5, len(order)-1-n)})")
        L.append(f"    v_mfma_f32_16x16x32_bf16 v[{D}:{D+3}], v[{P}:{P+3}], v[{w}:{w+3}], {c}")
        if n + 6 < len(order):
            L.append(wread(n + 6))
        return L
    A("""    s_cmp_lg_u32 s37, 0
    s_cbranch_scc1 L_epiB
    s_mov_b32 s36, 2
L_epiA:
    s_mov_b32 s37, 1
    v_lshlrev_b32 v1, 4, v0""")
    for n in range(4):
        A(wread(n))
    A("""    s_mul_i32 s10, s69, 625
    s_add_u32 s28, s10, 640
    s_add_u32 s10, s10, 15
    s_lshr_b32 s10, s10, 4
    s_lshr_b32 s28, s28, 4
    s_mul_i32 s11, s3, 10
    s_add_u32 s29, s11, 12
    s_add_u32 s11, s11, 2
    s_mul_i32 s11, s11, 43691
    s_mul_i32 s29, s29, 43691
    s_lshr_b32 s11, s11, 17
    s_lshr_b32 s29, s29, 17
    s_add_u32 s29, s29, s10
    s_add_u32 s10, s10, s11
    s_min_u32 s28, s28, s29
    s_sub_u32 s28, s28, s10
    s_lshl_b32 s28, s28, 4
    s_lshl_b32 s10, s10, 9
    s_add_u32 s8, s8, s10
    s_addc_u32 s9, s9, 0
    v_cmp_gt_u32 s[40:41], s28, v0
    v_lshrrev_b32 v6, 4, v0
    v_and_b32 v7, 15, v0
    v_lshlrev_b32 v6, 9, v6
    v_lshl_add_u32 v6, v7, 3, v6
    s_mov_b32 s10, 0xbfb8aa3b                 ; -log2(e)""")
    for j in range(4):
        for r in range(4):
            A(f"    v_permlane32_swap_b32 v{acc(0,j,r)}, v{acc(0,j+4,r)}")
    for (u, q) in ((0, 0), (1, 0), (0, 2), (1, 2), (0, 1), (0, 3), (1, 1), (1, 3)):
        r = 2*u + q // 2; j = (q % 2) * 2
        A(f"    v_cvt_pk_bf16_f32 v{PA+u*4+q}, v{T(0,r,j)}, v{T(0,r,j+1)}")
    A(wread(4)); A(wread(5))
    for n in range(16):
        for l in mm(n): A(l)
    A("""    s_cmp_eq_u32 s36, 0
    s_cbranch_scc1 L_lastB""")
    if o.get('short'):
        A("""    s_cmp_eq_u32 s36, 1
    s_cbranch_scc1 L_shortB""")
    A("L_epiB:")
    for j in range(4):
        for r in range(4):
            A(f"    v_permlane32_swap_b32 v{acc(1,j,r)}, v{acc(1,j+4,r)}")
    def combo(P, k, u):
        L = []
        for q in range(4):
            r = 2*u + q // 2; j = (q % 2) * 2
            t0 = 80 + 2*(q % 2)
            for c in (1, 2, 3):
                for d in range(2):
                    op = 'v_mul_f32_dpp' if c == 1 else 'v_fmac_f32_dpp'
                    L.append(f"    {op} v{t0+d}, v{T(c,r,j+d)}, v{k[c-1]} {dp[c]} row_mask:0xf bank_mask:0xf")
            L.append(f"    v_cvt_pk_bf16_f32 v{P+u*4+q}, v{t0}, v{t0+1}")
        return L
    def weave(valu, ns):
        step = (len(valu) - 2) / len(ns)
        pos = 0
        for i, n in enumerate(ns):
            upto = 2 + int(i * step)
            while pos < upto:
                A(valu[pos]); pos += 1
            for l in mm(n): A(l)
        while pos < len(valu):
            A(valu[pos]); pos += 1
    kb, kc = (160, 161, 162), (163, 164, 165)
    for l in combo(PB, kb, 0): A(l)
    weave(combo(PB, kb, 1), range(16, 24))
    weave(combo(PC, kc, 0), range(24, 32))
    ST = o.get('ost', '')
    sig = [f"    v_mul_f32 v{84+t}, s10, v{D0+t*4}" for t in range(4)]
    sig += [f"    v_exp_f32 v{84+t}, v{84+t}" for t in range(4)]
    sig += [f"    v_cvt_pk_bf16_f32 v88, v{D0}, v{D0+4}", f"    v_cvt_pk_bf16_f32 v89, v{D0+8}, v{D0+12}"]
    sig += [f"    v_add_f32 v{84+t}, 1.0, v{84+t}" for t in range(4)]
    weave(combo(PC, kc, 1), range(32, 36))
    for l in sig[:2]: A(l)
    rest = sig[2:]
    for i, n in enumerate(range(36, 40)):
        for l in mm(n): A(l)
        for l in rest[3*i:3*i+3]: A(l)
    A("    s_mov_b64 exec, s[40:41]")
    for t in range(4):
        A(f"    v_rcp_f32 v{84+t}, v{84+t}")
    A(f"    global_store_dwordx2 v6, v[88:89], s[8:9] {ST}")
    A("    s_nop 0")
    for i in range(1, 4):
        for t in range(4):
            A(f"    v_mul_f32 v{D1+t*4+i}, v{D1+t*4+i}, v{84+t}")
        A(f"""    v_cvt_pk_bf16_f32 v{88+2*i}, v{D1+i}, v{D1+4+i}
    v_cvt_pk_bf16_f32 v{89+2*i}, v{D1+8+i}, v{D1+12+i}
    global_store_dwordx2 v6, v[{88+2*i}:{89+2*i}], s[8:9] offset:{i*128} {ST}""")


def epilogue3(A, o, ACC):
    order = [(p, u, t) for p in (0, 2) for u in range(2) for t in range(4)]
    order += [(p, u, t) for (p, u) in ((1, 0), (3, 0), (1, 1), (3, 1), (4, 0), (4, 1)) for t in range(4)]
    fr = lambda put: put[0]*8 + put[1]*4 + put[2]
    def wread(n):
        r = 64 + (n % 8) * 4
        return f"    ds_read_b128 v[{r}:{r+3}], v1 offset:{L_W + fr(order[n])*1024}"
    acc = lambda h, j, r: ACC + (h*8 + j)*4 + r
    PA, PB, PC = 8, 16, 24
    D0, D1 = 32, 48
    T = lambda c, r, j: acc(c // 2, j + 4*(c % 2), r)
    dp = {1: 'quad_perm:[1,0,3,2]', 2: 'quad_perm:[2,3,0,1]', 3: 'quad_perm:[3,2,1,0]'}
    seen = set()
    def mm(n):
        p, u, t = order[n]
        P = {0: PA, 2: PA, 1: PB, 3: PB, 4: PC}[p] + u*4
        D = (D0 if p < 2 else D1) + t*4
        w = 64 + (n % 8) * 4
        c = f"v[{D}:{D+3}]" if D in seen else "0"
        seen.add(D)
        L = []
        if n % 4 == 0:
            L.append(f"    s_waitcnt lgkmcnt({min(4, len(order)-4-n)})")
        L.append(f"    v_mfma_f32_16x16x32_bf16 v[{D}:{D+3}], v[{P}:{P+3}], v[{w}:{w+3}], {c}")
        if n + 8 < len(order):
            L.append(wread(n + 8))
        return L
    A("    v_lshlrev_b32 v1, 4, v0")
    for n in range(8):
        A(wread(n))
    swaps = lambda h: [f"    v_permlane32_swap_b32 v{acc(h,j,r)}, v{acc(h,j+4,r)}" for j in range(4) for r in range(4)]
    salu = """    s_mul_i32 s10, s69, 625
    s_add_u32 s28, s10, 640
    s_add_u32 s10, s10, 15
    s_lshr_b32 s10, s10, 4                    ; first node of the bucket
    s_lshr_b32 s28, s28, 4                    ; first node of the next one
    s_mul_i32 s11, s3, 10
    s_add_u32 s29, s11, 12
    s_add_u32 s11, s11, 2
    s_mul_i32 s11, s11, 43691
    s_mul_i32 s29, s29, 43691
    s_lshr_b32 s11, s11, 17
    s_lshr_b32 s29, s29, 17
    s_add_u32 s29, s29, s10
    s_add_u32 s10, s10, s11                   ; first node of this wave
    s_min_u32 s28, s28, s29
    s_sub_u32 s28, s28, s10                   ; nodes of this wave""".split("\n")
    for a, b in zip(swaps(0), salu):
        A(a); A(b)
    for u in range(2):
        for q in range(4):
            r = 2*u + q // 2; j = (q % 2) * 2
            A(f"    v_cvt_pk_bf16_f32 v{PA+u*4+q}, v{T(0,r,j)}, v{T(0,r,j+1)}")
    def combo(P, k, u):
        L = []
        for q in range(4):
            r = 2*u + q // 2; j = (q % 2) * 2
            t0 = 2 + 2*(q % 2)
            for c in (1, 2, 3):
                for d in range(2):
                    op = 'v_mul_f32_dpp' if c == 1 else 'v_fmac_f32_dpp'
                    L.append(f"    {op} v{t0+d}, v{T(c,r,j+d)}, v{k[c-1]} {dp[c]} row_mask:0xf bank_mask:0xf")
            L.append(f"    v_cvt_pk_bf16_f32 v{P+u*4+q}, v{t0}, v{t0+1}")
        return L
    def weave(valu, ns):
        step = (len(valu) - 2) / len(ns)
        pos = 0
        for i, n in enumerate(ns):
            upto = 2 + int(i * step)
            while pos < upto:
                A(valu[pos]); pos += 1
            for l in mm(n): A(l)
        while pos < len(valu):
            A(valu[pos]); pos += 1
    kb, kc = (160, 161, 162), (163, 164, 165)
    weave(swaps(1) + combo(PB, kb, 0), range(0, 16))
    weave(combo(PB, kb, 1), range(16, 24))
    weave(combo(PC, kc, 0), range(24, 32))
    weave(combo(PC, kc, 1), range(32, 36))
    ST = o.get('ost', '')
    A("""    s_lshl_b32 s28, s28, 4
    s_lshl_b32 s10, s10, 9
    s_add_u32 s8, s8, s10
    s_addc_u32 s9, s9, 0
    s_mov_b32 s10, 0xbfb8aa3b                 ; -log2(e)""")
    G, O = 8, 12
    sig = [f"    v_mul_f32 v{G+t}, s10, v{D0+t*4}" for t in range(4)]
    sig += [f"    v_exp_f32 v{G+t}, v{G+t}" for t in range(4)]
    sig += ["    v_cmp_gt_u32 vcc, s28, v0", "    v_lshrrev_b32 v6, 4, v0", "    v_and_b32 v7, 15, v0"]
    sig += [f"    v_add_f32 v{G+t}, 1.0, v{G+t}" for t in range(4)]
    sig += ["    v_lshlrev_b32 v6, 9, v6"]
    for i, n in enumerate(range(36, 40)):
        for l in mm(n): A(l)
        for l in sig[4*i:4*i+4]: A(l)
    A("    v_lshl_add_u32 v6, v7, 3, v6")
    A("    s_mov_b64 exec, vcc")
    for t in range(4):
        A(f"    v_rcp_f32 v{G+t}, v{G+t}")
    A(f"""    v_cvt_pk_bf16_f32 v{O}, v{D0}, v{D0+4}
    v_cvt_pk_bf16_f32 v{O+1}, v{D0+8}, v{D0+12}
    global_store_dwordx2 v6, v[{O}:{O+1}], s[8:9] {ST}""")
    for i in range(1, 4):
        for t in range(4):
            A(f"    v_mul_f32 v{D1+t*4+i}, v{D1+t*4+i}, v{G+t}")
        A(f"""    v_cvt_pk_bf16_f32 v{O+2*i}, v{D1+i}, v{D1+4+i}
    v_cvt_pk_bf16_f32 v{O+1+2*i}, v{D1+8+i}, v{D1+12+i}
    global_store_dwordx2 v6, v[{O+2*i}:{O+1+2*i}], s[8:9] offset:{i*128} {ST}""")


def gen_body(A, o):
    NP = 7
    ACC = 96
    RA = lambda p: 32 + 4*p
    KA = lambda p: 60 + p
    BS = lambda p: 67 + p
    TA = lambda p: 74 + p
    TC = lambda p: 81 + p
    NB = o.get('nb', 3)
    PF = o.get('pf', 0)
    NPF = (PF * 4 + 384*64 - 1) // (384*64)
    PFC = ''
    if PF:
        per = (PF * 4 + 384*NPF - 1) // (384*NPF)
        PFC = f"""    s_lshr_b32 s10, s2, 3
    s_lshl_b32 s33, s3, 5
    s_add_u32 s10, s10, s33
    s_mul_i32 s10, s10, {per*128}
    v_lshlrev_b32 v20, 7, v0
"""
        if per < 64: PFC += f"    s_bfm_b64 exec, {per}, 0\n"
        for k in range(NPF):
            PFC += "    buffer_load_dword v21, v20, s[12:15], s10 offen\n"
            if k + 1 < NPF: PFC += f"    s_add_u32 s10, s10, {384*per*128}\n"
        if o.get('mall') == 5:
            per2 = ((10000 - PF) * 4 + 3071) // 3072
            PFC += f"""    s_mul_i32 s10, s2, 12
    s_add_u32 s10, s10, s3
    s_mul_i32 s10, s10, {per2*128}
    s_add_u32 s10, s10, {PF*512}
    s_bfm_b64 exec, {per2}, 0
    buffer_load_dword v21, v20, s[12:15], s10 offen
"""
            NPF += 1
        PFC += "    s_mov_b64 exec, -1"
    ROLLS = ''
    if o.get('roll'):
        ROLLS = f"""    s_mov_b32 s40, s4
    s_or_b32 s41, s5, 0x800000
    s_mov_b32 s42, 40000
    s_mov_b32 s43, 0x20000
    s_lshr_b32 s33, s2, 3
    s_lshl_b32 s34, s3, 5
    s_add_u32 s33, s33, s34
    s_mul_i32 s33, s33, {13*128}
    s_add_u32 s34, s33, {7*640000}
    s_add_u32 s33, s33, {o['roll']*640000}"""
    FULL = """    buffer_load_dwordx2 v[6:7], v45, s[16:19], 0 offen sc1
    s_sub_u32 s10, s10, 1
    s_cbranch_scc1 L_end
    s_waitcnt vmcnt(0)
    v_xor_b32 v2, s71, v6
    v_xor_b32 v7, s70, v7
    v_lshrrev_b32 v6, 24, v2
    v_or_b32 v6, v6, v7
    v_cmp_ne_u32 vcc, 0, v6
"""
    ONE = """L_poll0:
    buffer_load_dwordx2 v[6:7], v45, s[16:19], 0 offen sc1
    s_sub_u32 s10, s10, 1
    s_cbranch_scc1 L_end
    s_waitcnt vmcnt(0)
    v_cmp_ne_u32 vcc, s70, v7
    s_cbranch_vccnz L_poll0
"""
    pm = o.get('poll0', 0)
    if pm in (0, 1):
        POLL = ''
        if pm == 1:
            POLL = """    s_sub_u32 s59, s59, 1
    s_bfm_b64 exec, 1, s59                    ; first wait for the wave's last producer alone
""" + ONE
        POLL += "    s_mov_b64 exec, s[60:61]\nL_poll:\n" + FULL + """    s_and_b64 exec, exec, vcc
    s_cbranch_scc1 L_poll
    s_mov_b64 exec, -1"""
    else:
        POLL = ''
        if pm == 3:
            POLL = "    s_branch L_poll1\n"
        POLL += "L_poll:\n    s_mov_b64 exec, s[60:61]\n" + FULL + """    s_and_b64 s[60:61], exec, vcc
    s_cbranch_scc0 L_polled
L_poll1:
    s_flbit_i32_b64 s59, s[60:61]
    s_sub_u32 s59, 63, s59
    s_bfm_b64 exec, 1, s59
""" + ONE + """    s_branch L_poll
L_polled:
    s_mov_b64 exec, -1"""
    if o.get('mall') in (6, 7):
        assert pm == 1
        lo = o.get('mlo', 0)
        per2 = ((10000 - lo) * 4 + 3071) // 3072
        T6 = f"""    s_mul_i32 s11, s2, 12
    s_add_u32 s11, s11, s3
    s_mul_i32 s11, s11, {per2*128}
    s_add_u32 s11, s11, {lo*512}
    v_lshlrev_b32 v20, 7, v0
    s_mov_b64 s[36:37], exec
    s_bfm_b64 exec, {per2}, 0
    buffer_load_dword v21, v20, s[12:15], s11 offen
    s_mov_b64 exec, s[36:37]
"""
        T6 = T6.replace("    v_lshlrev_b32 v20, 7, v0\n    s_mov_b64 s[36:37], exec\n    s_bfm_b64 exec, %d, 0\n" % per2,
                        "    s_mov_b64 s[36:37], exec\n    s_bfm_b64 exec, %d, 0\n    v_lshlrev_b32 v20, 7, v0\n" % per2)
        LD = "    buffer_load_dwordx2 v[6:7], v45, s[16:19], 0 offen sc1\n"
        if o['mall'] == 6:
            first = LD + T6 + "    s_waitcnt vmcnt(1)\n    v_cmp_ne_u32 vcc, s70, v7\n    s_cbranch_vccz L_poll0d\n"
            POLL = POLL.replace("L_poll0:\n", first + "L_poll0:\n").replace("    s_mov_b64 exec, s[60:61]\n", "L_poll0d:\n    s_mov_b64 exec, s[60:61]\n")
        else:
            first = LD + "    s_mov_b32 s72, 0\n    s_waitcnt vmcnt(0)\n    v_cmp_ne_u32 vcc, s70, v7\n    s_cbranch_vccz L_poll0d\n    s_mov_b32 s72, 1\n" + T6
            POLL = POLL.replace("L_poll0:\n", first + "L_poll0:\n").replace("    s_mov_b64 exec, s[60:61]\n", "L_poll0d:\n    s_mov_b64 exec, s[60:61]\n")
            PFC = PFC + "\n    s_cmp_eq_u32 s72, 1\n    s_cbranch_scc1 L_t7\n" + T6 + "    s_mov_b32 s72, 1\nL_t7:"
    POLL = POLL.replace('offen sc1', 'offen ' + o.get('pfl', 'sc1'))
    if pm in (4, 5):
        AT = """    v_mov_b32 v6, 0
    v_mov_b32 v7, 0
    buffer_atomic_add_x2 v[6:7], v45, s[16:19], 0 offen sc0 sc1
"""
        LD = "    buffer_load_dwordx2 v[6:7], v45, s[16:19], 0 offen sc1\n"
        POLL = """    s_sub_u32 s59, s59, 1
    s_bfm_b64 exec, 1, s59                    ; first wait for the wave's last producer alone
""" + ONE.replace(LD, AT) + "    s_mov_b64 exec, s[60:61]\n"
        if pm == 4:
            POLL += "L_poll:\n" + FULL + """    s_and_b64 exec, exec, vcc
    s_cbranch_scc1 L_poll
    s_mov_b64 exec, -1"""
        else:
            POLL += FULL + """    s_and_b64 exec, exec, vcc
    s_cbranch_scc0 L_polled
L_poll:
""" + FULL.replace(LD, AT) + """    s_and_b64 exec, exec, vcc
    s_cbranch_scc1 L_poll
L_polled:
    s_mov_b64 exec, -1"""

    INMAP = "    s_mov_b32 s53, s2"
    if o.get('inmap'):
        INMAP = """    s_and_b32 s53, s2, 7
    s_lshl_b32 s53, s53, 5
    s_lshr_b32 s54, s2, 3
    s_add_u32 s53, s53, s54"""
    PRE = ''
    if o.get('pre'):
        PRE = f"""    s_lshl_b32 s57, s2, 11
    s_add_u32 s57, s57, {WS_INB}
    s_add_u32 s50, s6, s57
    s_addc_u32 s51, s7, 0
"""
        if o['pre'] == 1:
            PRE += """    global_store_dwordx4 v47, v[4:7], s[50:51] sc1
    global_store_dwordx4 v47, v[4:7], s[50:51] offset:1024 sc1"""
        else:
            PRE += """    global_load_dwordx4 v[36:39], v47, s[50:51] sc1
    global_load_dwordx4 v[36:39], v47, s[50:51] offset:1024 sc1"""
    WDMA = f"""    s_lshl_b32 s33, s3, 12
    s_add_u32 m0, s33, {L_W}
    v_lshlrev_b32 v20, 4, v0
    buffer_load_dwordx4 v20, s[24:27], s33 offen sc1 lds
    buffer_load_dwordx4 v20, s[24:27], s33 offen offset:1024 sc1 lds
    buffer_load_dwordx4 v20, s[24:27], s33 offen offset:2048 sc1 lds
    buffer_load_dwordx4 v20, s[24:27], s33 offen offset:3072 sc1 lds"""

    def setup():
        A(f"""    s_mov_b32 s12, s4                         ; x descriptor
    s_mov_b32 s13, s5
    s_mov_b32 s14, 5120000
    s_mov_b32 s15, 0x20000
    s_and_b32 s68, s2, 7
    s_lshl_b32 s68, s68, 5
    s_lshr_b32 s69, s2, 3
    s_add_u32 s69, s69, s68
    s_lshl_b32 s68, s69, 3
    s_add_u32 s68, s68, {WS_INB}
    s_add_u32 s16, s6, s68
    s_addc_u32 s17, s7, 0
    s_mov_b32 s18, {NCH*2048}
    s_mov_b32 s19, 0x20000
    s_mov_b32 s20, s6
    s_mov_b32 s21, s7
    s_mov_b32 s22, {NCH*RECB}
    s_mov_b32 s23, 0x20000
    s_add_u32 s24, s6, {WS_W}
    s_addc_u32 s25, s7, 0
    s_mov_b32 s26, 40960
    s_mov_b32 s27, 0x20000""")

    def consts():
        for i in range(64):
            A(f"    v_mov_b32 v{ACC+i}, 0")
        A("""    v_and_b32 v166, 3, v0
    v_cmp_eq_u32 s[58:59], 0, v166
    v_cmp_eq_u32 s[60:61], 1, v166
    v_cmp_eq_u32 s[62:63], 2, v166
    v_cmp_eq_u32 s[64:65], 3, v166
    v_bfrev_b32 v166, 4                       ; 0x20000000
    v_cndmask_b32 v163, 0, 1.0, s[62:63]
    v_cndmask_b32 v164, 0, 1.0, s[64:65]
    v_cndmask_b32 v165, 0, 1.0, s[60:61]
    v_cndmask_b32 v160, v165, 1.0, s[58:59]   ; b1
    v_cndmask_b32 v161, v163, 1.0, s[58:59]   ; b2
    v_cndmask_b32 v162, v164, 1.0, s[58:59]   ; b3
    v_cndmask_b32 v163, v163, -1.0, s[64:65]  ; c1
    v_cndmask_b32 v164, v164, -1.0, s[60:61]  ; c2
    v_cndmask_b32 v165, v165, -1.0, s[62:63]  ; c3""")

    A(f"""
.globl {NAME}
.p2align 8
.type {NAME},@function
{NAME}:
    s_cmp_ge_u32 s2, {NCH}
    s_cbranch_scc1 L_end
;TS start
    s_load_dwordx4 s[40:43], s[0:1], 8
    s_load_dwordx4 s[44:47], s[0:1], 24
    s_load_dwordx2 s[6:7], s[0:1], 88         ; ws
    s_load_dwordx2 s[4:5], s[0:1], 0          ; x
    s_load_dwordx2 s[8:9], s[0:1], 72         ; out
    v_lshrrev_b32 v1, 6, v0
    v_lshlrev_b32 v2, 3, v0
    v_readfirstlane_b32 s3, v1                ; wave
    v_mul_u32_u24 v3, 24, v0
    v_lshlrev_b32 v1, 4, v0
    v_cmp_gt_u32 vcc, {CH//4}, v0
    s_mov_b32 s73, 0
    s_cmp_ge_u32 s3, 10
    s_cbranch_scc1 L_help
{INMAP}
    s_mul_i32 s54, s53, {CH*4}
    s_mul_i32 s55, s53, {CH*2}
    s_mul_i32 s56, s53, {CH*6}
    s_mul_i32 s57, s2, {RECB}
    s_mov_b64 exec, vcc
    s_waitcnt lgkmcnt(0)
    s_add_u32 s46, s46, s54
    s_addc_u32 s47, s47, 0
    global_load_dwordx4 v[4:7], v1, s[46:47] {o.get('ifl', '')}  ; dst
    s_add_u32 s44, s44, s54
    s_addc_u32 s45, s45, 0
    global_load_dwordx4 v[8:11], v1, s[44:45] {o.get('ifl', '')} ; src
    s_add_u32 s42, s42, s55
    s_addc_u32 s43, s43, 0
    global_load_dwordx2 v[12:13], v2, s[42:43] {o.get('ifl', '')} ; e_attr
    s_add_u32 s40, s40, s56
    s_addc_u32 s41, s41, 0
    global_load_dwordx4 v[14:17], v3, s[40:41] {o.get('ifl', '')} ; rhat
    global_load_dwordx2 v[18:19], v3, s[40:41] offset:16 {o.get('ifl', '')}
    s_add_u32 s48, s6, s57
    s_addc_u32 s49, s7, 0
    s_mov_b32 s54, 214749
    s_mov_b32 s55, 6711
    s_mov_b32 s56, 0xffff0000
    s_movk_i32 s57, {L_ST}
    s_movk_i32 s58, 625
    v_mov_b32 v46, 1
    s_barrier                                 ; B1
    s_waitcnt vmcnt(4)
;TS dst""")
    for i in range(4):
        A(f"""    v_mul_u32_u24 v{20+i}, s54, v{4+i}
    v_lshrrev_b32 v{20+i}, 23, v{20+i}          ; bucket
    v_mad_u32_u24 v{48+i}, v{20+i}, s58, 15
    v_lshlrev_b32 v{20+i}, 2, v{20+i}
    ds_add_rtn_u32 v{24+i}, v{20+i}, v46 offset:{L_C1}""")
    for i in range(4):
        A(f"""    v_lshrrev_b32 v{48+i}, 4, v{48+i}
    v_sub_u32 v{4+i}, v{4+i}, v{48+i}
    v_lshlrev_b32 v{4+i}, 2, v{4+i}""")
    A("""    s_waitcnt lgkmcnt(0)
    s_barrier                                 ; B2
;TS hist1""")
    for i in range(4):
        A(f"    ds_read_b32 v{4+i}, v{4+i} offset:{L_LUT}")
    A("    s_waitcnt vmcnt(3)")
    for i in range(4):
        k = 30 + 4*i
        A(f"""    v_mul_u32_u24 v48, s55, v{8+i}
    v_lshrrev_b32 v48, 21, v48
    v_and_b32 v48, 28, v48
    v_lshl_or_b32 v{k}, v{8+i}, 9, v48""")
    A("    s_waitcnt lgkmcnt(0)")
    for i in range(4):
        A(f"    v_or_b32 v{30+4*i}, v{30+4*i}, v{4+i}")
    A("    s_barrier")
    for i in range(4):
        A(f"    ds_read_b32 v{64+i}, v{20+i} offset:{L_B1}")
    for i in range(4):
        A(f"""    s_waitcnt lgkmcnt(3)
    v_add_u32 v{64+i}, v{64+i}, v{24+i}
    v_mad_u32_u24 v{64+i}, v{64+i}, 12, s57
    ds_write_b32 v{64+i}, v{30+4*i} offset:8""")
    A("    s_waitcnt vmcnt(2)")
    for i in range(4):
        src = 12 + i // 2
        A(f"    v_lshlrev_b32 v{68+i}, 16, v{src}" if i % 2 == 0 else f"    v_and_b32 v{68+i}, s56, v{src}")
    for i in range(4):
        if i == 0:
            A("    s_waitcnt vmcnt(1)")
        if i == 2:
            A("    s_waitcnt vmcnt(0)\n;TS loads")
        for j in range(3*i, 3*i+3):
            src = 14 + j // 2
            A(f"    v_lshlrev_b32 v{72+j}, 16, v{src}" if j % 2 == 0 else f"    v_and_b32 v{72+j}, s56, v{src}")
            A(f"    v_mul_f32 v{72+j}, v{68+i}, v{72+j}")
        r = 28 + 4*i
        A(f"""    v_cvt_pk_bf16_f32 v{r}, v{68+i}, v{72+3*i}
    v_cvt_pk_bf16_f32 v{r+1}, v{73+3*i}, v{74+3*i}
    ds_write2_b32 v{64+i}, v{r}, v{r+1} offset0:0 offset1:1""")
    A(f"""    s_waitcnt lgkmcnt(0)
    s_barrier                                 ; B3
;TS staged
    s_mov_b64 exec, -1
    ds_read_b128 v[28:31], v1 offset:{L_ST}
    ds_read_b128 v[32:35], v1 offset:{L_ST+10240}
    ds_read_b128 v[36:39], v1 offset:{L_ST+20480}
    v_add_u32 v2, 10240, v1
    v_add_u32 v3, 20480, v1
    v_and_b32 v0, 63, v0
    s_waitcnt lgkmcnt(2)
    global_store_dwordx4 v1, v[28:31], s[48:49] {o.get('rfl', 'sc1')}
    s_waitcnt lgkmcnt(1)
    global_store_dwordx4 v2, v[32:35], s[48:49] {o.get('rfl', 'sc1')}
    s_waitcnt lgkmcnt(0)
    global_store_dwordx4 v3, v[36:39], s[48:49] {o.get('rfl', 'sc1')}
L_common:
    v_mov_b32 v44, {L_NONCE}""")
    setup()
    consts()
    A(f"""
    s_mul_i32 s58, s3, {SEGW}
    s_sub_u32 s59, {NCH}, s58
    s_min_u32 s59, s59, {SEGW}
    s_bfm_b64 s[60:61], s59, 0
    v_add_u32 v45, s58, v0
    s_mov_b32 s10, {RECB}
    v_mul_lo_u32 v46, v45, s10
    v_lshlrev_b32 v45, 11, v45
    v_lshrrev_b32 v4, 4, v0
    v_lshlrev_b32 v167, 3, v4
    v_lshlrev_b32 v4, 2, v4
    v_and_b32 v5, 15, v0
    v_lshlrev_b32 v1, 4, v5
    v_add_u32 v5, 1, v5
    v_mov_b32 v2, 0
    s_cmp_eq_u32 s73, 0
    s_cbranch_scc1 L_drain
    s_mov_b32 s10, {SPIN}
    s_branch L_hchk
L_hpoll:
    global_load_dword v41, v40, s[66:67] sc1
    s_sub_u32 s10, s10, 1
    s_cbranch_scc1 L_end
L_hchk:
    s_waitcnt vmcnt(0)
    v_cmp_eq_u32 vcc, 0, v41
    s_cbranch_vccnz L_hpoll
    ds_write_b32 v44, v41
    v_and_b32 v42, 0xff000000, v41
    v_xor_b32 v42, 0xa5000000, v42
    v_lshl_or_b32 v48, v50, 12, v48
    v_lshl_or_b32 v50, v51, 12, v49
    v_lshl_or_b32 v52, v54, 12, v52
    v_lshl_or_b32 v54, v55, 12, v53
    v_or_b32 v48, v42, v48
    v_or_b32 v50, v42, v50
    v_or_b32 v52, v42, v52
    v_or_b32 v54, v42, v54
    v_mov_b32 v49, v41
    v_mov_b32 v51, v41
    v_mov_b32 v53, v41
    v_mov_b32 v55, v41
    s_waitcnt lgkmcnt(0)
    s_barrier                                 ; B4
    global_store_dwordx4 v62, v[48:51], s[50:51] {o.get('tfl', 'sc1')}
    global_store_dwordx4 v62, v[52:55], s[50:51] offset:1024 {o.get('tfl', 'sc1')}
    s_branch L_nopub
L_drain:
    s_waitcnt vmcnt(0)
    s_barrier                                 ; B4
L_nopub:
    ds_read_b32 v44, v44
    s_waitcnt lgkmcnt(0)
    v_readfirstlane_b32 s70, v44
    s_and_b32 s71, s70, 0xff000000
    s_xor_b32 s71, s71, 0xa5000000
;TS drained
    s_mov_b32 s10, {SPIN}
{POLL}
;TS polled
    v_and_b32 v3, 0xfff, v2
    v_lshrrev_b32 v2, 12, v2
    v_mad_u32_u24 v3, v3, 12, v46
L_round:
    v_mad_u32_u24 v31, v5, 12, -12
    v_cmp_lt_u32 vcc, 16, v2""")
    for p in range(NP - 1):
        A(f"""    ds_bpermute_b32 v{TA(p)}, v4, v3 offset:{16*p}
    ds_bpermute_b32 v{TC(p)}, v4, v2 offset:{16*p}""")
    A("    s_mov_b64 s[36:37], vcc")
    def pick4():
        for q in range(4):
            A(f"""    s_ff1_i32_b64 s11, s[36:37]
    s_bitset0_b64 s[36:37], s11
    s_lshl_b32 s11, s11, 2
    s_and_b32 s11, s11, 0xfc""")
            A("    s_mov_b32 s10, s11" if q == 0 else f"    s_lshl_b32 s11, s11, {8*q}\n    s_or_b32 s10, s10, s11")
    pick4()
    A("""    v_bfe_u32 v6, s10, v167, 8
    s_cmp_lg_u64 s[36:37], 0
    s_cselect_b32 s32, 1, 0
    s_cbranch_scc0 L_no8""")
    pick4()
    A(f"""    v_bfe_u32 v13, s10, v167, 8
    s_brev_b32 s11, 1
    ds_bpermute_b32 v14, v13, v3
    ds_bpermute_b32 v15, v13, v2
    s_waitcnt lgkmcnt(0)
    v_add_u32 v15, -16, v15
    v_sub_u32 v15, v15, v5
    v_add_u32 v14, v14, v31
    v_and_or_b32 v14, v15, s11, v14
    buffer_load_dwordx3 v[8:10], v14, s[20:23], 0 offen offset:192 sc1
L_no8:
    s_xor_b64 s[36:37], s[36:37], vcc
    s_brev_b32 s11, 1
    ds_bpermute_b32 v{TA(6)}, v6, v3
    ds_bpermute_b32 v{TC(6)}, v6, v2""")
    for p in range(NP):
        off = ' offset:192' if p == NP - 1 else ''
        A(f"    s_waitcnt lgkmcnt({2*(NP-1-p)})")
        if p == NP - 1:
            A(f"    v_add_u32 v{TC(p)}, -16, v{TC(p)}")
        A(f"""    v_sub_u32 v{TC(p)}, v{TC(p)}, v5
    v_add_u32 v{TA(p)}, v{TA(p)}, v31
    v_and_or_b32 v{TA(p)}, v{TC(p)}, s11, v{TA(p)}
    buffer_load_dwordx3 v[{RA(p)}:{RA(p)+2}], v{TA(p)}, s[20:23], 0 offen{off} sc1""")
    WP = o.get('wpos', 0)
    if WP == 0:
        A(WDMA)
    A(f"""    v_cndmask_b32 v6, 16, 32, s[36:37]
    v_sub_u32 v2, v2, v6
    v_mad_u32_u24 v3, v6, 12, v3
    v_max_i32 v2, 0, v2
    v_mov_b32 v7, {L_FLAG}
    v_cmp_lt_u32 vcc, 0, v2
    v_mov_b32 v6, 4
    s_and_saveexec_b64 s[36:37], vcc
    ds_write_b32 v7, v6
    s_mov_b64 exec, -1
    s_mov_b32 s11, 0x200001fc
    v_and_b32 v90, 15, v0
    v_lshrrev_b32 v28, 4, v0
    v_lshlrev_b32 v28, 5, v28
    v_and_b32 v29, 12, v0
    v_add_u32 v29, v28, v29
    s_mov_b32 s10, {L_COEF | 0x20000000}
    v_lshl_add_u32 v30, v29, 1, s10
    v_lshl_or_b32 v30, v0, 30, v30
    v_lshlrev_b32 v90, 5, v90
""")
    for p in range(NP):
        A(f"""    s_waitcnt vmcnt({NP-1-p + (4 if WP == 0 else 0)})
    v_bitop3_b32 v{KA(p)}, v{RA(p)+2}, s11, v166 bitop3:0x6a
    ds_add_rtn_u32 v{RA(p)+3}, v{KA(p)}, v6""")
    A(f"""    s_cmp_eq_u32 s32, 0
    s_cbranch_scc1 L_no8a
    v_bitop3_b32 v12, v10, s11, v166 bitop3:0x6a
    ds_add_rtn_u32 v11, v12, v6
L_no8a:
{WDMA if WP == 2 else ''}
;TS recs
    s_waitcnt lgkmcnt(0)
    s_barrier                                 ; B5
;TS hist2
    ds_read_b128 v[76:79], v90
    ds_read_b128 v[80:83], v90 offset:16
    ds_read_b32 v75, v7
{WDMA if WP == 3 else ''}
{PFC}
    s_mov_b32 s10, {L_COEF}
    s_waitcnt lgkmcnt(2)
    v_add_u32 v84, -4, v76                    ; running prefix minus the counter's own offset
    v_add3_u32 v85, v84, v77, -4
    v_add3_u32 v86, v85, v78, -4
    v_add3_u32 v87, v86, v79, -4
    s_waitcnt lgkmcnt(1)
    v_add3_u32 v88, v87, v80, -4
    v_add3_u32 v89, v88, v81, -4
    v_add3_u32 v92, v89, v82, -4
    v_add3_u32 v93, v92, v83, 28
    v_add_u32 v94, 0x7f, v93
    v_and_b32 v94, 0xffffff80, v94
    v_mov_b32 v95, v94
    v_lshlrev_b32 v74, 2, v0
    s_waitcnt lgkmcnt(0)
    v_add_u32_dpp v95, v95, v95 row_shr:1 row_mask:0xf bank_mask:0xf
    v_readlane_b32 s29, v93, s3
    v_readlane_b32 s30, v94, s3
    v_add_u32_dpp v95, v95, v95 row_shr:2 row_mask:0xf bank_mask:0xf
    v_readfirstlane_b32 s35, v75
    v_add_u32 v74, s29, v74
    v_add_u32_dpp v95, v95, v95 row_shr:4 row_mask:0xf bank_mask:0xf
    v_cmp_gt_u32 vcc, s30, v74
    v_mov_b32 v75, 0x800000
    v_add_u32_dpp v95, v95, v95 row_shr:8 row_mask:0xf bank_mask:0xf
    v_sub_u32 v95, v95, v94
    v_sub_u32 v76, v95, v90
    v_readlane_b32 s28, v95, s3
    v_add_u32 v77, v76, v84
    v_add_u32 v78, v76, v85
    v_add_u32 v79, v76, v86
    v_add_u32 v80, v76, v87
    v_add_u32 v81, v76, v88
    v_add_u32 v82, v76, v89
    v_add_u32 v83, v76, v92
    v_add_u32 v74, s28, v74
    s_mov_b64 exec, 0xfff
    ds_write_b128 v90, v[76:79] offset:{L_BASE}
    ds_write_b128 v90, v[80:83] offset:{L_BASE+16}
    s_mov_b64 exec, vcc
    ds_write_b32 v74, v75 offset:{L_KEY}
    s_mov_b64 exec, -1
    s_waitcnt lgkmcnt(0)
;TS scan2""")
    for p in range(NP):
        A(f"    ds_read_b32 v{BS(p)}, v{KA(p)} offset:{L_BASE}")
    A(f"""    s_sub_u32 s34, s30, s29
    s_lshr_b32 s34, s34, 6
    s_lshr_b32 s30, s30, 7
    s_cmp_lt_u32 s30, 2
    s_cselect_b32 s34, 0, s34
    s_add_u32 s29, s28, {L_KEY}
    s_lshl_b32 s28, s28, 1
    v_add_u32 v6, s29, v28
    v_add_u32 v7, s29, v29
    v_add_u32 v30, s28, v30""")
    for p in range(NP):
        A(f"""    s_waitcnt lgkmcnt({NP-1-p + 2*p})
    v_add3_u32 v{BS(p)}, v{BS(p)}, v{RA(p)+3}, v{KA(p)}
    v_lshl_add_u32 v{KA(p)}, v{BS(p)}, 1, s10
    ds_write_b32 v{BS(p)}, v{RA(p)+2} offset:{L_KEY}
    ds_write_b64 v{KA(p)}, v[{RA(p)}:{RA(p)+1}]""")
    A(f"""    s_cmp_eq_u32 s32, 0
    s_cbranch_scc1 L_no8b
    ds_read_b32 v13, v12 offset:{L_BASE}
    s_waitcnt lgkmcnt(0)
    v_add3_u32 v13, v13, v11, v12
    v_lshl_add_u32 v12, v13, 1, s10
    ds_write_b32 v13, v10 offset:{L_KEY}
    ds_write_b64 v12, v[8:9]
L_no8b:
    s_mov_b32 s31, {NB}
    s_mov_b32 s28, 0x00fffe00
    s_mov_b32 s29, 0xe0000000
    s_mov_b32 s38, 0x05040100
    s_mov_b32 s39, 0x07060302
    s_mov_b32 s37, 0
{ROLLS}
    s_waitcnt vmcnt({NPF}) lgkmcnt(0)
    s_barrier                                 ; B6
;TS sorted
;CLK 0
    s_cmp_lg_u32 s30, 0
    s_cbranch_scc0 L_done
""")
    PR = o.get('prio', 1)
    if PR == 1:
        A("""    s_cmp_lt_u32 s3, 4
    s_cbranch_scc1 L_p0
    s_setprio 1
    s_cmp_lt_u32 s3, 8
    s_cbranch_scc1 L_p0
    s_setprio 2
L_p0:""")
    if PR == 2:
        A("""    s_mul_i32 s10, s3, 43
    s_lshr_b32 s10, s10, 7
    s_mul_i32 s10, s10, 3
    s_cmp_lg_u32 s10, s3
    s_cbranch_scc1 L_p0
    s_setprio 1
L_p0:""")

    def read_keys():
        A(f"""    ds_read_b128 v[8:11], v6
    ds_read_b128 v[12:15], v6 offset:16
    ds_read2_b32 v[28:29], v7 offset0:0 offset1:4
    v_add_u32 v6, 128, v6
    v_add_u32 v7, 128, v7""")
    def mk_addr():
        for e in range(8):
            A(f"    v_and_or_b32 v{8+e}, v{8+e}, s28, v1")
        A("""    v_bitop3_b32 v28, v28, s29, v30 bitop3:0x6a
    v_bitop3_b32 v29, v29, s29, v30 bitop3:0x6a
    v_add_u32 v30, 256, v30""")
    def issue(h, ne=8):
        for e in range(ne):
            r = 32 + h*32 + e*4
            A(f"    buffer_load_dwordx4 v[{r}:{r+3}], v{8+e}, s[12:15], 0 offen offset:{h*256}")
    ROLL = o.get('roll', 0)
    def roll():
        if ROLL:
            A(f"""    s_min_u32 s33, s33, s34
    s_mov_b64 exec, 0x3fff
    buffer_load_dword v31, v0, s[40:43], s33 idxen
    s_mov_b64 exec, -1
    s_add_u32 s33, s33, 640000""")
    def read_b():
        A("""    ds_read_b64_tr_b16 v[16:17], v28
    ds_read_b64_tr_b16 v[18:19], v29 offset:32""")
    def half(h, nq=4):
        D = 32 + h*32
        def perms(j):
            t = 20 + (j % 2) * 4
            sel = 's38' if j % 2 == 0 else 's39'
            for q in range(nq):
                A(f"    v_perm_b32 v{t+q}, v{D + (2*q+1)*4 + j//2}, v{D + 2*q*4 + j//2}, {sel}")
        def mfma(j):
            t = 20 + (j % 2) * 4
            a = ACC + (h*8 + j) * 4
            if nq == 4:
                A(f"    v_mfma_f32_16x16x32_bf16 v[{a}:{a+3}], v[{t}:{t+3}], v[16:19], v[{a}:{a+3}]")
            else:
                A(f"    v_mfma_f32_16x16x16_bf16 v[{a}:{a+3}], v[{t}:{t+1}], v[16:17], v[{a}:{a+3}]")
        perms(0)
        for j in range(8):
            if j + 1 < 8:
                perms(j + 1)
            else:
                A("    s_nop 1")
            mfma(j)

    read_keys()
    A("    s_waitcnt lgkmcnt(0)")
    mk_addr()
    issue(0); issue(1)
    roll()
    read_b()
    read_keys()
    SHORT = o.get('short', 0)
    EA = o.get('ea', 0)
    if SHORT:
        A("    s_sub_u32 s30, s30, s34")
    A("""    s_sub_u32 s30, s30, 1
    s_cmp_eq_u32 s30, 0
    s_cbranch_scc1 L_tail
L_loop:
;STEP
    s_waitcnt lgkmcnt(0)
;STEPW""")
    mk_addr()
    A(f"    s_waitcnt vmcnt({8 + (1 if ROLL else 0)})")
    half(0)
    issue(0)
    A("""    s_cmp_eq_u32 s31, 0
    s_cbranch_scc1 L_nobar
    s_sub_u32 s31, s31, 1
    s_barrier
L_nobar:""")
    A(f"    s_waitcnt vmcnt({8 + (1 if ROLL else 0)})")
    half(1)
    issue(1)
    roll()
    read_b()
    read_keys()
    A("""    s_sub_u32 s30, s30, 1
    s_cmp_lg_u32 s30, 0
    s_cbranch_scc1 L_loop
L_tail:""")
    if SHORT:
        assert not ROLL
        A("""    s_cmp_eq_u32 s34, 0
    s_cbranch_scc1 L_last
;STEP
    v_and_b32 v20, 48, v0
    v_add_u32 v21, 128, v20
    v_sub_u32 v6, v6, v21
    v_sub_u32 v7, v7, v21
    v_lshlrev_b32 v20, 1, v20
    v_sub_u32 v30, v30, v20
    s_waitcnt lgkmcnt(0)
;STEPW
    ds_read_b128 v[8:11], v6
    ds_read_b32 v28, v7
    s_waitcnt vmcnt(8)""")
        half(0)
        A("    s_waitcnt lgkmcnt(0)")
        for e in range(4):
            A(f"    v_and_or_b32 v{8+e}, v{8+e}, s28, v1")
        A("    v_bitop3_b32 v28, v28, s29, v30 bitop3:0x6a")
        issue(0, 4)
        A("""    s_cmp_eq_u32 s31, 0
    s_cbranch_scc1 L_nobar2
    s_sub_u32 s31, s31, 1
    s_barrier
L_nobar2:
    s_waitcnt vmcnt(4)""")
        half(1)
        issue(1, 4)
        A("""    ds_read_b64_tr_b16 v[16:17], v28
;STEP
    s_waitcnt vmcnt(4) lgkmcnt(0)
;STEPW""")
        half(0, 2)
        if EA:
            A("""    s_mov_b32 s36, 1
    s_cmp_eq_u32 s35, 0
    s_cbranch_scc1 L_epiA
L_shortB:""")
        A("    s_waitcnt vmcnt(0)")
        half(1, 2)
        A("    s_branch L_done")
    A("""L_last:
;STEP""")
    A(f"    s_waitcnt vmcnt({8 + (1 if ROLL else 0)}) lgkmcnt(0)\n;STEPW")
    half(0)
    if EA:
        A("""    s_mov_b32 s36, 0
    s_cmp_eq_u32 s35, 0
    s_cbranch_scc1 L_epiA
L_lastB:""")
    A("    s_waitcnt vmcnt(0)")
    half(1)
    A(f"""L_done:
    s_cmp_eq_u32 s31, 0
    s_cbranch_scc1 L_paid
    s_sub_u32 s31, s31, 1
    s_barrier
    s_branch L_done
L_paid:
    s_waitcnt vmcnt(0)
    s_setprio {o.get('eprio', 0)}
    s_cmp_eq_u32 s35, 0
    s_cbranch_scc1 L_epi
    s_barrier
    v_mov_b32 v6, 0
    v_lshlrev_b32 v7, 2, v0
    ds_write_b32 v7, v6
    ds_write_b32 v7, v6 offset:256
    ds_write_b32 v7, v6 offset:264
    s_waitcnt lgkmcnt(0)
    s_barrier
    s_branch L_round
L_epi:
;TS main
;CLK 1""")
    if o.get('epi') == 3:
        epilogue3(A, o, ACC)
    elif EA:
        epilogue2(A, o, ACC)
    else:
        epilogue1(A, o, ACC)
    A("""L_fin:
;TSOUT
L_end:
    s_endpgm""")

    A(f"""L_help:
    v_and_b32 v0, 63, v0
    s_cmp_eq_u32 s3, 11
    s_cbranch_scc1 L_h11
    v_mov_b32 v4, 0
    v_mov_b32 v5, 0
    v_mov_b32 v6, 0
    v_mov_b32 v7, 0
    v_lshlrev_b32 v47, 4, v0
    ds_write_b128 v47, v[4:7]
    ds_write_b128 v47, v[4:7] offset:{L_C1}
    v_mul_u32_u24 v8, 1229, v0
    v_lshrrev_b32 v8, 12, v8
    v_mul_u32_u24 v9, 10, v8
    v_add_u32 v9, 2, v9
    v_mul_u32_u24 v9, 43691, v9
    v_lshrrev_b32 v9, 17, v9
    v_sub_u32 v9, v0, v9
    v_lshlrev_b32 v8, 5, v8
    v_lshl_or_b32 v8, v9, 30, v8
    v_or_b32 v8, 0x20000000, v8
    v_lshlrev_b32 v9, 2, v0
    ds_write_b32 v9, v8 offset:{L_LUT}
    s_waitcnt lgkmcnt(0)
    s_barrier                                 ; B1
{PRE}
{XSRD + TOUCH.replace('v47', 'v40') if o.get('mall') == 4 else ''}
    s_barrier                                 ; B2
    ds_read_b128 v[48:51], v47 offset:{L_C1}
    s_waitcnt lgkmcnt(0)
    v_add_u32 v52, v48, v49
    v_add_u32 v53, v52, v50
    v_add_u32 v54, v53, v51
    v_mov_b32 v55, v54
    s_nop 1
    v_add_u32_dpp v55, v55, v55 row_shr:1 row_mask:0xf bank_mask:0xf
    s_nop 1
    v_add_u32_dpp v55, v55, v55 row_shr:2 row_mask:0xf bank_mask:0xf
    s_nop 1
    v_add_u32_dpp v55, v55, v55 row_shr:4 row_mask:0xf bank_mask:0xf
    s_nop 1
    v_add_u32_dpp v55, v55, v55 row_shr:8 row_mask:0xf bank_mask:0xf
    s_nop 1
    v_add_u32_dpp v55, v55, v55 row_bcast:15 row_mask:0xa bank_mask:0xf
    s_nop 1
    v_add_u32_dpp v55, v55, v55 row_bcast:31 row_mask:0xc bank_mask:0xf
    v_sub_u32 v56, v55, v54
    v_add_u32 v57, v56, v48
    v_add_u32 v58, v56, v52
    v_add_u32 v59, v56, v53
    ds_write_b128 v47, v[56:59] offset:{L_B1}
    s_waitcnt lgkmcnt(0)
    s_barrier                                 ; B2b
    s_barrier                                 ; B3
;TSX staged
    s_branch L_common
L_h11:
    s_mov_b32 s73, 1
    s_load_dwordx4 s[60:63], s[0:1], 40
    s_load_dwordx2 s[64:65], s[0:1], 56       ; w_si1
    s_load_dwordx2 s[66:67], s[0:1], 80
    v_mov_b32 v40, 0
    s_barrier                                 ; B1
    s_waitcnt lgkmcnt(0)""")
    A(f"""    s_cmp_lg_u32 s2, 0
    s_cbranch_scc1 L_h1
    s_memrealtime s[48:49]
    s_waitcnt lgkmcnt(0)
    s_or_b32 s48, s48, 1
    v_mov_b32 v41, s48
    global_store_dword v40, v41, s[66:67] sc1
L_h1:""")
    A(f"""    s_mov_b32 s52, 0
    s_mul_i32 s53, s2, 2979
    s_lshr_b32 s53, s53, 16                   ; w = id / 22
    s_mul_i32 s54, s53, 22
    s_sub_u32 s54, s2, s54
    s_sub_u32 s54, s54, 1
    s_cmp_ge_u32 s54, 4
    s_cbranch_scc1 L_h2
    s_lshl_b32 s53, s53, 2
    s_add_u32 s53, s53, s54
    s_cmp_ge_u32 s53, 40
    s_cbranch_scc1 L_h2
    s_lshr_b32 s55, s53, 3                    ; fragment f = p*8 + u*4 + t
    s_bfe_u32 s56, s53, 0x10002
    s_and_b32 s57, s53, 3
    v_lshrrev_b32 v1, 4, v0
    v_and_b32 v2, 1, v1
    v_lshlrev_b32 v2, 5, v2
    v_lshrrev_b32 v1, 1, v1
    v_lshl_add_u32 v2, v1, 2, v2
    s_lshl_b32 s56, s56, 4
    v_add_u32 v2, s56, v2                     ; ch0 = 32*(g&1) + 4*(g>>1) + 16*u
    v_and_b32 v3, 15, v0
    v_lshlrev_b32 v3, 2, v3
    v_add_u32 v3, s57, v3                     ; c_out = 4n + t
    s_lshl_b32 s58, s55, 6
    v_add_u32 v4, s58, v2
    v_lshlrev_b32 v4, 1, v4
    s_cmp_lt_u32 s55, 2
    s_cselect_b32 s59, 0, 128
    s_cselect_b32 s62, s62, s64
    s_cselect_b32 s63, s63, s65
    s_sub_u32 s58, s58, s59
    v_add_u32 v5, s58, v2
    v_lshlrev_b32 v5, 7, v5
    v_lshl_add_u32 v5, v3, 1, v5
    s_lshl_b32 s54, s53, 10
    s_add_u32 s54, s54, {WS_W}
    v_lshlrev_b32 v6, 4, v0
    s_add_u32 s50, s6, s54
    s_addc_u32 s51, s7, 0
    global_load_dwordx2 v[8:9], v4, s[60:61]
    global_load_dwordx2 v[10:11], v4, s[60:61] offset:16""")
    for e in range(8):
        row = (e // 4) * 8 + e % 4
        A(f"    global_load_ushort v{12+e}, v5, s[62:63] offset:{row*128}")
    A(f"""    s_mov_b32 s52, 1
L_h2:
    s_mov_b32 s56, 0xffff0000
    s_barrier                                 ; B2
    global_load_dword v41, v40, s[66:67] sc1
    s_barrier                                 ; B2b
    v_lshlrev_b32 v62, 3, v0
    ds_read_b64 v[48:49], v62 offset:{L_B1}
    ds_read_b64 v[50:51], v62 offset:{L_C1}
    ds_read_b64 v[52:53], v62 offset:{L_B1+512}
    ds_read_b64 v[54:55], v62 offset:{L_C1+512}
    v_lshlrev_b32 v62, 1, v62
    s_waitcnt lgkmcnt(0)
    s_barrier                                 ; B3
;TSX staged
    s_cmp_eq_u32 s52, 0
    s_cbranch_scc1 L_h3
    s_waitcnt vmcnt(1)""")
    for e in range(8):
        src = 8 + e // 2
        A(f"    v_lshlrev_b32 v{20+e}, 16, v{src}" if e % 2 == 0 else f"    v_and_b32 v{20+e}, s56, v{src}")
        A(f"    v_lshlrev_b32 v{12+e}, 16, v{12+e}")
        A(f"    v_mul_f32 v{12+e}, v{12+e}, v{20+e}")
    for q in range(4):
        A(f"    v_cvt_pk_bf16_f32 v{28+q}, v{12+2*q}, v{13+2*q}")
    A(f"""    global_store_dwordx4 v6, v[28:31], s[50:51] sc1
L_h3:
    s_lshl_b32 s57, s2, 11
    s_add_u32 s57, s57, {WS_INB}
    s_add_u32 s50, s6, s57
    s_addc_u32 s51, s7, 0
    s_branch L_common""")


TOUCH = f"""    v_lshlrev_b32 v43, 7, v0
    s_mul_i32 s10, s2, 20000
    s_and_b32 s11, s3, 1
    s_mul_i32 s11, s11, 11904
    s_add_u32 s10, s10, s11
    buffer_load_dword v47, v43, s[12:15], s10 offen
    s_add_u32 s10, s10, 4096
    buffer_load_dword v47, v43, s[12:15], s10 offen"""


XSRD = """    s_mov_b32 s12, s4
    s_mov_b32 s13, s5
    s_mov_b32 s14, 5120000
    s_mov_b32 s15, 0x20000
"""


def gen(o):
    global TOUCH
    if o.get('mall') in (2, 4):
        TOUCH = f"""    v_lshlrev_b32 v43, 7, v0
    s_mul_i32 s10, s2, 20000
    buffer_load_dword v47, v43, s[12:15], s10 offen
    s_add_u32 s10, s10, 8192
    buffer_load_dword v47, v43, s[12:15], s10 offen
    s_add_u32 s10, s10, 3712
    buffer_load_dword v47, v43, s[12:15], s10 offen"""
    else:
        TOUCH = f"""    v_lshlrev_b32 v43, 7, v0
    s_mul_i32 s10, s2, 20000
    s_and_b32 s11, s3, 1
    s_mul_i32 s11, s11, 10000
    s_add_u32 s10, s10, s11
    buffer_load_dword v47, v43, s[12:15], s10 offen
    s_add_u32 s10, s10, 1920
    buffer_load_dword v47, v43, s[12:15], s10 offen"""
    A = Asm()
    A(HDR.rstrip('\n'))
    A(f"; @launch grid=({NCH},1,1) block=({NW*64},1,1) lds={L_END}")
    A('.amdgcn_target "amdgcn-amd-amdhsa--gfx950"\n.text')
    gen_body(A, o)
    ts = o.get('ts') or []
    A(f""".section .rodata,"a"
.p2align 6
.amdhsa_kernel {NAME}
  .amdhsa_next_free_vgpr 168
  .amdhsa_next_free_sgpr {102 if ts else 74}
  .amdhsa_accum_offset 168
  .amdhsa_group_segment_fixed_size 0
  .amdhsa_kernarg_size 96
  .amdhsa_user_sgpr_count 2
  .amdhsa_user_sgpr_kernarg_segment_ptr 1
  .amdhsa_system_sgpr_workgroup_id_x 1
.end_amdhsa_kernel""")
    out = Asm()
    names = []
    for line in A.L:
        if line.startswith(';TS '):
            nm = line.split()[1]
            if (ts == 1 or nm in ts) and len(names) < 11:
                k = len(names)
                out(f"    s_memrealtime s[{74+2*k}:{75+2*k}]")
                names.append(nm)
        elif line.startswith(';TSX'):
            if ts:
                for nm in ('dst', 'hist1', 'loads', 'staged'):
                    if nm in names:
                        k = names.index(nm)
                        out(f"    s_memrealtime s[{74+2*k}:{75+2*k}]")
        elif line.startswith(';STEPW'):
            if o.get('steps'):
                out("    v_writelane_b32 v31, s96, m0\n    s_add_u32 m0, m0, 1")
        elif line.startswith(';STEP'):
            if o.get('steps'):
                out("    s_memrealtime s[96:97]")
        elif line.startswith(';CLK'):
            if o.get('steps') and line.endswith('0'):
                out("    s_mov_b32 m0, 0\n    v_mov_b32 v31, 0")
            if o.get('steps') and line.endswith('1'):
                out(f"""    s_mul_i32 s72, s2, {NW}
    s_add_u32 s72, s72, s3
    s_lshl_b32 s72, s72, 6
    s_add_u32 s72, s72, {WS_TS + 0x100000}
    s_add_u32 s96, s6, s72
    s_addc_u32 s97, s7, 0
    v_lshlrev_b32 v30, 2, v0
    s_mov_b64 exec, 0xffff
    global_store_dword v30, v31, s[96:97]
    s_mov_b64 exec, -1""")
            if ts:
                k = int(line.split()[1])
                out(f"    s_memtime s[{98+2*k}:{99+2*k}]")
        elif line.startswith(';TSOUT'):
            if ts:
                n = len(names)
                out(f"""    s_waitcnt vmcnt(0)
    s_memrealtime s[{74+2*n}:{75+2*n}]
    s_waitcnt lgkmcnt(0)
    s_mul_i32 s72, s2, {NW}
    s_add_u32 s72, s72, s3
    s_lshl_b32 s72, s72, 6
    s_add_u32 s72, s72, {WS_TS}
    s_add_u32 s6, s6, s72
    s_addc_u32 s7, s7, 0
    s_mov_b64 exec, 1
    v_mov_b32 v0, 0
    s_sub_u32 s98, s100, s98
    v_mov_b32 v1, s98
    global_store_dword v0, v1, s[6:7] offset:60""")
                for k in range(n + 1):
                    out(f"""    v_mov_b32 v1, s{74+2*k}
    global_store_dword v0, v1, s[6:7] offset:{4*k}""")
                if o.get('gmax'):
                    k = (names + ['end']).index(o['gmax'])
                    out(f"""    s_cmp_lg_u32 s3, {o.get('gw', 9)}
    s_cbranch_scc1 L_end
    s_load_dwordx2 s[72:73], s[0:1], 80
    s_waitcnt lgkmcnt(0)
    s_not_b32 s98, s74
    v_mov_b32 v1, s98
    global_atomic_umax v0, v1, s[72:73] offset:128
    v_mov_b32 v1, s{74+2*k}
    global_atomic_umax v0, v1, s[72:73] offset:132
    s_cmp_lg_u32 s2, 0
    s_cbranch_scc1 L_end
L_g1:
    s_memrealtime s[98:99]
    s_waitcnt lgkmcnt(0)
    s_sub_u32 s98, s98, s74
    s_cmp_lt_u32 s98, 5000
    s_cbranch_scc1 L_g1
    global_load_dwordx2 v[2:3], v0, s[72:73] offset:128 sc1
    s_waitcnt vmcnt(0)
    v_readfirstlane_b32 s100, v2
    v_readfirstlane_b32 s101, v3
    s_not_b32 s100, s100
    s_sub_u32 s100, s101, s100
    s_mul_i32 s100, s100, 20
    s_add_u32 s100, s100, 5100
L_g2:
    s_memrealtime s[98:99]
    s_waitcnt lgkmcnt(0)
    s_sub_u32 s98, s98, s74
    s_cmp_lt_u32 s98, s100
    s_cbranch_scc1 L_g2""")
                if o.get('fix'):
                    out(f"""    s_add_u32 s72, s2, s3
    s_cmp_lg_u32 s72, 0
    s_cbranch_scc1 L_end
L_fix:
    s_memrealtime s[98:99]
    s_waitcnt lgkmcnt(0)
    s_sub_u32 s98, s98, s74
    s_cmp_lt_u32 s98, {o['fix']*100}
    s_cbranch_scc1 L_fix""")
                names.append('end')
        elif line.strip():
            out.L.append(line)
    global TSNAMES
    TSNAMES = names
    return out.text()


if __name__ == '__main__':
    o = eval(sys.argv[2]) if len(sys.argv) > 2 else {}
    open(sys.argv[1], 'w').write(gen(o))
```

```python
import sys

NAME = 'gather_scatter__tensor_product_equiv_equiformer__graph_kernel'
HDR = """; gather_scatter tensor product (equiformer): one launch, 256 co-resident workgroups of 12 waves.
;
;
; hand-off write-through stores, drained before the granules are stored; readers use sc1 loads and accept a
"""

NCH = 256
NW = 12
CH = 2500
RECB = 30720
SEGW = 22
WS_INB = 0x800000
WS_W = 0x900000
WS_NONCE = 0x910000
WS_TS = 0x1000000
SPIN = 200000

L_FLAG = 512
L_NONCE = 520
L_BASE = 576
L_LUT = 1088
L_INFO = 1344
L_W = 2048
L_C1 = 2048
L_B1 = 3072
L_ST = 4096
L_KEY = L_W + 49152
CAP = 6016
L_COEF = L_KEY + CAP * 4
L_END = L_COEF + CAP * 8


class Asm:
    def __init__(self):
        self.L = []
    def __call__(self, s):
        for line in s.strip('\n').split('\n'):
            self.L.append(line)
    def text(self):
        return '\n'.join(self.L) + '\n'


def epilogue1(A, o, ACC):
    WB = 64
    A("    v_lshlrev_b32 v1, 4, v0")
    order = [(p, u, t) for p in (0, 2) for u in range(2) for t in range(4)]
    order += [(p, 0, t) for p in (1, 3, 4) for t in range(4)] + [(p, 1, t) for p in (1, 3, 4) for t in range(4)]
    fr = lambda put: put[0]*8 + put[1]*4 + put[2]
    def wread_i(n):
        f = fr(order[n]); r = WB + (n % 8) * 4
        A(f"    ds_read_b128 v[{r}:{r+3}], v1 offset:{L_W + f*1024}")
    for n in range(8):
        wread_i(n)
    acc = lambda h, j, r: ACC + (h*8 + j)*4 + r
    PA, PB, PC = 8, 16, 24
    D0, D1 = 32, 48
    T = lambda c, r, j: acc(c // 2, j + 4*(c % 2), r)
    dp = {1: 'quad_perm:[1,0,3,2]', 2: 'quad_perm:[2,3,0,1]', 3: 'quad_perm:[3,2,1,0]'}
    A("    s_nop 2")
    for j in range(4):
        for r in range(4):
            A(f"    v_permlane32_swap_b32 v{acc(0,j,r)}, v{acc(0,j+4,r)}")
    for u in range(2):
        for q in range(4):
            r = 2*u + q // 2; j = (q % 2) * 2
            A(f"    v_cvt_pk_bf16_f32 v{PA+u*4+q}, v{T(0,r,j)}, v{T(0,r,j+1)}")
    valu = []
    for r in range(4):
        for j in range(4):
            valu.append(f"    v_permlane32_swap_b32 v{acc(1,j,r)}, v{acc(1,j+4,r)}")
    marks = {}
    for u in range(2):
        for q in range(4):
            r = 2*u + q // 2; j = (q % 2) * 2
            for (dst, k) in ((2, (160, 161, 162)), (4, (163, 164, 165))):
                for c in (1, 2, 3):
                    for d in range(2):
                        op = 'v_mul_f32_dpp' if c == 1 else 'v_fmac_f32_dpp'
                        valu.append(f"    {op} v{dst+d}, v{T(c,r,j+d)}, v{k[c-1]} {dp[c]} row_mask:0xf bank_mask:0xf")
            valu.append(f"    v_cvt_pk_bf16_f32 v{PB+u*4+q}, v2, v3")
            valu.append(f"    v_cvt_pk_bf16_f32 v{PC+u*4+q}, v4, v5")
        marks[u] = len(valu)
    seen = set()
    pos = 0
    def emit_valu(upto):
        nonlocal pos
        while pos < min(upto, len(valu)):
            A(valu[pos]); pos += 1
    for n, (p, u, t) in enumerate(order):
        if n < 16:
            emit_valu((n + 1) * marks[0] // 16)
        elif n < 28:
            emit_valu(marks[0] + (2 if n == 16 else 0) + (n - 15) * (marks[1] - marks[0]) // 12)
        elif n == 28:
            A("    s_nop 1")
        P = {0: PA, 2: PA, 1: PB, 3: PB, 4: PC}[p] + u*4
        D = (D0 if p < 2 else D1) + t*4
        w = WB + (n % 8) * 4
        c = f"v[{D}:{D+3}]" if D in seen else "0"
        seen.add(D)
        A(f"    s_waitcnt lgkmcnt({min(7, len(order)-1-n)})")
        A(f"    v_mfma_f32_16x16x32_bf16 v[{D}:{D+3}], v[{P}:{P+3}], v[{w}:{w+3}], {c}")
        if n + 8 < len(order):
            wread_i(n + 8)
        if n == 31:
            A(f"""    s_mul_i32 s10, s69, 625
    s_add_u32 s28, s10, 640
    s_add_u32 s10, s10, 15
    s_lshr_b32 s10, s10, 4
    s_lshr_b32 s28, s28, 4
    s_mul_i32 s11, s3, 10
    s_add_u32 s29, s11, 12
    s_add_u32 s11, s11, 2
    s_mul_i32 s11, s11, 43691
    s_mul_i32 s29, s29, 43691
    s_lshr_b32 s11, s11, 17
    s_lshr_b32 s29, s29, 17
    s_add_u32 s29, s29, s10
    s_add_u32 s10, s10, s11
    s_min_u32 s28, s28, s29
    s_sub_u32 s28, s28, s10
    s_lshl_b32 s28, s28, 4
    s_lshl_b32 s10, s10, 9
    s_add_u32 s8, s8, s10
    s_addc_u32 s9, s9, 0""")
    assert pos == len(valu)
    ST = o.get('ost', '')
    A(f"""    v_lshrrev_b32 v2, 4, v0
    v_and_b32 v3, 15, v0
    v_lshlrev_b32 v2, 9, v2
    v_lshl_add_u32 v2, v3, 3, v2
    v_cmp_gt_u32 vcc, s28, v0
    s_mov_b32 s10, 0xbfb8aa3b                 ; -log2(e)""")
    for t in range(4):
        A(f"    v_mul_f32 v{8+t}, s10, v{D0+t*4}")
    for t in range(4):
        A(f"    v_exp_f32 v{8+t}, v{8+t}")
    A(f"""    s_and_b64 exec, exec, vcc
    s_cbranch_execz L_fin
    v_cvt_pk_bf16_f32 v12, v{D0}, v{D0+4}
    v_cvt_pk_bf16_f32 v13, v{D0+8}, v{D0+12}""")
    for t in range(4):
        A(f"    v_add_f32 v{8+t}, 1.0, v{8+t}")
    A(f"    global_store_dwordx2 v2, v[12:13], s[8:9] {ST}")
    for t in range(4):
        A(f"    v_rcp_f32 v{8+t}, v{8+t}")
    A("    s_nop 0")
    for i in range(1, 4):
        for t in range(4):
            A(f"    v_mul_f32 v{D1+t*4+i}, v{D1+t*4+i}, v{8+t}")
        A(f"""    v_cvt_pk_bf16_f32 v{12+2*i}, v{D1+i}, v{D1+4+i}
    v_cvt_pk_bf16_f32 v{13+2*i}, v{D1+8+i}, v{D1+12+i}
    global_store_dwordx2 v2, v[{12+2*i}:{13+2*i}], s[8:9] offset:{i*128} {ST}""")

def epilogue2(A, o, ACC):
    order = [(p, u, t) for p in (0, 2) for u in range(2) for t in range(4)]
    order += [(p, u, t) for (p, u) in ((1, 0), (3, 0), (1, 1), (3, 1), (4, 0), (4, 1)) for t in range(4)]
    ring = [2, 8, 12, 28, 104, 108]
    fr = lambda put: put[0]*8 + put[1]*4 + put[2]
    def wread(n):
        r = ring[n % 6]
        return f"    ds_read_b128 v[{r}:{r+3}], v1 offset:{L_W + fr(order[n])*1024}"
    acc = lambda h, j, r: ACC + (h*8 + j)*4 + r
    PA, PB, PC = 96, 64, 72
    D0, D1 = 32, 48
    T = lambda c, r, j: acc(c // 2, j + 4*(c % 2), r)
    dp = {1: 'quad_perm:[1,0,3,2]', 2: 'quad_perm:[2,3,0,1]', 3: 'quad_perm:[3,2,1,0]'}
    seen = set()
    def mm(n, wait=True):
        p, u, t = order[n]
        P = {0: PA, 2: PA, 1: PB, 3: PB, 4: PC}[p] + u*4
        D = (D0 if p < 2 else D1) + t*4
        w = ring[n % 6]
        c = f"v[{D}:{D+3}]" if D in seen else "0"
        seen.add(D)
        L = []
        if wait:
            L.append(f"    s_waitcnt lgkmcnt({min(5, len(order)-1-n)})")
        L.append(f"    v_mfma_f32_16x16x32_bf16 v[{D}:{D+3}], v[{P}:{P+3}], v[{w}:{w+3}], {c}")
        if n + 6 < len(order):
            L.append(wread(n + 6))
        return L
    A("""    s_cmp_lg_u32 s37, 0
    s_cbranch_scc1 L_epiB
    s_mov_b32 s36, 2
L_epiA:
    s_mov_b32 s37, 1
    v_lshlrev_b32 v1, 4, v0""")
    for n in range(4):
        A(wread(n))
    A("""    s_mul_i32 s10, s69, 625
    s_add_u32 s28, s10, 640
    s_add_u32 s10, s10, 15
    s_lshr_b32 s10, s10, 4
    s_lshr_b32 s28, s28, 4
    s_mul_i32 s11, s3, 10
    s_add_u32 s29, s11, 12
    s_add_u32 s11, s11, 2
    s_mul_i32 s11, s11, 43691
    s_mul_i32 s29, s29, 43691
    s_lshr_b32 s11, s11, 17
    s_lshr_b32 s29, s29, 17
    s_add_u32 s29, s29, s10
    s_add_u32 s10, s10, s11
    s_min_u32 s28, s28, s29
    s_sub_u32 s28, s28, s10
    s_lshl_b32 s28, s28, 4
    s_lshl_b32 s10, s10, 9
    s_add_u32 s8, s8, s10
    s_addc_u32 s9, s9, 0
    v_cmp_gt_u32 s[40:41], s28, v0
    v_lshrrev_b32 v6, 4, v0
    v_and_b32 v7, 15, v0
    v_lshlrev_b32 v6, 9, v6
    v_lshl_add_u32 v6, v7, 3, v6
    s_mov_b32 s10, 0xbfb8aa3b                 ; -log2(e)""")
    for j in range(4):
        for r in range(4):
            A(f"    v_permlane32_swap_b32 v{acc(0,j,r)}, v{acc(0,j+4,r)}")
    for (u, q) in ((0, 0), (1, 0), (0, 2), (1, 2), (0, 1), (0, 3), (1, 1), (1, 3)):
        r = 2*u + q // 2; j = (q % 2) * 2
        A(f"    v_cvt_pk_bf16_f32 v{PA+u*4+q}, v{T(0,r,j)}, v{T(0,r,j+1)}")
    A(wread(4)); A(wread(5))
    for n in range(16):
        for l in mm(n): A(l)
    A("""    s_cmp_eq_u32 s36, 0
    s_cbranch_scc1 L_lastB""")
    if o.get('short'):
        A("""    s_cmp_eq_u32 s36, 1
    s_cbranch_scc1 L_shortB""")
    A("L_epiB:")
    for j in range(4):
        for r in range(4):
            A(f"    v_permlane32_swap_b32 v{acc(1,j,r)}, v{acc(1,j+4,r)}")
    def combo(P, k, u):
        L = []
        for q in range(4):
            r = 2*u + q // 2; j = (q % 2) * 2
            t0 = 80 + 2*(q % 2)
            for c in (1, 2, 3):
                for d in range(2):
                    op = 'v_mul_f32_dpp' if c == 1 else 'v_fmac_f32_dpp'
                    L.append(f"    {op} v{t0+d}, v{T(c,r,j+d)}, v{k[c-1]} {dp[c]} row_mask:0xf bank_mask:0xf")
            L.append(f"    v_cvt_pk_bf16_f32 v{P+u*4+q}, v{t0}, v{t0+1}")
        return L
    def weave(valu, ns):
        step = (len(valu) - 2) / len(ns)
        pos = 0
        for i, n in enumerate(ns):
            upto = 2 + int(i * step)
            while pos < upto:
                A(valu[pos]); pos += 1
            for l in mm(n): A(l)
        while pos < len(valu):
            A(valu[pos]); pos += 1
    kb, kc = (160, 161, 162), (163, 164, 165)
    for l in combo(PB, kb, 0): A(l)
    weave(combo(PB, kb, 1), range(16, 24))
    weave(combo(PC, kc, 0), range(24, 32))
    ST = o.get('ost', '')
    sig = [f"    v_mul_f32 v{84+t}, s10, v{D0+t*4}" for t in range(4)]
    sig += [f"    v_exp_f32 v{84+t}, v{84+t}" for t in range(4)]
    sig += [f"    v_cvt_pk_bf16_f32 v88, v{D0}, v{D0+4}", f"    v_cvt_pk_bf16_f32 v89, v{D0+8}, v{D0+12}"]
    sig += [f"    v_add_f32 v{84+t}, 1.0, v{84+t}" for t in range(4)]
    weave(combo(PC, kc, 1), range(32, 36))
    for l in sig[:2]: A(l)
    rest = sig[2:]
    for i, n in enumerate(range(36, 40)):
        for l in mm(n): A(l)
        for l in rest[3*i:3*i+3]: A(l)
    A("    s_mov_b64 exec, s[40:41]")
    for t in range(4):
        A(f"    v_rcp_f32 v{84+t}, v{84+t}")
    A(f"    global_store_dwordx2 v6, v[88:89], s[8:9] {ST}")
    A("    s_nop 0")
    for i in range(1, 4):
        for t in range(4):
            A(f"    v_mul_f32 v{D1+t*4+i}, v{D1+t*4+i}, v{84+t}")
        A(f"""    v_cvt_pk_bf16_f32 v{88+2*i}, v{D1+i}, v{D1+4+i}
    v_cvt_pk_bf16_f32 v{89+2*i}, v{D1+8+i}, v{D1+12+i}
    global_store_dwordx2 v6, v[{88+2*i}:{89+2*i}], s[8:9] offset:{i*128} {ST}""")


def epilogue3(A, o, ACC):
    order = [(p, u, t) for p in (0, 2) for u in range(2) for t in range(4)]
    order += [(p, u, t) for (p, u) in ((1, 0), (3, 0), (1, 1), (3, 1), (4, 0), (4, 1)) for t in range(4)]
    fr = lambda put: put[0]*8 + put[1]*4 + put[2]
    def wread(n):
        r = 64 + (n % 8) * 4
        return f"    ds_read_b128 v[{r}:{r+3}], v1 offset:{fr(order[n])*1024}"
    acc = lambda h, j, r: ACC + (h*8 + j)*4 + r
    PA, PB, PC = 8, 16, 24
    D0, D1 = 32, 48
    T = lambda c, r, j: acc(c // 2, j + 4*(c % 2), r)
    dp = {1: 'quad_perm:[1,0,3,2]', 2: 'quad_perm:[2,3,0,1]', 3: 'quad_perm:[3,2,1,0]'}
    seen = set()
    def mm(n):
        p, u, t = order[n]
        P = {0: PA, 2: PA, 1: PB, 3: PB, 4: PC}[p] + u*4
        D = (D0 if p < 2 else D1) + t*4
        w = 64 + (n % 8) * 4
        c = f"v[{D}:{D+3}]" if D in seen else "0"
        seen.add(D)
        L = []
        if n % 4 == 0:
            L.append(f"    s_waitcnt lgkmcnt({min(4, len(order)-4-n)})")
        L.append(f"    v_mfma_f32_16x16x32_bf16 v[{D}:{D+3}], v[{P}:{P+3}], v[{w}:{w+3}], {c}")
        if n + 8 < len(order):
            L.append(wread(n + 8))
        return L
    A(f"    s_mov_b32 s10, {L_W}\n    v_lshl_add_u32 v1, v0, 4, s10")
    for n in range(8):
        A(wread(n))
    swaps = lambda h: [f"    v_permlane32_swap_b32 v{acc(h,j,r)}, v{acc(h,j+4,r)}" for j in range(4) for r in range(4)]
    salu = """    s_mul_i32 s10, s69, 625
    s_add_u32 s28, s10, 640
    s_add_u32 s10, s10, 15
    s_lshr_b32 s10, s10, 4                    ; first node of the bucket
    s_lshr_b32 s28, s28, 4                    ; first node of the next one
    s_mul_i32 s11, s3, 10
    s_add_u32 s29, s11, 12
    s_add_u32 s11, s11, 2
    s_mul_i32 s11, s11, 43691
    s_mul_i32 s29, s29, 43691
    s_lshr_b32 s11, s11, 17
    s_lshr_b32 s29, s29, 17
    s_add_u32 s29, s29, s10
    s_add_u32 s10, s10, s11                   ; first node of this wave
    s_min_u32 s28, s28, s29
    s_sub_u32 s28, s28, s10                   ; nodes of this wave""".split("\n")
    for a, b in zip(swaps(0), salu):
        A(a); A(b)
    for u in range(2):
        for q in range(4):
            r = 2*u + q // 2; j = (q % 2) * 2
            A(f"    v_cvt_pk_bf16_f32 v{PA+u*4+q}, v{T(0,r,j)}, v{T(0,r,j+1)}")
    def combo(P, k, u):
        L = []
        for q in range(4):
            r = 2*u + q // 2; j = (q % 2) * 2
            t0 = 2 + 2*(q % 2)
            for c in (1, 2, 3):
                for d in range(2):
                    op = 'v_mul_f32_dpp' if c == 1 else 'v_fmac_f32_dpp'
                    L.append(f"    {op} v{t0+d}, v{T(c,r,j+d)}, v{k[c-1]} {dp[c]} row_mask:0xf bank_mask:0xf")
            L.append(f"    v_cvt_pk_bf16_f32 v{P+u*4+q}, v{t0}, v{t0+1}")
        return L
    def weave(valu, ns):
        step = (len(valu) - 2) / len(ns)
        pos = 0
        for i, n in enumerate(ns):
            upto = 2 + int(i * step)
            while pos < upto:
                A(valu[pos]); pos += 1
            for l in mm(n): A(l)
        while pos < len(valu):
            A(valu[pos]); pos += 1
    kb, kc = (160, 161, 162), (163, 164, 165)
    weave(swaps(1) + combo(PB, kb, 0), range(0, 16))
    weave(combo(PB, kb, 1), range(16, 24))
    weave(combo(PC, kc, 0), range(24, 32))
    weave(combo(PC, kc, 1), range(32, 36))
    ST = o.get('ost', '')
    A("""    s_lshl_b32 s28, s28, 4
    s_lshl_b32 s10, s10, 9
    s_add_u32 s8, s8, s10
    s_addc_u32 s9, s9, 0
    s_mov_b32 s10, 0xbfb8aa3b                 ; -log2(e)""")
    G, O = 8, 12
    sig = [f"    v_mul_f32 v{G+t}, s10, v{D0+t*4}" for t in range(4)]
    sig += [f"    v_exp_f32 v{G+t}, v{G+t}" for t in range(4)]
    sig += ["    v_cmp_gt_u32 vcc, s28, v0", "    v_lshrrev_b32 v6, 4, v0", "    v_and_b32 v7, 15, v0"]
    sig += [f"    v_add_f32 v{G+t}, 1.0, v{G+t}" for t in range(4)]
    sig += ["    v_lshlrev_b32 v6, 9, v6"]
    for i, n in enumerate(range(36, 40)):
        for l in mm(n): A(l)
        for l in sig[4*i:4*i+4]: A(l)
    A("    v_lshl_add_u32 v6, v7, 3, v6")
    A("    s_mov_b64 exec, vcc")
    for t in range(4):
        A(f"    v_rcp_f32 v{G+t}, v{G+t}")
    A(f"""    v_cvt_pk_bf16_f32 v{O}, v{D0}, v{D0+4}
    v_cvt_pk_bf16_f32 v{O+1}, v{D0+8}, v{D0+12}
    global_store_dwordx2 v6, v[{O}:{O+1}], s[8:9] {ST}""")
    for i in range(1, 4):
        for t in range(4):
            A(f"    v_mul_f32 v{D1+t*4+i}, v{D1+t*4+i}, v{G+t}")
        A(f"""    v_cvt_pk_bf16_f32 v{O+2*i}, v{D1+i}, v{D1+4+i}
    v_cvt_pk_bf16_f32 v{O+1+2*i}, v{D1+8+i}, v{D1+12+i}
    global_store_dwordx2 v6, v[{O+2*i}:{O+1+2*i}], s[8:9] offset:{i*128} {ST}""")


def gen_body(A, o):
    NP = o.get('np', 7)
    ACC = 96
    RA = lambda p: 32 + 4*p
    KA = lambda p: 60 + p
    BS = lambda p: 67 + p
    TA = lambda p: 74 + p
    TC = lambda p: 81 + p
    NB = o.get('nb', 3)
    PF = o.get('pf', 0)
    NPF = (PF * 4 + 384*64 - 1) // (384*64)
    PFC = ''
    if PF:
        per = (PF * 4 + 384*NPF - 1) // (384*NPF)
        PFC = f"""    s_lshr_b32 s10, s2, 3
    s_lshl_b32 s33, s3, 5
    s_add_u32 s10, s10, s33
    s_mul_i32 s10, s10, {per*128}
    v_lshlrev_b32 v20, 7, v0
"""
        if o.get('rot'):
            PFC += f"""    s_lshr_b32 s33, s69, 5
    s_sub_u32 s33, {8 + o.get('pfc', 0)}, s33
    s_and_b32 s33, s33, 7
    s_mul_i32 s33, s33, 640000
    s_add_u32 s10, s10, s33
"""
        if per < 64: PFC += f"    s_bfm_b64 exec, {per}, 0\n"
        for k in range(NPF):
            PFC += "    buffer_load_dword v21, v20, s[12:15], s10 offen\n"
            if k + 1 < NPF: PFC += f"    s_add_u32 s10, s10, {384*per*128}\n"
        if o.get('mall') == 5:
            per2 = ((10000 - PF) * 4 + 3071) // 3072
            PFC += f"""    s_mul_i32 s10, s2, 12
    s_add_u32 s10, s10, s3
    s_mul_i32 s10, s10, {per2*128}
    s_add_u32 s10, s10, {PF*512}
    s_bfm_b64 exec, {per2}, 0
    buffer_load_dword v21, v20, s[12:15], s10 offen {o.get('mfl', '')}
"""
            NPF += 1
        PFC += "    s_mov_b64 exec, -1"
    ROLLS = ''
    if o.get('roll'):
        ROLLS = f"""    s_mov_b32 s40, s4
    s_or_b32 s41, s5, 0x800000
    s_mov_b32 s42, 40000
    s_mov_b32 s43, 0x20000
    s_lshr_b32 s33, s2, 3
    s_lshl_b32 s34, s3, 5
    s_add_u32 s33, s33, s34
    s_mul_i32 s33, s33, {13*128}
    s_add_u32 s34, s33, {7*640000}
    s_add_u32 s33, s33, {o['roll']*640000}"""
    if o.get('sroll'):
        ROLLS = f"""    s_lshr_b32 s33, s2, 3
    s_lshl_b32 s44, s3, 5
    s_add_u32 s33, s33, s44
    s_mul_i32 s33, s33, {13*128}
    s_add_u32 s44, s33, {7*640000}
    s_add_u32 s33, s33, {o['sroll']*640000}"""
    FULL = """    buffer_load_dwordx2 v[6:7], v45, s[16:19], 0 offen sc1
    s_sub_u32 s10, s10, 1
    s_cbranch_scc1 L_end
    s_waitcnt vmcnt(0)
    v_xor_b32 v2, s71, v6
    v_xor_b32 v7, s70, v7
    v_lshrrev_b32 v6, 24, v2
    v_or_b32 v6, v6, v7
    v_cmp_ne_u32 vcc, 0, v6
"""
    ONE = """L_poll0:
    buffer_load_dwordx2 v[6:7], v45, s[16:19], 0 offen sc1
    s_sub_u32 s10, s10, 1
    s_cbranch_scc1 L_end
    s_waitcnt vmcnt(0)
    v_cmp_ne_u32 vcc, s70, v7
    s_cbranch_vccnz L_poll0
"""
    pm = o.get('poll0', 0)
    if pm in (0, 1):
        POLL = ''
        if pm == 1:
            POLL = """    s_sub_u32 s59, s59, 1
    s_bfm_b64 exec, 1, s59                    ; first wait for the wave's last producer alone
""" + ONE
        POLL += "    s_mov_b64 exec, s[60:61]\nL_poll:\n" + FULL + """    s_and_b64 exec, exec, vcc
    s_cbranch_scc1 L_poll
    s_mov_b64 exec, -1"""
    else:
        POLL = ''
        if pm == 3:
            POLL = "    s_branch L_poll1\n"
        POLL += "L_poll:\n    s_mov_b64 exec, s[60:61]\n" + FULL + """    s_and_b64 s[60:61], exec, vcc
    s_cbranch_scc0 L_polled
L_poll1:
    s_flbit_i32_b64 s59, s[60:61]
    s_sub_u32 s59, 63, s59
    s_bfm_b64 exec, 1, s59
""" + ONE + """    s_branch L_poll
L_polled:
    s_mov_b64 exec, -1"""
    if o.get('mall') in (6, 7):
        assert pm == 1
        lo = o.get('mlo', 0)
        per2 = ((10000 - lo) * 4 + 3071) // 3072
        T6 = f"""    s_mul_i32 s11, s2, 12
    s_add_u32 s11, s11, s3
    s_mul_i32 s11, s11, {per2*128}
    s_add_u32 s11, s11, {lo*512}
    v_lshlrev_b32 v20, 7, v0
    s_mov_b64 s[36:37], exec
    s_bfm_b64 exec, {per2}, 0
    buffer_load_dword v21, v20, s[12:15], s11 offen
    s_mov_b64 exec, s[36:37]
"""
        T6 = T6.replace("    v_lshlrev_b32 v20, 7, v0\n    s_mov_b64 s[36:37], exec\n    s_bfm_b64 exec, %d, 0\n" % per2,
                        "    s_mov_b64 s[36:37], exec\n    s_bfm_b64 exec, %d, 0\n    v_lshlrev_b32 v20, 7, v0\n" % per2)
        LD = "    buffer_load_dwordx2 v[6:7], v45, s[16:19], 0 offen sc1\n"
        if o['mall'] == 6:
            first = LD + T6 + "    s_waitcnt vmcnt(1)\n    v_cmp_ne_u32 vcc, s70, v7\n    s_cbranch_vccz L_poll0d\n"
            POLL = POLL.replace("L_poll0:\n", first + "L_poll0:\n").replace("    s_mov_b64 exec, s[60:61]\n", "L_poll0d:\n    s_mov_b64 exec, s[60:61]\n")
        else:
            first = LD + "    s_mov_b32 s72, 0\n    s_waitcnt vmcnt(0)\n    v_cmp_ne_u32 vcc, s70, v7\n    s_cbranch_vccz L_poll0d\n    s_mov_b32 s72, 1\n" + T6
            POLL = POLL.replace("L_poll0:\n", first + "L_poll0:\n").replace("    s_mov_b64 exec, s[60:61]\n", "L_poll0d:\n    s_mov_b64 exec, s[60:61]\n")
            PFC = PFC + "\n    s_cmp_eq_u32 s72, 1\n    s_cbranch_scc1 L_t7\n" + T6 + "    s_mov_b32 s72, 1\nL_t7:"
    if o.get('wloc') and not o.get('wpre'):
        assert pm == 1
        LD = "    buffer_load_dwordx2 v[6:7], v45, s[16:19], 0 offen sc1\n"
        POLL = POLL.replace("L_poll0:\n", LD + "    s_mov_b64 exec, -1\n@WMK@    s_bfm_b64 exec, 1, s59\n    s_branch L_poll0w\nL_poll0:\n")
        POLL = POLL.replace("    s_waitcnt vmcnt(0)\n    v_cmp_ne_u32 vcc, s70, v7\n    s_cbranch_vccnz L_poll0", "L_poll0w:\n    s_waitcnt vmcnt(0)\n    v_cmp_ne_u32 vcc, s70, v7\n    s_cbranch_vccnz L_poll0")
    POLL = POLL.replace('offen sc1', 'offen ' + o.get('pfl', 'sc1'))
    if pm in (4, 5):
        AT = """    v_mov_b32 v6, 0
    v_mov_b32 v7, 0
    buffer_atomic_add_x2 v[6:7], v45, s[16:19], 0 offen sc0 sc1
"""
        LD = "    buffer_load_dwordx2 v[6:7], v45, s[16:19], 0 offen sc1\n"
        POLL = """    s_sub_u32 s59, s59, 1
    s_bfm_b64 exec, 1, s59                    ; first wait for the wave's last producer alone
""" + ONE.replace(LD, AT) + "    s_mov_b64 exec, s[60:61]\n"
        if pm == 4:
            POLL += "L_poll:\n" + FULL + """    s_and_b64 exec, exec, vcc
    s_cbranch_scc1 L_poll
    s_mov_b64 exec, -1"""
        else:
            POLL += FULL + """    s_and_b64 exec, exec, vcc
    s_cbranch_scc0 L_polled
L_poll:
""" + FULL.replace(LD, AT) + """    s_and_b64 exec, exec, vcc
    s_cbranch_scc1 L_poll
L_polled:
    s_mov_b64 exec, -1"""

    ROT = ''
    if o.get('rot'):
        ROT = """    v_bfe_u32 v49, v{b}, 7, 3
    v_lshl_add_u32 v48, v49, 2, v48           ; every group of 32 buckets starts its sweep of x at another class
"""
    T9 = """    s_and_b32 s10, s2, 7                      ; this workgroup's share of the class its bucket group sweeps first
    s_sub_u32 s10, 8, s10
    s_and_b32 s10, s10, 7
    s_mul_i32 s10, s10, 640000
    s_lshr_b32 s11, s2, 3
    s_mul_i32 s11, s11, 20000
    s_add_u32 s10, s10, s11
    v_lshlrev_b32 v43, 7, v0
    buffer_load_dword v40, v43, s[12:15], s10 offen
    s_add_u32 s10, s10, 8192
    buffer_load_dword v40, v43, s[12:15], s10 offen
    s_add_u32 s10, s10, 3712
    buffer_load_dword v40, v43, s[12:15], s10 offen"""
    PADW = ''
    if o.get('one'):
        PADW = f"""    s_mov_b64 exec, vcc
    ds_write_b32 v74, v75 offset:{L_KEY}
    s_mov_b64 exec, -1"""
    WL = o.get('wloc', 0)
    WPTR = """    s_load_dwordx4 s[60:63], s[0:1], 40
    s_load_dwordx2 s[64:65], s[0:1], 56       ; w_si1"""
    WLD = f"""    s_sub_u32 s64, s64, 16384
    s_subb_u32 s65, s65, 0
    s_cmp_lt_u32 s3, 8
    s_cselect_b32 s62, s62, s64
    s_cselect_b32 s63, s63, s65
    s_add_u32 s64, s64, 20480
    s_addc_u32 s65, s65, 0
    v_and_b32 v84, 0xffffff80, v1
    v_add_u32 v84, v84, v1
    v_lshrrev_b32 v85, 7, v1
    v_lshlrev_b32 v86, 2, v85
    global_load_dwordx4 v[64:67], v84, s[62:63]
    global_load_dwordx4 v[68:71], v84, s[62:63] offset:128
    global_load_dwordx4 v[72:75], v84, s[64:65]
    global_load_dwordx4 v[76:79], v84, s[64:65] offset:128
    global_load_dword v80, v86, s[60:61]
    global_load_dword v81, v86, s[60:61] offset:320
    v_and_b32 v84, 0x70, v1
    v_lshlrev_b32 v84, 1, v84
"""
    WADD = f"    v_add_u32 v82, {L_W}, v82\n    v_add_u32 v83, {L_W}, v83\n"
    for k in range(2):
        if k:
            WLD += "    v_add_u32 v85, 80, v85\n"
        WLD += f"    v_lshrrev_b32 v86, 5, v85\n    v_lshl_or_b32 v{82+k}, v86, 13, v84\n"
        for (bit, sh) in ((3, 12), (4, 8), (1, 9), (2, 3), (0, 2)):
            WLD += f"    v_bfe_u32 v86, v85, {bit}, 1\n    v_lshl_or_b32 v{82+k}, v86, {sh}, v{82+k}\n"
    WLD += WADD
    k0 = WLD.index("    v_and_b32 v84, 0x70, v1")
    WL1 = "    s_mov_b64 s[52:53], exec\n    s_mov_b64 exec, -1\n" + WLD[:k0] + "    s_mov_b64 exec, s[52:53]"
    WL2 = "    v_lshrrev_b32 v85, 7, v1\n" + WLD[k0:]
    NWL = 6 if WL >= 2 else 0
    WMK = "    s_cmp_ge_u32 s3, 10\n    s_cbranch_scc1 L_wdone\n    s_mov_b32 s11, 0xffff0000\n"
    for k in range(2):
        WMK += f"    v_lshlrev_b32 v84, 16, v{80+k}\n    v_and_b32 v85, s11, v{80+k}\n"
        for j in range(8):
            a, b = 64 + 8*k + j//2, 68 + 8*k + j//2
            t0, t1 = 86 + 2*(j % 2), 87 + 2*(j % 2)
            if j % 2 == 0:
                WMK += f"    v_lshlrev_b32 v{t0}, 16, v{a}\n    v_lshlrev_b32 v{t1}, 16, v{b}\n"
            else:
                WMK += f"    v_and_b32 v{t0}, s11, v{a}\n    v_and_b32 v{t1}, s11, v{b}\n"
            WMK += f"    v_mul_f32 v{t0}, v{t0}, v84\n    v_mul_f32 v{t1}, v{t1}, v85\n"
            WMK += f"    v_cvt_pk_bf16_f32 v{t0}, v{t0}, v{t1}\n"
            WMK += f"    ds_write_b32 v{82+k}, v{t0} offset:{(j % 4)*1024 + (j // 4)*16}\n"
        if k == 0:
            WMK += "    s_waitcnt lgkmcnt(4)\n"
    WMK += "    s_waitcnt lgkmcnt(0)\nL_wdone:\n"
    if o.get('wpre'):
        body = WMK[WMK.index("    s_mov_b32 s11"):WMK.index("L_wdone:")]
        WL2 += "    s_waitcnt vmcnt(3)\n" + body
        WMK = ''
    INMAP = "    s_mov_b32 s53, s2"
    if o.get('inmap'):
        INMAP = """    s_and_b32 s53, s2, 7
    s_lshl_b32 s53, s53, 5
    s_lshr_b32 s54, s2, 3
    s_add_u32 s53, s53, s54"""
    PRE = ''
    if o.get('pre'):
        PRE = f"""    s_lshl_b32 s57, s2, 11
    s_add_u32 s57, s57, {WS_INB}
    s_add_u32 s50, s6, s57
    s_addc_u32 s51, s7, 0
"""
        if o['pre'] == 1:
            PRE += """    global_store_dwordx4 v47, v[4:7], s[50:51] sc1
    global_store_dwordx4 v47, v[4:7], s[50:51] offset:1024 sc1"""
        else:
            PRE += """    global_load_dwordx4 v[36:39], v47, s[50:51] sc1
    global_load_dwordx4 v[36:39], v47, s[50:51] offset:1024 sc1"""
    WDMA = f"""    s_lshl_b32 s33, s3, 12
    s_add_u32 m0, s33, {L_W}
    v_lshlrev_b32 v20, 4, v0
    buffer_load_dwordx4 v20, s[24:27], s33 offen sc1 lds
    buffer_load_dwordx4 v20, s[24:27], s33 offen offset:1024 sc1 lds
    buffer_load_dwordx4 v20, s[24:27], s33 offen offset:2048 sc1 lds
    buffer_load_dwordx4 v20, s[24:27], s33 offen offset:3072 sc1 lds"""

    def setup():
        A(f"""    s_mov_b32 s12, s4                         ; x descriptor
    s_mov_b32 s13, s5
    s_mov_b32 s14, 5120000
    s_mov_b32 s15, 0x20000
    s_and_b32 s68, s2, 7
    s_lshl_b32 s68, s68, 5
    s_lshr_b32 s69, s2, 3
    s_add_u32 s69, s69, s68
    s_lshl_b32 s68, s69, 3
    s_add_u32 s68, s68, {WS_INB}
    s_add_u32 s16, s6, s68
    s_addc_u32 s17, s7, 0
    s_mov_b32 s18, {NCH*2048}
    s_mov_b32 s19, 0x20000
    s_mov_b32 s20, s6
    s_mov_b32 s21, s7
    s_mov_b32 s22, {NCH*RECB}
    s_mov_b32 s23, 0x20000
""")
        if not o.get('wloc'):
            A(f"""    s_add_u32 s24, s6, {WS_W}
    s_addc_u32 s25, s7, 0
    s_mov_b32 s26, 40960
    s_mov_b32 s27, 0x20000""")

    ZA = o.get('zearly', 0)
    ZERO = '\n'.join(f"    v_mov_b32 v{ACC+i}, 0" for i in range(64))
    def consts():
        if not ZA:
            A(ZERO)
        A("""    v_and_b32 v166, 3, v0
    v_cmp_eq_u32 s[58:59], 0, v166
    v_cmp_eq_u32 s[60:61], 1, v166
    v_cmp_eq_u32 s[62:63], 2, v166
    v_cmp_eq_u32 s[64:65], 3, v166
    v_bfrev_b32 v166, 4                       ; 0x20000000
    v_cndmask_b32 v163, 0, 1.0, s[62:63]
    v_cndmask_b32 v164, 0, 1.0, s[64:65]
    v_cndmask_b32 v165, 0, 1.0, s[60:61]
    v_cndmask_b32 v160, v165, 1.0, s[58:59]   ; b1
    v_cndmask_b32 v161, v163, 1.0, s[58:59]   ; b2
    v_cndmask_b32 v162, v164, 1.0, s[58:59]   ; b3
    v_cndmask_b32 v163, v163, -1.0, s[64:65]  ; c1
    v_cndmask_b32 v164, v164, -1.0, s[60:61]  ; c2
    v_cndmask_b32 v165, v165, -1.0, s[62:63]  ; c3""")

    A(f"""
.globl {NAME}
.p2align 8
.type {NAME},@function
{NAME}:
    s_cmp_ge_u32 s2, {NCH}
    s_cbranch_scc1 L_end
;TS start
    s_load_dwordx4 s[40:43], s[0:1], 8
    s_load_dwordx4 s[44:47], s[0:1], 24
    s_load_dwordx2 s[6:7], s[0:1], 88         ; ws
    s_load_dwordx2 s[4:5], s[0:1], 0          ; x
    s_load_dwordx2 s[8:9], s[0:1], 72         ; out
{WPTR if WL else ''}
    v_lshrrev_b32 v1, 6, v0
    v_lshlrev_b32 v2, 3, v0
    v_readfirstlane_b32 s3, v1                ; wave
    v_mul_u32_u24 v3, 24, v0
    v_lshlrev_b32 v1, 4, v0
    v_cmp_gt_u32 vcc, {CH//4}, v0
    s_mov_b32 s73, 0
    s_cmp_ge_u32 s3, 10
    s_cbranch_scc1 L_help
{INMAP}
    s_mul_i32 s54, s53, {CH*4}
    s_mul_i32 s55, s53, {CH*2}
    s_mul_i32 s56, s53, {CH*6}
    s_mul_i32 s57, s2, {RECB}
    s_mov_b64 exec, vcc
    s_waitcnt lgkmcnt(0)
    s_add_u32 s46, s46, s54
    s_addc_u32 s47, s47, 0
    global_load_dwordx4 v[4:7], v1, s[46:47] {o.get('ifl', '')}  ; dst
    s_add_u32 s44, s44, s54
    s_addc_u32 s45, s45, 0
    global_load_dwordx4 v[8:11], v1, s[44:45] {o.get('ifl', '')} ; src
    s_add_u32 s42, s42, s55
    s_addc_u32 s43, s43, 0
    global_load_dwordx2 v[12:13], v2, s[42:43] {o.get('ifl', '')} ; e_attr
    s_add_u32 s40, s40, s56
    s_addc_u32 s41, s41, 0
    global_load_dwordx4 v[14:17], v3, s[40:41] {o.get('ifl', '')} ; rhat
    global_load_dwordx2 v[18:19], v3, s[40:41] offset:16 {o.get('ifl', '')}
    s_add_u32 s48, s6, s57
    s_addc_u32 s49, s7, 0
    s_mov_b32 s54, 214749
    s_mov_b32 s55, 6711
    s_mov_b32 s56, 0xffff0000
    s_movk_i32 s57, {L_ST}
    s_movk_i32 s58, 625
    v_mov_b32 v46, 1
    s_barrier                                 ; B1
{WL1 if WL == 2 else ''}
{'    s_mov_b64 s[52:53], exec' + chr(10) + '    s_mov_b64 exec, -1' + chr(10) + ZERO + chr(10) + '    s_mov_b64 exec, s[52:53]' if ZA else ''}
    s_waitcnt vmcnt({4 + (NWL if WL == 2 else 0)})
;TS dst""")
    for i in range(4):
        A(f"""    v_mul_u32_u24 v{20+i}, s54, v{4+i}
    v_lshrrev_b32 v{20+i}, 23, v{20+i}          ; bucket
    v_mad_u32_u24 v{48+i}, v{20+i}, s58, 15
    v_lshlrev_b32 v{20+i}, 2, v{20+i}
    ds_add_rtn_u32 v{24+i}, v{20+i}, v46 offset:{L_C1}""")
    for i in range(4):
        A(f"""    v_lshrrev_b32 v{48+i}, 4, v{48+i}
    v_sub_u32 v{4+i}, v{4+i}, v{48+i}
    v_lshlrev_b32 v{4+i}, 2, v{4+i}""")
    A("""    s_waitcnt lgkmcnt(0)
    s_barrier                                 ; B2
;TS hist1""")
    for i in range(4):
        A(f"    ds_read_b32 v{4+i}, v{4+i} offset:{L_LUT}")
    if WL == 3:
        A(WL1)
    A(f"    s_waitcnt vmcnt({3 + (NWL if WL in (2, 3) else 0)})")
    for i in range(4):
        k = 30 + 4*i
        A(f"""    v_mul_u32_u24 v48, s55, v{8+i}
    v_lshrrev_b32 v48, 21, v48
{ROT.format(b=20+i)}    v_and_b32 v48, 28, v48                    ; source class * 4
    v_lshl_or_b32 v{k}, v{8+i}, 9, v48""")
    A("    s_waitcnt lgkmcnt(0)")
    for i in range(4):
        A(f"    v_or_b32 v{30+4*i}, v{30+4*i}, v{4+i}")
    A("    s_barrier")
    for i in range(4):
        A(f"    ds_read_b32 v{4+i}, v{20+i} offset:{L_B1}")
    for i in range(4):
        A(f"""    s_waitcnt lgkmcnt(3)
    v_add_u32 v{4+i}, v{4+i}, v{24+i}
    v_mad_u32_u24 v{4+i}, v{4+i}, 12, s57
    ds_write_b32 v{4+i}, v{30+4*i} offset:8""")
    if WL == 4:
        A(WL1)
    A(f"    s_waitcnt vmcnt({2 + NWL})")
    for i in range(4):
        src = 12 + i // 2
        A(f"    v_lshlrev_b32 v{48+i}, 16, v{src}" if i % 2 == 0 else f"    v_and_b32 v{48+i}, s56, v{src}")
    for i in range(4):
        if i == 0:
            A(f"    s_waitcnt vmcnt({1 + NWL})")
        if i == 2:
            A(f"    s_waitcnt vmcnt({NWL})\n;TS loads")
        for j in range(3*i, 3*i+3):
            src = 14 + j // 2
            A(f"    v_lshlrev_b32 v{52+j}, 16, v{src}" if j % 2 == 0 else f"    v_and_b32 v{52+j}, s56, v{src}")
            A(f"    v_mul_f32 v{52+j}, v{48+i}, v{52+j}")
        r = 28 + 4*i
        A(f"""    v_cvt_pk_bf16_f32 v{r}, v{48+i}, v{52+3*i}
    v_cvt_pk_bf16_f32 v{r+1}, v{53+3*i}, v{54+3*i}
    ds_write2_b32 v{4+i}, v{r}, v{r+1} offset0:0 offset1:1""")
    A(f"""    s_waitcnt lgkmcnt(0)
    s_barrier                                 ; B3
;TS staged
    s_mov_b64 exec, -1
    ds_read_b128 v[28:31], v1 offset:{L_ST}
    ds_read_b128 v[32:35], v1 offset:{L_ST+10240}
    ds_read_b128 v[36:39], v1 offset:{L_ST+20480}
    v_add_u32 v2, 10240, v1
    v_add_u32 v3, 20480, v1
    v_and_b32 v0, 63, v0
    s_waitcnt lgkmcnt(2)
    global_store_dwordx4 v1, v[28:31], s[48:49] {o.get('rfl', 'sc1')}
    s_waitcnt lgkmcnt(1)
{'' if o.get('drop', 0) >= 2 else '    global_store_dwordx4 v2, v[32:35], s[48:49] ' + o.get('rfl', 'sc1')}
    s_waitcnt lgkmcnt(0)
{'' if o.get('drop', 0) >= 1 else '    global_store_dwordx4 v3, v[36:39], s[48:49] ' + o.get('rfl', 'sc1')}
{WLD if WL == 1 else WL2 if WL >= 2 else ''}
L_common:
    v_mov_b32 v44, {L_NONCE}""")
    setup()
    consts()
    A(f"""
    s_mul_i32 s58, s3, {SEGW}
    s_sub_u32 s59, {NCH}, s58
    s_min_u32 s59, s59, {SEGW}
    s_bfm_b64 s[60:61], s59, 0
    v_add_u32 v45, s58, v0
    s_mov_b32 s10, {RECB}
    v_mul_lo_u32 v46, v45, s10
    v_lshlrev_b32 v45, 11, v45
    v_lshrrev_b32 v4, 4, v0
    v_lshlrev_b32 v167, 3, v4
    v_lshlrev_b32 v4, 2, v4
    v_and_b32 v5, 15, v0
    v_lshlrev_b32 v1, 4, v5
    v_add_u32 v5, 1, v5
    v_mov_b32 v2, 0
    s_cmp_eq_u32 s73, 0
    s_cbranch_scc1 L_drain
    s_mov_b32 s10, {SPIN}
    s_branch L_hchk
L_hpoll:
    global_load_dword v41, v40, s[66:67] sc1
    s_sub_u32 s10, s10, 1
    s_cbranch_scc1 L_end
L_hchk:
    s_waitcnt vmcnt(0)
    v_cmp_eq_u32 vcc, 0, v41
    s_cbranch_vccnz L_hpoll
    ds_write_b32 v44, v41
    v_and_b32 v42, 0xff000000, v41
    v_xor_b32 v42, 0xa5000000, v42
    v_lshl_or_b32 v48, v50, 12, v48
    v_lshl_or_b32 v50, v51, 12, v49
    v_lshl_or_b32 v52, v54, 12, v52
    v_lshl_or_b32 v54, v55, 12, v53
    v_or_b32 v48, v42, v48
    v_or_b32 v50, v42, v50
    v_or_b32 v52, v42, v52
    v_or_b32 v54, v42, v54
    v_mov_b32 v49, v41
    v_mov_b32 v51, v41
    v_mov_b32 v53, v41
    v_mov_b32 v55, v41
    s_waitcnt lgkmcnt(0)
    s_barrier                                 ; B4
    global_store_dwordx4 v62, v[48:51], s[50:51] {o.get('tfl', 'sc1')}
    global_store_dwordx4 v62, v[52:55], s[50:51] offset:1024 {o.get('tfl', 'sc1')}
    s_branch L_nopub
L_drain:
    s_waitcnt vmcnt(0)
    s_barrier                                 ; B4
L_nopub:
    ds_read_b32 v44, v44
    s_waitcnt lgkmcnt(0)
    v_readfirstlane_b32 s70, v44
    s_and_b32 s71, s70, 0xff000000
    s_xor_b32 s71, s71, 0xa5000000
;TS drained
    s_mov_b32 s10, {SPIN}
{POLL.replace('@WMK@', WMK)}
;TS polled
    v_and_b32 v3, 0xfff, v2
    v_lshrrev_b32 v2, 12, v2
    v_mad_u32_u24 v3, v3, 12, v46
L_round:
    v_mad_u32_u24 v31, v5, 12, -12
    v_cmp_lt_u32 vcc, 16, v2""")
    for p in range(NP - 1):
        A(f"""    ds_bpermute_b32 v{TA(p)}, v4, v3 offset:{16*p}
    ds_bpermute_b32 v{TC(p)}, v4, v2 offset:{16*p}""")
    def ldpass(p, w):
        off = ' offset:192' if p == 6 else ''
        A(f"    s_waitcnt lgkmcnt({w})")
        if p == 6:
            A(f"    v_add_u32 v{TC(p)}, -16, v{TC(p)}")
        if p == 5 and NP == 6:
            A(f"    v_sub_u32 v{TC(p)}, v{TC(p)}, v7\n    v_mad_u32_u24 v{TA(p)}, v7, 12, v{TA(p)}")
        A(f"""    v_sub_u32 v{TC(p)}, v{TC(p)}, v5
    v_add_u32 v{TA(p)}, v{TA(p)}, v31
    v_and_or_b32 v{TA(p)}, v{TC(p)}, s11, v{TA(p)}
    buffer_load_dwordx3 v[{RA(p)}:{RA(p)+2}], v{TA(p)}, s[20:23], 0 offen{off} sc1""")
    EARLY = o.get('early', 0)
    if EARLY:
        A("    s_brev_b32 s11, 1")
        for p in range(NP - 1):
            ldpass(p, 2*(NP-2-p))
    A("    s_mov_b64 s[36:37], vcc")
    def pick4():
        for q in range(4):
            A(f"""    s_ff1_i32_b64 s11, s[36:37]
    s_bitset0_b64 s[36:37], s11
    s_lshl_b32 s11, s11, 2
    s_and_b32 s11, s11, 0xfc""")
            A("    s_mov_b32 s10, s11" if q == 0 else f"    s_lshl_b32 s11, s11, {8*q}\n    s_or_b32 s10, s10, s11")
    if NP == 7:
        pick4()
    else:
        A("""    s_ff1_i32_b64 s10, s[36:37]
    s_bitset0_b64 s[36:37], s10
    s_ff1_i32_b64 s11, s[36:37]
    s_bitset0_b64 s[36:37], s11
    s_and_b32 s10, s10, 63
    s_lshl_b32 s11, s11, 26
    s_lshl_b32 s10, s10, 18
    s_or_b32 s11, s11, 0x5450
    s_or_b32 s10, s10, s11
    v_and_b32 v7, 32, v0
    v_lshrrev_b32 v7, 1, v7""")
    A("""    v_bfe_u32 v6, s10, v167, 8
    s_cmp_lg_u64 s[36:37], 0
    s_cselect_b32 s32, 1, 0
    s_cbranch_scc0 L_no8""")
    pick4()
    A(f"""    v_bfe_u32 v13, s10, v167, 8
    s_brev_b32 s11, 1
    ds_bpermute_b32 v14, v13, v3
    ds_bpermute_b32 v15, v13, v2
    s_waitcnt lgkmcnt(0)
    v_add_u32 v15, -16, v15
    v_sub_u32 v15, v15, v5
    v_add_u32 v14, v14, v31
    v_and_or_b32 v14, v15, s11, v14
    buffer_load_dwordx3 v[8:10], v14, s[20:23], 0 offen offset:192 sc1
L_no8:
    s_xor_b64 s[36:37], s[36:37], vcc
    s_brev_b32 s11, 1
    ds_bpermute_b32 v{TA(NP-1)}, v6, v3
    ds_bpermute_b32 v{TC(NP-1)}, v6, v2""")
    if EARLY:
        ldpass(NP - 1, 0)
    else:
        for p in range(NP):
            ldpass(p, 2*(NP-1-p))
    WP = 9 if WL else o.get('wpos', 0)
    if WP == 0:
        A(WDMA)
    A(f"""    v_cndmask_b32 v6, 16, 32, s[36:37]
    v_sub_u32 v2, v2, v6
    v_mad_u32_u24 v3, v6, 12, v3
    v_max_i32 v2, 0, v2
    v_mov_b32 v7, {L_FLAG}
    v_cmp_lt_u32 vcc, 0, v2
    v_mov_b32 v6, 4
    s_and_saveexec_b64 s[36:37], vcc
    ds_write_b32 v7, v6
    s_mov_b64 exec, -1
    s_mov_b32 s11, 0x200001fc
    v_and_b32 v90, 15, v0
    v_lshrrev_b32 v28, 4, v0
    v_lshlrev_b32 v28, 5, v28
    v_and_b32 v29, 12, v0
    v_add_u32 v29, v28, v29
    s_mov_b32 s10, {L_COEF | 0x20000000}
    v_lshl_add_u32 v30, v29, 1, s10
    v_lshl_or_b32 v30, v0, 30, v30
    v_lshlrev_b32 v90, 5, v90
""")
    for p in range(NP):
        A(f"""    s_waitcnt vmcnt({NP-1-p + (4 if WP == 0 else 0)})
    v_bitop3_b32 v{KA(p)}, v{RA(p)+2}, s11, v166 bitop3:0x6a
    ds_add_rtn_u32 v{RA(p)+3}, v{KA(p)}, v6""")
    A(f"""    s_cmp_eq_u32 s32, 0
    s_cbranch_scc1 L_no8a
    v_bitop3_b32 v12, v10, s11, v166 bitop3:0x6a
    ds_add_rtn_u32 v11, v12, v6
L_no8a:
{WDMA if WP == 2 else ''}
{PFC if o.get('pfpos') == 1 else ''}
;TS recs
    s_waitcnt lgkmcnt(0)
    s_barrier                                 ; B5
;TS hist2
""")
    ONE = o.get('one', 0)
    if not ONE:
        A(f"""    ds_read_b128 v[76:79], v90
    ds_read_b128 v[80:83], v90 offset:16
    ds_read_b32 v75, v7
{WDMA if WP == 3 else ''}
{PFC if o.get('pfpos', 0) == 0 else ''}
    s_mov_b32 s10, {L_COEF}
    s_waitcnt lgkmcnt(2)
    v_add_u32 v84, -4, v76                    ; running prefix minus the counter's own offset
    v_add3_u32 v85, v84, v77, -4
    v_add3_u32 v86, v85, v78, -4
    v_add3_u32 v87, v86, v79, -4
    s_waitcnt lgkmcnt(1)
    v_add3_u32 v88, v87, v80, -4
    v_add3_u32 v89, v88, v81, -4
    v_add3_u32 v92, v89, v82, -4
    v_add3_u32 v93, v92, v83, 28
    v_add_u32 v94, 0x7f, v93
    v_and_b32 v94, 0xffffff80, v94
    v_mov_b32 v95, v94
    v_lshlrev_b32 v74, 2, v0
    s_waitcnt lgkmcnt(0)
    v_add_u32_dpp v95, v95, v95 row_shr:1 row_mask:0xf bank_mask:0xf
    v_readlane_b32 s29, v93, s3
    v_readlane_b32 s30, v94, s3
    v_add_u32_dpp v95, v95, v95 row_shr:2 row_mask:0xf bank_mask:0xf
    v_readfirstlane_b32 s35, v75
    v_add_u32 v74, s29, v74
    v_add_u32_dpp v95, v95, v95 row_shr:4 row_mask:0xf bank_mask:0xf
    v_cmp_gt_u32 vcc, s30, v74
    v_mov_b32 v75, 0x800000
    v_add_u32_dpp v95, v95, v95 row_shr:8 row_mask:0xf bank_mask:0xf
    v_sub_u32 v95, v95, v94
    v_sub_u32 v76, v95, v90
    v_readlane_b32 s28, v95, s3
    v_add_u32 v77, v76, v84
    v_add_u32 v78, v76, v85
    v_add_u32 v79, v76, v86
    v_add_u32 v80, v76, v87
    v_add_u32 v81, v76, v88
    v_add_u32 v82, v76, v89
    v_add_u32 v83, v76, v92
    v_add_u32 v74, s28, v74
    s_mov_b64 exec, 0xfff
    ds_write_b128 v90, v[76:79] offset:{L_BASE}
    ds_write_b128 v90, v[80:83] offset:{L_BASE+16}
    s_mov_b64 exec, vcc
    ds_write_b32 v74, v75 offset:{L_KEY}
    s_mov_b64 exec, -1
    s_waitcnt lgkmcnt(0)
;TS scan2""")
        for p in range(NP):
            A(f"    ds_read_b32 v{BS(p)}, v{KA(p)} offset:{L_BASE}")
    else:
        A(f"""    s_cmp_lg_u32 s3, 0
    s_cbranch_scc1 L_sc1
    ds_read_b128 v[76:79], v90
    ds_read_b128 v[80:83], v90 offset:16
    ds_read_b32 v75, v7
    v_lshrrev_b32 v91, 1, v90
    s_waitcnt lgkmcnt(2)
    v_add_u32 v84, -4, v76                    ; running prefix minus the counter's own offset
    v_add3_u32 v85, v84, v77, -4
    v_add3_u32 v86, v85, v78, -4
    v_add3_u32 v87, v86, v79, -4
    s_waitcnt lgkmcnt(1)
    v_add3_u32 v88, v87, v80, -4
    v_add3_u32 v89, v88, v81, -4
    v_add3_u32 v74, v89, v82, -4
    v_add3_u32 v93, v74, v83, 28
    v_add_u32 v94, 0x7f, v93
    v_and_b32 v94, 0xffffff80, v94
    v_mov_b32 v95, v94
    s_waitcnt lgkmcnt(0)
    v_mov_b32 v92, v75
    v_add_u32_dpp v95, v95, v95 row_shr:1 row_mask:0xf bank_mask:0xf
    s_nop 1
    v_add_u32_dpp v95, v95, v95 row_shr:2 row_mask:0xf bank_mask:0xf
    s_nop 1
    v_add_u32_dpp v95, v95, v95 row_shr:4 row_mask:0xf bank_mask:0xf
    s_nop 1
    v_add_u32_dpp v95, v95, v95 row_shr:8 row_mask:0xf bank_mask:0xf
    v_sub_u32 v95, v95, v94
    v_sub_u32 v76, v95, v90
    v_add_u32 v77, v76, v84
    v_add_u32 v78, v76, v85
    v_add_u32 v79, v76, v86
    s_mov_b64 exec, 0xfff
    ds_write_b128 v90, v[76:79] offset:{L_BASE}
    v_add_u32 v80, v76, v87
    v_add_u32 v81, v76, v88
    v_add_u32 v82, v76, v89
    v_add_u32 v83, v76, v74
    ds_write_b128 v90, v[80:83] offset:{L_BASE+16}
    ds_write_b128 v91, v[92:95] offset:{L_INFO}
    s_mov_b64 exec, -1
    s_waitcnt lgkmcnt(0)
    s_barrier                                 ; B5b
{PFC.replace('L_t7', 'L_t7b')}
    s_branch L_sc2
L_sc1:
{PFC}
    s_barrier                                 ; B5b
L_sc2:
    s_lshl_b32 s10, s3, 4
    v_mov_b32 v91, s10
    ds_read_b128 v[92:95], v91 offset:{L_INFO}""")
        for p in range(NP):
            A(f"    ds_read_b32 v{BS(p)}, v{KA(p)} offset:{L_BASE}")
        A(f"""    s_mov_b32 s10, {L_COEF}
    v_lshlrev_b32 v74, 2, v0
    v_mov_b32 v75, 0x800000
    s_waitcnt lgkmcnt({NP})
    v_readfirstlane_b32 s35, v92
    v_readfirstlane_b32 s29, v93
    v_readfirstlane_b32 s30, v94
    v_readfirstlane_b32 s28, v95
    v_add_u32 v74, v93, v74
    v_cmp_gt_u32 vcc, v94, v74
    v_add_u32 v74, v95, v74""")
    A(f"""    s_sub_u32 s34, s30, s29
    s_lshr_b32 s34, s34, 6
    s_lshr_b32 s30, s30, 7
    s_cmp_lt_u32 s30, 2
    s_cselect_b32 s34, 0, s34
    s_add_u32 s29, s28, {L_KEY}
    s_lshl_b32 s28, s28, 1
    v_add_u32 v6, s29, v28
    v_add_u32 v7, s29, v29
    v_add_u32 v30, s28, v30""")
    for p in range(NP):
        A(f"""    s_waitcnt lgkmcnt({NP-1-p + 2*p})
    v_add3_u32 v{BS(p)}, v{BS(p)}, v{RA(p)+3}, v{KA(p)}
    v_lshl_add_u32 v{KA(p)}, v{BS(p)}, 1, s10
    ds_write_b32 v{BS(p)}, v{RA(p)+2} offset:{L_KEY}
    ds_write_b64 v{KA(p)}, v[{RA(p)}:{RA(p)+1}]""")
    A(f"""    s_cmp_eq_u32 s32, 0
    s_cbranch_scc1 L_no8b
    ds_read_b32 v13, v12 offset:{L_BASE}
    s_waitcnt lgkmcnt(0)
    v_add3_u32 v13, v13, v11, v12
    v_lshl_add_u32 v12, v13, 1, s10
    ds_write_b32 v13, v10 offset:{L_KEY}
    ds_write_b64 v12, v[8:9]
L_no8b:
{PADW}
    s_mov_b32 s31, {o.get('bm', (1 << NB) - 1)}
    s_mov_b32 s28, 0x00fffe00
    s_mov_b32 s29, 0xe0000000
    s_mov_b32 s38, 0x05040100
    s_mov_b32 s39, 0x07060302
    s_mov_b32 s37, 0
{ROLLS}
    s_waitcnt {'' if WL else 'vmcnt(%d) ' % NPF}lgkmcnt(0)
    s_barrier                                 ; B6
;TS sorted
;CLK 0
    s_cmp_lg_u32 s30, 0
    s_cbranch_scc0 L_done
""")
    PR = o.get('prio', 1)
    if PR == 1:
        A("""    s_cmp_lt_u32 s3, 4
    s_cbranch_scc1 L_p0
    s_setprio 1
    s_cmp_lt_u32 s3, 8
    s_cbranch_scc1 L_p0
    s_setprio 2
L_p0:""")
    if PR == 3:
        A("    s_setprio 3\n    s_mov_b32 s45, -1")
    if PR == 2:
        A("""    s_mul_i32 s10, s3, 43
    s_lshr_b32 s10, s10, 7
    s_mul_i32 s10, s10, 3
    s_cmp_lg_u32 s10, s3
    s_cbranch_scc1 L_p0
    s_setprio 1
L_p0:""")

    def read_keys():
        A(f"""    ds_read_b128 v[8:11], v6
    ds_read_b128 v[12:15], v6 offset:16
    ds_read2_b32 v[28:29], v7 offset0:0 offset1:4
    v_add_u32 v6, 128, v6
    v_add_u32 v7, 128, v7""")
    def mk_addr():
        for e in range(8):
            A(f"    v_and_or_b32 v{8+e}, v{8+e}, s28, v1")
        A("""    v_bitop3_b32 v28, v28, s29, v30 bitop3:0x6a
    v_bitop3_b32 v29, v29, s29, v30 bitop3:0x6a
    v_add_u32 v30, 256, v30""")
    def issue(h, ne=8):
        for e in range(ne):
            r = 32 + h*32 + e*4
            A(f"    buffer_load_dwordx4 v[{r}:{r+3}], v{8+e}, s[12:15], 0 offen offset:{h*256} {o.get('xfl', '')}")
    ROLL = o.get('roll', 0)
    def roll():
        if ROLL:
            A(f"""    s_min_u32 s33, s33, s34
    s_mov_b64 exec, 0x3fff
    buffer_load_dword v31, v0, s[40:43], s33 idxen
    s_mov_b64 exec, -1
    s_add_u32 s33, s33, 640000""")
    def read_b():
        A("""    ds_read_b64_tr_b16 v[16:17], v28
    ds_read_b64_tr_b16 v[18:19], v29 offset:32""")
    def half(h, nq=4):
        D = 32 + h*32
        def perms(j):
            t = 20 + (j % 2) * 4
            sel = 's38' if j % 2 == 0 else 's39'
            for q in range(nq):
                A(f"    v_perm_b32 v{t+q}, v{D + (2*q+1)*4 + j//2}, v{D + 2*q*4 + j//2}, {sel}")
        def mfma(j):
            t = 20 + (j % 2) * 4
            a = ACC + (h*8 + j) * 4
            if nq == 4:
                A(f"    v_mfma_f32_16x16x32_bf16 v[{a}:{a+3}], v[{t}:{t+3}], v[16:19], v[{a}:{a+3}]")
            else:
                A(f"    v_mfma_f32_16x16x16_bf16 v[{a}:{a+3}], v[{t}:{t+1}], v[16:17], v[{a}:{a+3}]")
        perms(0)
        for j in range(8):
            if j + 1 < 8:
                perms(j + 1)
            else:
                A("    s_nop 1")
            mfma(j)

    read_keys()
    A("    s_waitcnt lgkmcnt(0)")
    mk_addr()
    issue(0); issue(1)
    roll()
    read_b()
    read_keys()
    SHORT = o.get('short', 0)
    EA = o.get('ea', 0)
    if SHORT:
        A("    s_sub_u32 s30, s30, s34")
    A("""    s_sub_u32 s30, s30, 1
    s_cmp_eq_u32 s30, 0
    s_cbranch_scc1 L_tail
L_loop:
;STEP
""")
    if PR == 3:
        t1, t2, t3 = o.get('pt', (2, 4, 6))
        A(f"""    s_add_u32 s45, s45, 1
    s_cmp_lg_u32 s45, {t1}
    s_cbranch_scc1 L_q1
    s_setprio 2
L_q1:
    s_cmp_lg_u32 s45, {t2}
    s_cbranch_scc1 L_q2
    s_setprio 1
L_q2:
    s_cmp_lg_u32 s45, {t3}
    s_cbranch_scc1 L_q3
    s_setprio 0
L_q3:""")
    A("""    s_waitcnt lgkmcnt(0)
;STEPW""")
    if o.get('sroll'):
        A("""    s_min_u32 s33, s33, s44
    s_add_u32 s42, s4, s33
    s_addc_u32 s43, s5, 0""")
        for i in range(o.get('sn', 13)):
            if o.get('sw', 1) == 1:
                A(f"    s_load_dword s46, s[42:43], {i*128}")
            else:
                A(f"    s_load_dwordx2 s[46:47], s[42:43], {i*128 + 60}")
        A("    s_add_u32 s33, s33, 640000")
    mk_addr()
    A(f"    s_waitcnt vmcnt({8 + (1 if ROLL else 0)})")
    half(0)
    issue(0)
    A("""    s_bitcmp0_b32 s31, 0
    s_cbranch_scc1 L_nobar
    s_barrier
L_nobar:
    s_lshr_b32 s31, s31, 1""")
    A(f"    s_waitcnt vmcnt({8 + (1 if ROLL else 0)})")
    half(1)
    issue(1)
    roll()
    read_b()
    read_keys()
    A("""    s_sub_u32 s30, s30, 1
    s_cmp_lg_u32 s30, 0
    s_cbranch_scc1 L_loop
L_tail:""")
    if SHORT:
        assert not ROLL
        A("""    s_cmp_eq_u32 s34, 0
    s_cbranch_scc1 L_last
;STEP
    v_and_b32 v20, 48, v0
    v_add_u32 v21, 128, v20
    v_sub_u32 v6, v6, v21
    v_sub_u32 v7, v7, v21
    v_lshlrev_b32 v20, 1, v20
    v_sub_u32 v30, v30, v20
    s_waitcnt lgkmcnt(0)
;STEPW
    ds_read_b128 v[8:11], v6
    ds_read_b32 v28, v7
    s_waitcnt vmcnt(8)""")
        half(0)
        A("    s_waitcnt lgkmcnt(0)")
        for e in range(4):
            A(f"    v_and_or_b32 v{8+e}, v{8+e}, s28, v1")
        A("    v_bitop3_b32 v28, v28, s29, v30 bitop3:0x6a")
        issue(0, 4)
        A("""    s_bitcmp0_b32 s31, 0
    s_cbranch_scc1 L_nobar2
    s_barrier
L_nobar2:
    s_lshr_b32 s31, s31, 1
    s_waitcnt vmcnt(4)""")
        half(1)
        issue(1, 4)
        A("""    ds_read_b64_tr_b16 v[16:17], v28
;STEP
    s_waitcnt vmcnt(4) lgkmcnt(0)
;STEPW""")
        half(0, 2)
        if EA:
            A("""    s_mov_b32 s36, 1
    s_cmp_eq_u32 s35, 0
    s_cbranch_scc1 L_epiA
L_shortB:""")
        A("    s_waitcnt vmcnt(0)")
        half(1, 2)
        A("    s_branch L_done")
    A("""L_last:
;STEP""")
    A(f"    s_waitcnt vmcnt({8 + (1 if ROLL else 0)}) lgkmcnt(0)\n;STEPW")
    half(0)
    if EA:
        A("""    s_mov_b32 s36, 0
    s_cmp_eq_u32 s35, 0
    s_cbranch_scc1 L_epiA
L_lastB:""")
    A("    s_waitcnt vmcnt(0)")
    half(1)
    A(f"""L_done:
    s_ff1_i32_b32 s30, s31
    s_cmp_eq_u32 s31, 0
    s_cbranch_scc1 L_paid
    s_bitset0_b32 s31, s30
    s_barrier
    s_branch L_done
L_paid:
    s_waitcnt vmcnt(0)
{'    s_setprio ' + str(o.get('eprio', 0)) if o.get('prio', 1) or o.get('eprio') else ''}
    s_cmp_eq_u32 s35, 0
    s_cbranch_scc1 L_epi
    s_barrier
    v_mov_b32 v6, 0
    v_lshlrev_b32 v7, 2, v0
    ds_write_b32 v7, v6
    ds_write_b32 v7, v6 offset:256
    ds_write_b32 v7, v6 offset:264
    s_waitcnt lgkmcnt(0)
    s_barrier
    s_branch L_round
L_epi:
;TS main
;CLK 1""")
    if o.get('epi') == 3:
        epilogue3(A, o, ACC)
    elif EA:
        epilogue2(A, o, ACC)
    else:
        epilogue1(A, o, ACC)
    A("""L_fin:
;TSOUT
L_end:
    s_endpgm""")

    A(f"""L_help:
    v_and_b32 v0, 63, v0
    s_cmp_eq_u32 s3, 11
    s_cbranch_scc1 L_h11
    v_mov_b32 v4, 0
    v_mov_b32 v5, 0
    v_mov_b32 v6, 0
    v_mov_b32 v7, 0
    v_lshlrev_b32 v47, 4, v0
    ds_write_b128 v47, v[4:7]
    ds_write_b128 v47, v[4:7] offset:{L_C1}
    v_mul_u32_u24 v8, 1229, v0
    v_lshrrev_b32 v8, 12, v8
    v_mul_u32_u24 v9, 10, v8
    v_add_u32 v9, 2, v9
    v_mul_u32_u24 v9, 43691, v9
    v_lshrrev_b32 v9, 17, v9
    v_sub_u32 v9, v0, v9
    v_lshlrev_b32 v8, 5, v8
    v_lshl_or_b32 v8, v9, 30, v8
    v_or_b32 v8, 0x20000000, v8
    v_lshlrev_b32 v9, 2, v0
    ds_write_b32 v9, v8 offset:{L_LUT}
    s_waitcnt lgkmcnt(0)
    s_barrier                                 ; B1
{PRE}
{ZERO if ZA else ''}
{XSRD + T9 if o.get('mall') == 9 else ''}
{XSRD + TOUCH.replace('v47', 'v40').replace('offen', 'offen ' + o.get('mfl', '')) if o.get('mall') == 4 else ''}
    s_barrier                                 ; B2
    ds_read_b128 v[48:51], v47 offset:{L_C1}
    s_waitcnt lgkmcnt(0)
    v_add_u32 v52, v48, v49
    v_add_u32 v53, v52, v50
    v_add_u32 v54, v53, v51
    v_mov_b32 v55, v54
    s_nop 1
    v_add_u32_dpp v55, v55, v55 row_shr:1 row_mask:0xf bank_mask:0xf
    s_nop 1
    v_add_u32_dpp v55, v55, v55 row_shr:2 row_mask:0xf bank_mask:0xf
    s_nop 1
    v_add_u32_dpp v55, v55, v55 row_shr:4 row_mask:0xf bank_mask:0xf
    s_nop 1
    v_add_u32_dpp v55, v55, v55 row_shr:8 row_mask:0xf bank_mask:0xf
    s_nop 1
    v_add_u32_dpp v55, v55, v55 row_bcast:15 row_mask:0xa bank_mask:0xf
    s_nop 1
    v_add_u32_dpp v55, v55, v55 row_bcast:31 row_mask:0xc bank_mask:0xf
    v_sub_u32 v56, v55, v54
    v_add_u32 v57, v56, v48
    v_add_u32 v58, v56, v52
    v_add_u32 v59, v56, v53
    ds_write_b128 v47, v[56:59] offset:{L_B1}
    s_waitcnt lgkmcnt(0)
    s_barrier                                 ; B2b
    s_barrier                                 ; B3
;TSX staged
    s_branch L_common
L_h11:
    s_mov_b32 s73, 1
{'' if WL else WPTR}
    s_load_dwordx2 s[66:67], s[0:1], 80
    v_mov_b32 v40, 0
    s_barrier                                 ; B1
    s_waitcnt lgkmcnt(0)""")
    A(f"""    s_cmp_lg_u32 s2, 0
    s_cbranch_scc1 L_h1
    s_memrealtime s[48:49]
    s_waitcnt lgkmcnt(0)
    s_or_b32 s48, s48, 1
    v_mov_b32 v41, s48
    global_store_dword v40, v41, s[66:67] sc1
L_h1:""")
    if WL:
        A(f"""{ZERO if ZA else ''}
    s_barrier                                 ; B2
    global_load_dword v41, v40, s[66:67] sc1
    s_barrier                                 ; B2b
    v_lshlrev_b32 v62, 3, v0
    ds_read_b64 v[48:49], v62 offset:{L_B1}
    ds_read_b64 v[50:51], v62 offset:{L_C1}
    ds_read_b64 v[52:53], v62 offset:{L_B1+512}
    ds_read_b64 v[54:55], v62 offset:{L_C1+512}
    v_lshlrev_b32 v62, 1, v62
    s_lshl_b32 s57, s2, 11
    s_add_u32 s57, s57, {WS_INB}
    s_add_u32 s50, s6, s57
    s_addc_u32 s51, s7, 0
    s_waitcnt lgkmcnt(0)
    s_barrier                                 ; B3
;TSX staged
    s_branch L_common""")
        return
    A(f"""    s_mov_b32 s52, 0
    s_mul_i32 s53, s2, 2979
    s_lshr_b32 s53, s53, 16                   ; w = id / 22
    s_mul_i32 s54, s53, 22
    s_sub_u32 s54, s2, s54
    s_sub_u32 s54, s54, 1
    s_cmp_ge_u32 s54, 4
    s_cbranch_scc1 L_h2
    s_lshl_b32 s53, s53, 2
    s_add_u32 s53, s53, s54
    s_cmp_ge_u32 s53, 40
    s_cbranch_scc1 L_h2
    s_lshr_b32 s55, s53, 3                    ; fragment f = p*8 + u*4 + t
    s_bfe_u32 s56, s53, 0x10002
    s_and_b32 s57, s53, 3
    v_lshrrev_b32 v1, 4, v0
    v_and_b32 v2, 1, v1
    v_lshlrev_b32 v2, 5, v2
    v_lshrrev_b32 v1, 1, v1
    v_lshl_add_u32 v2, v1, 2, v2
    s_lshl_b32 s56, s56, 4
    v_add_u32 v2, s56, v2                     ; ch0 = 32*(g&1) + 4*(g>>1) + 16*u
    v_and_b32 v3, 15, v0
    v_lshlrev_b32 v3, 2, v3
    v_add_u32 v3, s57, v3                     ; c_out = 4n + t
    s_lshl_b32 s58, s55, 6
    v_add_u32 v4, s58, v2
    v_lshlrev_b32 v4, 1, v4
    s_cmp_lt_u32 s55, 2
    s_cselect_b32 s59, 0, 128
    s_cselect_b32 s62, s62, s64
    s_cselect_b32 s63, s63, s65
    s_sub_u32 s58, s58, s59
    v_add_u32 v5, s58, v2
    v_lshlrev_b32 v5, 7, v5
    v_lshl_add_u32 v5, v3, 1, v5
    s_lshl_b32 s54, s53, 10
    s_add_u32 s54, s54, {WS_W}
    v_lshlrev_b32 v6, 4, v0
    s_add_u32 s50, s6, s54
    s_addc_u32 s51, s7, 0
    global_load_dwordx2 v[8:9], v4, s[60:61]
    global_load_dwordx2 v[10:11], v4, s[60:61] offset:16""")
    for e in range(8):
        row = (e // 4) * 8 + e % 4
        A(f"    global_load_ushort v{12+e}, v5, s[62:63] offset:{row*128}")
    A(f"""    s_mov_b32 s52, 1
L_h2:
    s_mov_b32 s56, 0xffff0000
    s_barrier                                 ; B2
    global_load_dword v41, v40, s[66:67] sc1
    s_barrier                                 ; B2b
    v_lshlrev_b32 v62, 3, v0
    ds_read_b64 v[48:49], v62 offset:{L_B1}
    ds_read_b64 v[50:51], v62 offset:{L_C1}
    ds_read_b64 v[52:53], v62 offset:{L_B1+512}
    ds_read_b64 v[54:55], v62 offset:{L_C1+512}
    v_lshlrev_b32 v62, 1, v62
    s_waitcnt lgkmcnt(0)
    s_barrier                                 ; B3
;TSX staged
    s_cmp_eq_u32 s52, 0
    s_cbranch_scc1 L_h3
    s_waitcnt vmcnt(1)""")
    for e in range(8):
        src = 8 + e // 2
        A(f"    v_lshlrev_b32 v{20+e}, 16, v{src}" if e % 2 == 0 else f"    v_and_b32 v{20+e}, s56, v{src}")
        A(f"    v_lshlrev_b32 v{12+e}, 16, v{12+e}")
        A(f"    v_mul_f32 v{12+e}, v{12+e}, v{20+e}")
    for q in range(4):
        A(f"    v_cvt_pk_bf16_f32 v{28+q}, v{12+2*q}, v{13+2*q}")
    A(f"""    global_store_dwordx4 v6, v[28:31], s[50:51] sc1
L_h3:
    s_lshl_b32 s57, s2, 11
    s_add_u32 s57, s57, {WS_INB}
    s_add_u32 s50, s6, s57
    s_addc_u32 s51, s7, 0
    s_branch L_common""")


TOUCH = f"""    v_lshlrev_b32 v43, 7, v0
    s_mul_i32 s10, s2, 20000
    s_and_b32 s11, s3, 1
    s_mul_i32 s11, s11, 11904
    s_add_u32 s10, s10, s11
    buffer_load_dword v47, v43, s[12:15], s10 offen
    s_add_u32 s10, s10, 4096
    buffer_load_dword v47, v43, s[12:15], s10 offen"""


XSRD = """    s_mov_b32 s12, s4
    s_mov_b32 s13, s5
    s_mov_b32 s14, 5120000
    s_mov_b32 s15, 0x20000
"""


def gen(o):
    global L_W, L_KEY, L_COEF, L_END
    if o.get('wpre'):
        L_KEY = 2048; L_COEF = L_KEY + CAP * 4; L_W = L_COEF + CAP * 8; L_END = L_W + 40960
    else:
        L_W = 2048; L_KEY = L_W + 49152; L_COEF = L_KEY + CAP * 4; L_END = L_COEF + CAP * 8
    global TOUCH
    if o.get('mall') in (2, 4):
        TOUCH = f"""    v_lshlrev_b32 v43, 7, v0
    s_mul_i32 s10, s2, 20000
    buffer_load_dword v47, v43, s[12:15], s10 offen
    s_add_u32 s10, s10, 8192
    buffer_load_dword v47, v43, s[12:15], s10 offen
    s_add_u32 s10, s10, 3712
    buffer_load_dword v47, v43, s[12:15], s10 offen"""
    else:
        TOUCH = f"""    v_lshlrev_b32 v43, 7, v0
    s_mul_i32 s10, s2, 20000
    s_and_b32 s11, s3, 1
    s_mul_i32 s11, s11, 10000
    s_add_u32 s10, s10, s11
    buffer_load_dword v47, v43, s[12:15], s10 offen
    s_add_u32 s10, s10, 1920
    buffer_load_dword v47, v43, s[12:15], s10 offen"""
    A = Asm()
    A(HDR.rstrip('\n'))
    A(f"; @launch grid=({NCH},1,1) block=({NW*64},1,1) lds={L_END}")
    A('.amdgcn_target "amdgcn-amd-amdhsa--gfx950"\n.text')
    gen_body(A, o)
    ts = o.get('ts') or []
    A(f""".section .rodata,"a"
.p2align 6
.amdhsa_kernel {NAME}
  .amdhsa_next_free_vgpr 168
  .amdhsa_next_free_sgpr {102 if ts else 74}
  .amdhsa_accum_offset 168
  .amdhsa_group_segment_fixed_size 0
  .amdhsa_kernarg_size 96
  .amdhsa_user_sgpr_count 2
  .amdhsa_user_sgpr_kernarg_segment_ptr 1
  .amdhsa_system_sgpr_workgroup_id_x 1
.end_amdhsa_kernel""")
    out = Asm()
    names = []
    for line in A.L:
        if line.startswith(';TS '):
            nm = line.split()[1]
            if (ts == 1 or nm in ts) and len(names) < 11:
                k = len(names)
                out(f"    s_memrealtime s[{74+2*k}:{75+2*k}]")
                names.append(nm)
        elif line.startswith(';TSX'):
            if ts:
                for nm in ('dst', 'hist1', 'loads', 'staged'):
                    if nm in names:
                        k = names.index(nm)
                        out(f"    s_memrealtime s[{74+2*k}:{75+2*k}]")
        elif line.startswith(';STEPW'):
            if o.get('steps'):
                out("    v_writelane_b32 v31, s96, m0\n    s_add_u32 m0, m0, 1")
        elif line.startswith(';STEP'):
            if o.get('steps'):
                out("    s_memrealtime s[96:97]")
        elif line.startswith(';CLK'):
            if o.get('steps') and line.endswith('0'):
                out("    s_mov_b32 m0, 0\n    v_mov_b32 v31, 0")
            if o.get('steps') and line.endswith('1'):
                out(f"""    s_mul_i32 s72, s2, {NW}
    s_add_u32 s72, s72, s3
    s_lshl_b32 s72, s72, 6
    s_add_u32 s72, s72, {WS_TS + 0x100000}
    s_add_u32 s96, s6, s72
    s_addc_u32 s97, s7, 0
    v_lshlrev_b32 v30, 2, v0
    s_mov_b64 exec, 0xffff
    global_store_dword v30, v31, s[96:97]
    s_mov_b64 exec, -1""")
            if ts:
                k = int(line.split()[1])
                out(f"    s_memtime s[{98+2*k}:{99+2*k}]")
        elif line.startswith(';TSOUT'):
            if ts:
                n = len(names)
                out(f"""    s_waitcnt vmcnt(0)
    s_memrealtime s[{74+2*n}:{75+2*n}]
    s_waitcnt lgkmcnt(0)
    s_mul_i32 s72, s2, {NW}
    s_add_u32 s72, s72, s3
    s_lshl_b32 s72, s72, 6
    s_add_u32 s72, s72, {WS_TS}
    s_add_u32 s6, s6, s72
    s_addc_u32 s7, s7, 0
    s_mov_b64 exec, 1
    v_mov_b32 v0, 0
    s_sub_u32 s98, s100, s98
    v_mov_b32 v1, s98
    global_store_dword v0, v1, s[6:7] offset:60""")
                for k in range(n + 1):
                    out(f"""    v_mov_b32 v1, s{74+2*k}
    global_store_dword v0, v1, s[6:7] offset:{4*k}""")
                if o.get('gmax'):
                    k = (names + ['end']).index(o['gmax'])
                    out(f"""    s_cmp_lg_u32 s3, {o.get('gw', 9)}
    s_cbranch_scc1 L_end
    s_load_dwordx2 s[72:73], s[0:1], 80
    s_waitcnt lgkmcnt(0)
    s_not_b32 s98, s74
    v_mov_b32 v1, s98
    global_atomic_umax v0, v1, s[72:73] offset:128
    v_mov_b32 v1, s{74+2*k}
    global_atomic_umax v0, v1, s[72:73] offset:132
    s_cmp_lg_u32 s2, 0
    s_cbranch_scc1 L_end
L_g1:
    s_memrealtime s[98:99]
    s_waitcnt lgkmcnt(0)
    s_sub_u32 s98, s98, s74
    s_cmp_lt_u32 s98, 5000
    s_cbranch_scc1 L_g1
    global_load_dwordx2 v[2:3], v0, s[72:73] offset:128 sc1
    s_waitcnt vmcnt(0)
    v_readfirstlane_b32 s100, v2
    v_readfirstlane_b32 s101, v3
    s_not_b32 s100, s100
    s_sub_u32 s100, s101, s100
    s_mul_i32 s100, s100, 20
    s_add_u32 s100, s100, 5100
L_g2:
    s_memrealtime s[98:99]
    s_waitcnt lgkmcnt(0)
    s_sub_u32 s98, s98, s74
    s_cmp_lt_u32 s98, s100
    s_cbranch_scc1 L_g2""")
                if o.get('fix'):
                    out(f"""    s_add_u32 s72, s2, s3
    s_cmp_lg_u32 s72, 0
    s_cbranch_scc1 L_end
L_fix:
    s_memrealtime s[98:99]
    s_waitcnt lgkmcnt(0)
    s_sub_u32 s98, s98, s74
    s_cmp_lt_u32 s98, {o['fix']*100}
    s_cbranch_scc1 L_fix""")
                names.append('end')
        elif line.strip():
            out.L.append(line)
    global TSNAMES
    TSNAMES = names
    return out.text()


if __name__ == '__main__':
    o = eval(sys.argv[2]) if len(sys.argv) > 2 else {}
    open(sys.argv[1], 'w').write(gen(o))
```
